```python
import torch

def _softmax(x, axis=-1):
    return torch.softmax(x, dim=axis)
def _gelu(x):
    return torch.nn.functional.gelu(x, approximate="tanh")
def _silu(x):
    return torch.nn.functional.silu(x)
def _sigmoid(x):
    return torch.sigmoid(x)
def _layernorm(x, axis=-1, eps=1e-5):
    m = x.mean(dim=axis, keepdim=True)
    v = x.var(dim=axis, keepdim=True, unbiased=False)
    return (x - m) / torch.sqrt(v + eps)
def _scatter_add(tgt, idx, src, axis=0):
    return tgt.clone().index_add_(axis, idx, src)
def _segment_sum(src, seg, n):
    out = torch.zeros((n,) + src.shape[1:], dtype=src.dtype)
    return out.index_add_(0, seg, src)
def _pad(x, pw):
    flat = tuple(v for pair in reversed(pw) for v in pair)
    return torch.nn.functional.pad(x, flat)

kernel_name = 'gated_mix__grouped_kv_mqa__moe_arch_mod__prompt'

def setup_inputs():

    _w = (lambda a: (lambda t: t.to(torch.bfloat16) if t.is_floating_point() else t)(torch.as_tensor(a)))
    def _A_setup():
        B, S, D, H = 1, 2048, 512, 32
        Dh = D // H
        return {
            "x": _w((lambda *s: torch.randn(*s, dtype=torch.bfloat16) * 0.05)(B, S, D)),
            "wq": _w((lambda *s: torch.randn(*s, dtype=torch.bfloat16) * 1.6)(D, H * Dh)),
            "wk": _w((lambda *s: torch.randn(*s, dtype=torch.bfloat16) * 1.6)(D, Dh)),
            "wv": _w((lambda *s: torch.randn(*s, dtype=torch.bfloat16) * 0.1)(D, Dh)),
            "wo": _w((lambda *s: torch.randn(*s, dtype=torch.bfloat16) * 0.1)(H * Dh, D)),
        }
    _A_in = _A_setup()

    def _B_setup():
        B, S, D, F, C = 1, 2048, 512, 1792, 1
        return {
            "x": _w((lambda *s: torch.randn(*s, dtype=torch.bfloat16) * 0.05)(B, S, D)),
            "w_r": _w((lambda *s: torch.randn(*s, dtype=torch.bfloat16) * 3.2)(D)),
            "w_gate": _w((lambda *s: torch.randn(*s, dtype=torch.bfloat16) * 0.2)(D, F)),
            "w_up": _w((lambda *s: torch.randn(*s, dtype=torch.bfloat16) * 0.2)(D, F)),
            "w_down": _w((lambda *s: torch.randn(*s, dtype=torch.bfloat16) * 0.2)(F, D)),
        }
    _B_in = _B_setup()

    return {
        "A_x": _A_in["x"],
        "A_wq": _A_in["wq"],
        "A_wk": _A_in["wk"],
        "A_wv": _A_in["wv"],
        "A_wo": _A_in["wo"],
        "B_x": _B_in["x"],
        "B_w_r": _B_in["w_r"],
        "B_w_gate": _B_in["w_gate"],
        "B_w_up": _B_in["w_up"],
        "B_w_down": _B_in["w_down"],
        "gate_w": _w((lambda *s: torch.randn(*s, dtype=torch.bfloat16) * 0.05)(512) * 16.0),
    }

def reference(A_x, A_wq, A_wk, A_wv, A_wo, B_x, B_w_r, B_w_gate, B_w_up, B_w_down, gate_w):
    def _A_ref(x, wq, wk, wv, wo):
        B, S, D = x.shape
        H = 32
        Dh = D // H
        q = (lambda x, *d: x.permute(*d))((x @ wq).reshape(B, S, H, Dh), 0, 2, 1, 3)
        k = x @ wk
        v = x @ wv
        scores = torch.einsum("bhqd,bkd->bhqk", q, k) * (Dh ** -0.5)
        p = _softmax(scores, axis=-1)
        o = torch.einsum("bhqk,bkd->bhqd", p, v)
        return (lambda x, *d: x.permute(*d))(o, 0, 2, 1, 3).reshape(B, S, H * Dh) @ wo

    def _B_ref(x, w_r, w_gate, w_up, w_down):
        B, S, D = x.shape
        C = 1
        r = x @ w_r
        idx = torch.argsort(-r, axis=-1)[:, :C]
        idx_e = (lambda x, n, axis: torch.repeat_interleave(x, n, dim=axis))(idx.reshape(B, C, 1), D, axis=2)
        x_sel = (lambda x, i, axis: torch.take_along_dim(x, i, dim=axis))(x, idx_e, axis=1)
        g = _silu(x_sel @ w_gate)
        u = x_sel @ w_up
        y = (g * u) @ w_down
        r_sel = _sigmoid((lambda x, i, axis: torch.take_along_dim(x, i, dim=axis))(r, idx, axis=1))
        y = y * r_sel.reshape(B, C, 1)
        b_off = (torch.arange(B) * S).reshape(B, 1)
        flat_idx = (idx + b_off).reshape(B * C)
        zero = (x * 0.0).reshape(B * S, D)
        upd = _scatter_add(zero, flat_idx, y.reshape(B * C, D), axis=0)
        return x + upd.reshape(B, S, D)

    x = A_x
    g = _sigmoid((x * gate_w).sum(-1, keepdims=True))
    a = _A_ref(x, A_wq, A_wk, A_wv, A_wo)
    b = _B_ref(x, B_w_r, B_w_gate, B_w_up, B_w_down)
    return g * a + (1 - g) * b
```

```python
import sys, struct, math

NAME = "gated_mix__grouped_kv_mqa__moe_arch_mod__prompt"

WS_QF = 0x000000
WS_KV = 0x200000
WS_WOF = 0x220000
WS_G = 0x2A0000
WS_CAND = 0x2A2000
WS_YACC = 0x2A3000
WS_END = 0x2A4000

KA = dict(x=0, wq=8, wk=16, wv=24, wo=32, bx=40, wr=48, wg=56, wu=64, wd=72, gw=80, out=88, dbg=96, ws=104)


def fbits(f):
    return struct.unpack("<I", struct.pack("<f", f))[0]


class Asm:
    def __init__(self):
        self.L = []

    def __call__(self, s):
        for line in s.strip("\n").split("\n"):
            line = line.strip()
            if not line:
                continue
            if line.endswith(":") or line.startswith("."):
                self.L.append(line)
            else:
                self.L.append("    " + line)

    def label(self, n):
        self.L.append(n + ":")

    def c(self, s):
        self.L.append("    ; " + s)

    def text(self):
        return "\n".join(self.L) + "\n"


def vr(a, n):
    return f"v[{a}:{a+n-1}]" if n > 1 else f"v{a}"


def srd(a, base, key, nbytes):
    a(f"s_load_dwordx2 s[{base}:{base+1}], s[0:1], {KA[key]}")
    a(f"s_mov_b32 s{base+2}, {nbytes}")
    a(f"s_mov_b32 s{base+3}, 0x20000")


K1_LDS = 147456
LX, LW, LE = 0, 65536, 131072


def gen_k1(a, opt):
    X, WQ, EX, WO, WR, GW, WS = 8, 12, 16, 20, 24, 28, 32
    a.label("prep_kernel")
    a("s_cmp_ge_u32 s2, 256")
    a("s_cbranch_scc1 K1_exit")
    srd(a, X, "x", 2097152)
    srd(a, WQ, "wq", 524288)
    a(f"s_load_dwordx4 s[36:39], s[0:1], {KA['wk']}")
    srd(a, WO, "wo", 524288)
    srd(a, WR, "wr", 1024)
    srd(a, GW, "gw", 1024)
    srd(a, WS, "ws", WS_END)
    a(f"s_mov_b32 s{EX+2}, 16384")
    a(f"s_mov_b32 s{EX+3}, 0x20000")
    a("v_lshrrev_b32 v1, 6, v0")
    a("v_and_b32 v0, 63, v0")
    a("v_readfirstlane_b32 s40, v1")
    a("s_and_b32 s41, s2, 7")
    a("s_lshr_b32 s42, s2, 3")
    a("s_and_b32 s43, s42, 7")
    a("s_lshr_b32 s42, s42, 3")
    a("s_lshl_b32 s41, s41, 2")
    a("s_add_u32 s42, s42, s41")
    a("v_lshrrev_b32 v2, 4, v0")
    a("v_and_b32 v3, 15, v0")
    a("v_lshlrev_b32 v4, 4, v0")
    a("s_and_b32 s44, s40, 3")
    a("s_lshl_b32 s45, s44, 2")
    a("v_add_u32 v5, s45, v2")
    a("v_xor_b32 v5, v5, v3")
    a("v_lshlrev_b32 v5, 4, v5")
    a("v_lshl_add_u32 v5, v2, 10, v5")
    a("v_and_b32 v6, 1, v2")
    a("v_lshlrev_b32 v6, 2, v6")
    a("v_and_b32 v7, 7, v0")
    a("v_xor_b32 v6, v6, v7")
    a("v_lshlrev_b32 v6, 4, v6")
    a("v_lshrrev_b32 v8, 3, v0")
    a("v_lshl_add_u32 v6, v8, 10, v6")
    a("v_lshlrev_b32 v9, 3, v3")
    a("v_lshl_add_u32 v9, v2, 13, v9")
    a("v_add_u32 v10, 4096, v9")
    a("s_lshl_b32 s46, s44, 8")
    a("v_lshl_add_u32 v11, v0, 2, s46")
    a("s_lshl_b32 s47, s42, 16")
    a("s_lshl_b32 s48, s40, 12")
    a("s_add_u32 s47, s47, s48")
    a("s_lshl_b32 s48, s40, 13")
    a("s_lshl_b32 s49, s43, 7")
    a("s_add_u32 s48, s48, s49")
    a("s_lshl_b32 s49, s40, 10")
    a("s_waitcnt lgkmcnt(0)")
    a("s_cmp_eq_u32 s43, 0")
    a(f"s_cselect_b64 s[{EX}:{EX+1}], s[36:37], s[38:39]")
    a("s_cmp_lt_u32 s40, 4")
    a("s_cbranch_scc1 K1_dma")
    a("s_cmp_lt_u32 s43, 2")
    a("s_cbranch_scc1 K1_pre_kv")
    a("s_cmp_eq_u32 s43, 2")
    a("s_cbranch_scc1 K1_pre_rg")
    a("s_cmp_eq_u32 s43, 3")
    a("s_cbranch_scc0 K1_dma")
    a.c("wo job: job = rb*4+v ; t = job>>4 ; wn = (job>>1)&7 ; hh = job&1")
    a("s_lshl_b32 s50, s42, 2")
    a("s_add_u32 s50, s50, s44")
    a("s_lshr_b32 s51, s50, 4")
    a("s_lshl_b32 s51, s51, 16")
    a("s_and_b32 s52, s50, 1")
    a("s_lshl_b32 s52, s52, 15")
    a("s_add_u32 s51, s51, s52")
    a("s_bfe_u32 s52, s50, 0x30001")
    a("s_lshl_b32 s52, s52, 7")
    a("s_add_u32 s51, s51, s52")
    for dd in range(8):
        a(f"buffer_load_dwordx2 {vr(64+2*dd,2)}, v{9+(dd>>2)}, s[{WO}:{WO+3}], s51 offen offset:{(dd&3)*1024}")
    a("s_branch K1_dma")
    a.label("K1_pre_rg")
    a(f"buffer_load_dword v64, v11, s[{WR}:{WR+3}], 0 offen")
    a(f"buffer_load_dword v65, v11, s[{GW}:{GW+3}], 0 offen")
    a("s_branch K1_dma")
    a.label("K1_pre_kv")
    a("s_lshl_b32 s50, s44, 10")
    for c in range(4):
        a(f"s_add_u32 s51, s43, {c}")
        a("s_and_b32 s51, s51, 3")
        a("s_lshl_b32 s51, s51, 12")
        a(f"s_add_u32 m0, s50, {LE + c*4096}")
        a("s_add_u32 s51, s51, s50")
        a(f"buffer_load_dwordx4 v4, s[{EX}:{EX+3}], s51 offen lds")
    a.label("K1_dma")
    for c in range(4):
        a(f"s_add_u32 s50, s43, {c}")
        a("s_and_b32 s50, s50, 3")
        a("s_lshl_b32 s51, s50, 8")
        a("s_add_u32 s51, s51, s47")
        a("s_lshl_b32 s52, s50, 17")
        a(f"s_add_u32 m0, s49, {LX + c*16384}")
        a("s_add_u32 s52, s52, s48")
        a(f"buffer_load_dwordx4 v5, s[{X}:{X+3}], s51 offen lds")
        a(f"s_add_u32 m0, s49, {LW + c*16384}")
        a("s_add_u32 s51, s51, 32768")
        a(f"buffer_load_dwordx4 v6, s[{WQ}:{WQ+3}], s52 offen lds")
        a(f"s_add_u32 m0, s49, {LX + c*16384 + 8192}")
        a("s_add_u32 s52, s52, 65536")
        a(f"buffer_load_dwordx4 v5, s[{X}:{X+3}], s51 offen lds")
        a(f"s_add_u32 m0, s49, {LW + c*16384 + 8192}")
        a("s_nop 0")
        a(f"buffer_load_dwordx4 v6, s[{WQ}:{WQ+3}], s52 offen lds")
    a("s_cmp_ge_u32 s40, 4")
    a("s_cbranch_scc1 K1_side")

    a.c("main waves: a = w&1 (row half), u = w>>1 (column half)")
    a("s_and_b32 s50, s40, 1")
    a("s_lshr_b32 s51, s40, 1")
    a("v_and_b32 v12, 31, v0")
    a("v_lshrrev_b32 v13, 5, v0")
    a("s_lshl_b32 s52, s50, 13")
    a("v_lshl_add_u32 v14, v12, 8, s52")
    a("v_xor_b32 v15, v13, v3")
    for s in range(8):
        a(f"v_xor_b32 v{16+s}, {2*s}, v15")
        a(f"v_lshl_add_u32 v{16+s}, v{16+s}, 4, v14")
    a("v_bfe_u32 v24, v0, 2, 2")
    a("v_lshl_add_u32 v25, v13, 3, v24")
    a("v_and_b32 v26, 3, v0")
    a("v_lshlrev_b32 v26, 3, v26")
    a("v_and_b32 v27, 1, v2")
    a("v_lshl_add_u32 v26, v27, 5, v26")
    a("s_lshl_b32 s52, s51, 6")
    a("v_add_u32 v26, s52, v26")
    a("v_lshrrev_b32 v27, 1, v24")
    a("v_lshlrev_b32 v27, 6, v27")
    a("v_xor_b32 v26, v26, v27")
    a("v_lshl_add_u32 v24, v25, 7, v26")
    a(f"v_add_u32 v24, {LW}, v24")
    a("v_lshrrev_b32 v25, 3, v12")
    a("v_lshlrev_b32 v25, 13, v25")
    a("v_lshl_add_u32 v25, v13, 9, v25")
    a("v_lshl_add_u32 v25, v7, 4, v25")
    a("s_lshl_b32 s52, s42, 16")
    a("s_lshl_b32 s53, s50, 15")
    a("s_add_u32 s52, s52, s53")
    a("s_lshl_b32 s53, s43, 10")
    a("s_add_u32 s52, s52, s53")
    a("s_lshl_b32 s53, s51, 8")
    a("s_add_u32 s52, s52, s53")
    ACC = 32
    FB, FA = 48, 80
    first = True
    for c in range(4):
        a(f"s_waitcnt vmcnt({12 - 4*c})")
        a("s_barrier")
        def rd(s):
            a(f"ds_read_b128 {vr(FB+4*s,4)}, v{16+s} offset:{c*16384}")
            a(f"ds_read_b64_tr_b16 {vr(FA+4*s,2)}, v24 offset:{c*16384 + s*2048}")
            a(f"ds_read_b64_tr_b16 {vr(FA+4*s+2,2)}, v24 offset:{c*16384 + s*2048 + 512}")
        for s in range(4):
            rd(s)
        for s in range(8):
            a(f"s_waitcnt lgkmcnt({min(9, 3*(7-s))})")
            cc = "0" if first else vr(ACC, 16)
            a(f"v_mfma_f32_32x32x16_bf16 {vr(ACC,16)}, {vr(FA+4*s,4)}, {vr(FB+4*s,4)}, {cc}")
            first = False
            if s < 4:
                rd(s + 4)
    qs = 0.25 * math.log2(math.e)
    a(f"s_mov_b32 s54, {fbits(qs):#x}")
    a("s_nop 15")
    for i in range(16):
        a(f"v_mul_f32 v{ACC+i}, s54, v{ACC+i}")
    for i in range(8):
        a(f"v_cvt_pk_bf16_f32 v{48+i}, v{ACC+2*i}, v{ACC+2*i+1}")
    a(f"buffer_store_dwordx4 v[48:51], v25, s[{WS}:{WS+3}], s52 offen")
    a(f"buffer_store_dwordx4 v[52:55], v25, s[{WS}:{WS+3}], s52 offen offset:128")
    a("s_endpgm")

    a.label("K1_side")
    a("s_cmp_lt_u32 s43, 3")
    a("s_cbranch_scc1 K1_side_mm")
    for c in range(4):
        a(f"s_waitcnt vmcnt({12 - 4*c})")
        a("s_barrier")
    a("s_cmp_eq_u32 s43, 3")
    a("s_cbranch_scc0 K1_zero")
    a.c("wo job: 8x4 block per lane -> four 16-byte fragments")
    a("s_mov_b32 s54, 0x05040100")
    a("s_mov_b32 s55, 0x07060302")
    pairs = [(0, 1), (4, 5), (2, 3), (6, 7)]
    for u in range(4):
        for i, (d0, d1) in enumerate(pairs):
            a(f"v_perm_b32 v{80+4*u+i}, v{64+2*d1+(u>>1)}, v{64+2*d0+(u>>1)}, s{54+(u&1)}")
    a("s_lshl_b32 s50, s42, 2")
    a("s_add_u32 s50, s50, s44")
    a("s_lshr_b32 s51, s50, 1")
    a("s_lshl_b32 s51, s51, 13")
    a("s_and_b32 s52, s50, 1")
    a("s_lshl_b32 s52, s52, 10")
    a("s_add_u32 s51, s51, s52")
    a(f"s_add_u32 s51, s51, {WS_WOF}")
    a("s_add_u32 s52, s51, 4096")
    for u in range(4):
        a(f"buffer_store_dwordx4 {vr(80+4*u,4)}, v4, s[{WS}:{WS+3}], s{51+(u>>1)} offen offset:{(u&1)*2048}")
    a("s_endpgm")
    a.label("K1_zero")
    a("s_cmp_eq_u32 s2, 32")
    a("s_cbranch_scc0 K1_exit")
    a("s_cmp_eq_u32 s40, 4")
    a("s_cbranch_scc0 K1_exit")
    for i in range(4):
        a(f"v_mov_b32 v{64+i}, 0")
    a(f"s_mov_b32 s51, {WS_YACC}")
    a(f"buffer_store_dwordx4 v[64:67], v4, s[{WS}:{WS+3}], s51 offen sc1")
    a(f"buffer_store_dwordx4 v[64:67], v4, s[{WS}:{WS+3}], s51 offen offset:1024 sc1")
    a("s_endpgm")

    a.label("K1_side_mm")
    a("s_lshl_b32 s52, s44, 12")
    a("v_lshl_add_u32 v14, v3, 8, s52")
    a("v_xor_b32 v15, v2, v3")
    for s in range(4):
        a(f"v_xor_b32 v{16+s}, {4*s}, v15")
        a(f"v_lshl_add_u32 v{16+s}, v{16+s}, 4, v14")
    a("v_bfe_u32 v24, v0, 2, 2")
    a("v_lshl_add_u32 v24, v2, 3, v24")
    a("v_and_b32 v26, 3, v0")
    a("v_lshlrev_b32 v26, 3, v26")
    a("v_lshl_add_u32 v24, v24, 5, v26")
    a(f"v_add_u32 v24, {LE}, v24")
    a("s_cmp_eq_u32 s43, 2")
    a("s_cbranch_scc0 K1_mm_go")
    a.c("router/gate: column 0 = w_r, column 1 = gate_w of the extra matrix (other columns unused)")
    a("v_lshlrev_b32 v27, 4, v11")
    a("v_add_u32 v27, 8192, v27")
    a("v_and_b32 v27, 16383, v27")
    a(f"v_add_u32 v27, {LE}, v27")
    a("s_mov_b32 s54, 0x05040100")
    a("s_mov_b32 s55, 0x07060302")
    a("s_waitcnt vmcnt(16)")
    a("v_perm_b32 v66, v65, v64, s54")
    a("v_perm_b32 v67, v65, v64, s55")
    a("ds_write_b32 v27, v66")
    a("ds_write_b32 v27, v67 offset:32")
    a("s_waitcnt lgkmcnt(0)")
    a.label("K1_mm_go")
    D1, D2, FB, FA = 32, 36, 48, 80
    first = True
    for c in range(4):
        a(f"s_waitcnt vmcnt({12 - 4*c})")
        a("s_barrier")
        for s in range(4):
            a(f"ds_read_b128 {vr(FB+4*s,4)}, v{16+s} offset:{c*16384}")
            a(f"ds_read_b64_tr_b16 {vr(FA+4*s,2)}, v24 offset:{c*4096 + s*1024}")
            a(f"ds_read_b64_tr_b16 {vr(FA+4*s+2,2)}, v24 offset:{c*4096 + s*1024 + 128}")
        for s in range(4):
            a(f"s_waitcnt lgkmcnt({3*(3-s)})")
            c1 = "0" if first else vr(D1, 4)
            c2 = "0" if first else vr(D2, 4)
            a(f"v_mfma_f32_16x16x32_bf16 {vr(D1,4)}, {vr(FA+4*s,4)}, {vr(FB+4*s,4)}, {c1}")
            a(f"v_mfma_f32_16x16x32_bf16 {vr(D2,4)}, {vr(FB+4*s,4)}, {vr(FA+4*s,4)}, {c2}")
            first = False
    a("s_lshl_b32 s50, s42, 1")
    a("s_lshr_b32 s51, s44, 1")
    a("s_add_u32 s50, s50, s51")
    a("s_lshl_b32 s50, s50, 11")
    a(f"s_add_u32 s50, s50, {WS_KV}")
    a("s_and_b32 s51, s44, 1")
    a("v_and_b32 v12, 1, v2")
    a("v_lshrrev_b32 v13, 1, v2")
    a("v_lshlrev_b32 v14, 4, v3")
    a("s_cmp_eq_u32 s43, 1")
    a("s_cbranch_scc1 K1_st_v")
    a("s_cmp_eq_u32 s43, 2")
    a("s_cbranch_scc1 K1_st_rg")
    a.c("K fragment store")
    a("s_lshl_b32 s51, s51, 8")
    a("s_add_u32 s50, s50, s51")
    a("v_lshl_add_u32 v14, v12, 9, v14")
    a("v_lshl_add_u32 v14, v13, 3, v14")
    a(f"v_cvt_pk_bf16_f32 v40, v{D1}, v{D1+1}")
    a(f"v_cvt_pk_bf16_f32 v41, v{D1+2}, v{D1+3}")
    a(f"buffer_store_dwordx2 v[40:41], v14, s[{WS}:{WS+3}], s50 offen")
    a("s_endpgm")
    a.label("K1_st_v")
    a("s_lshl_b32 s51, s51, 9")
    a("s_add_u32 s50, s50, s51")
    a("v_lshl_add_u32 v14, v13, 8, v14")
    a("v_lshl_add_u32 v14, v12, 3, v14")
    a(f"v_cvt_pk_bf16_f32 v40, v{D2}, v{D2+1}")
    a(f"v_cvt_pk_bf16_f32 v41, v{D2+2}, v{D2+3}")
    a(f"buffer_store_dwordx2 v[40:41], v14, s[{WS}:{WS+3}], s50 offen offset:1024")
    a("s_endpgm")
    a.label("K1_st_rg")
    a.c("lanes 0..15: D1[0] = router score, D1[1] = gate logit of token rb*64+16v+lane")
    a("s_lshl_b32 s50, s42, 6")
    a("s_lshl_b32 s51, s44, 4")
    a("s_add_u32 s50, s50, s51")
    a(f"v_cvt_pk_bf16_f32 v40, v{D1}, v{D1+1}")
    a("v_and_b32 v41, 0xffff0000, v40")
    a(f"v_mul_f32 v41, {fbits(-math.log2(math.e)):#x}, v41")
    a("v_exp_f32 v41, v41")
    a("v_lshlrev_b32 v42, 16, v40")
    a("v_add_f32 v41, 1.0, v41")
    a("v_rcp_f32 v41, v41")
    a("v_ashrrev_i32 v43, 31, v42")
    a("v_or_b32 v43, 0x80000000, v43")
    a("v_cvt_pk_bf16_f32 v41, v41, v41")
    a("v_xor_b32 v42, v42, v43")
    a("v_and_b32 v42, 0xffff0000, v42")
    a("v_and_b32 v41, 0xffff0000, v41")
    a("s_sub_u32 s51, 2047, s50")
    a("v_sub_u32 v43, s51, v0")
    a("v_or_b32 v42, v42, v43")
    a("v_lshlrev_b32 v44, 2, v0")
    a("s_lshl_b32 s51, s50, 2")
    a(f"s_add_u32 s51, s51, {WS_G}")
    for sh in (1, 2, 4, 8):
        a(f"v_max_u32_dpp v42, v42, v42 row_shr:{sh} row_mask:0xf bank_mask:0xf")
        a("s_nop 1")
    a("s_mov_b64 exec, 0xffff")
    a(f"buffer_store_dword v41, v44, s[{WS}:{WS+3}], s51 offen")
    a("s_lshr_b32 s50, s50, 2")
    a(f"s_add_u32 s50, s50, {WS_CAND - 60}")
    a("s_mov_b64 exec, 0x8000")
    a(f"buffer_store_dword v42, v44, s[{WS}:{WS+3}], s50 offen")
    a.label("K1_exit")
    a("s_endpgm")


REC = 2064
L_AFR = 64 * REC
L_PART = L_AFR + 8192
L_MOEW = L_PART + 8192
L_HP = L_MOEW + 4096
L_HB = L_HP + 256
L_CNT = L_HB + 128
K2_LDS = L_CNT + 64
NMOE_WAVES = 112 * 4


def gen_k2(a, opt):
    U = opt.get("U", 8)
    NIT = 64 // U
    X, WS, OUT, DBG, MW, WD = 8, 12, 16, 20, 24, 28
    sW, sBROW, sIDX, sIT, sSLOW, sMOE, sV, sSL, sKEY, sWOB = 40, 41, 42, 43, 44, 45, 46, 47, 48, 49
    vL16, vAK, vAVA, vAVB, vPIDX, vOIDX, vAK0, vAVA0, vAVB0 = 1, 2, 3, 4, 5, 6, 7, 8, 9
    vAFW, vEPO, vG = 10, 11, 112
    S0, S1, O, C = 16, 32, 48, 64
    KB, VA, VB, Q = [80, 84], [88, 92], [96, 100], 104
    WO = 128
    a.label("attn_kernel")
    a("s_cmp_ge_u32 s2, 256")
    a("s_cbranch_scc1 K2_exit")
    srd(a, WS, "ws", WS_END)
    srd(a, X, "x", 2097152)
    srd(a, OUT, "out", 2097152)
    srd(a, DBG, "dbg", 256)
    a(f"s_load_dwordx4 s[32:35], s[0:1], {KA['wg']}")
    srd(a, WD, "wd", 1835008)
    a(f"s_mov_b32 s{MW+2}, 1835008")
    a(f"s_mov_b32 s{MW+3}, 0x20000")
    a("v_lshrrev_b32 v12, 6, v0")
    a("v_and_b32 v0, 63, v0")
    a(f"v_readfirstlane_b32 s{sW}, v12")
    a(f"v_lshlrev_b32 v{vL16}, 4, v0")
    a("v_lshlrev_b32 v12, 3, v0")
    a("s_and_b32 s50, s2, 7")
    a("s_lshr_b32 s51, s2, 3")
    a(f"s_lshl_b32 s{sBROW}, s50, 5")
    a(f"s_add_u32 s{sBROW}, s{sBROW}, s51")
    a(f"s_mul_i32 s{sSL}, s50, 14")
    a(f"s_add_u32 s{sSL}, s{sSL}, s51")
    a(f"s_and_b32 s{sV}, s{sW}, 3")
    a("s_cmp_lt_u32 s51, 14")
    a(f"s_cselect_b32 s{sMOE}, 1, 0")
    a(f"s_cmp_ge_u32 s{sW}, 4")
    a(f"s_cselect_b32 s{sMOE}, s{sMOE}, 0")
    a(f"s_lshl_b32 s52, s{sBROW}, 13")
    a(f"s_lshl_b32 s53, s{sW}, 10")
    a("s_add_u32 s52, s52, s53")
    a(f"s_add_u32 s53, s53, {WS_KV}")
    a(f"s_lshr_b32 s54, s{sW}, 1")
    a(f"s_mul_i32 s54, s54, {REC}")
    a(f"s_and_b32 s55, s{sW}, 1")
    a("s_lshl_b32 s55, s55, 10")
    a("s_add_u32 s54, s54, s55")
    a(f"s_mov_b32 s55, {WS_CAND}")
    a("s_waitcnt lgkmcnt(0)")
    a(f"buffer_load_dwordx2 v[14:15], v12, s[{WS}:{WS+3}], s55 offen")
    a(f"buffer_load_dwordx4 {vr(Q,4)}, v{vL16}, s[{WS}:{WS+3}], s52 offen")
    for p in range(16):
        a(f"s_add_u32 m0, s54, {p*4*REC}")
        a(f"s_add_u32 s52, s53, {p*8192}")
        a(f"buffer_load_dwordx4 v{vL16}, s[{WS}:{WS+3}], s52 offen lds")
    a(f"s_bitcmp1_b32 s{sW}, 1")
    a(f"s_cselect_b64 s[{MW}:{MW+1}], s[34:35], s[32:33]")
    a(f"v_add_u32 v{vAK0}, {2*REC}, v{vL16}")
    a("v_and_b32 v12, 31, v0")
    a("v_lshrrev_b32 v13, 5, v0")
    a("v_lshlrev_b32 v16, 4, v12")
    a("v_lshl_add_u32 v16, v13, 8, v16")
    a(f"v_add_u32 v17, {1024 + REC}, v16")
    a(f"v_add_u32 v18, {1536}, v16")
    a(f"v_mov_b32 v19, {2048}")
    a("v_cmp_lt_u32 vcc, 15, v12")
    a(f"v_mov_b32 v{vPIDX}, 0xdddd")
    a(f"v_mov_b32 v20, 0x4444")
    a(f"v_cndmask_b32 v{vAVA0}, v17, v19, vcc")
    a(f"v_cndmask_b32 v{vAVB0}, v18, v19, vcc")
    a("v_and_b32 v21, 8, v0")
    a("v_cmp_ne_u32 vcc, 0, v21")
    a("v_mov_b32 v21, 0xeeee")
    a("v_bfe_u32 v16, v0, 3, 2")
    a(f"v_cndmask_b32 v{vOIDX}, v20, v21, vcc")
    a("v_lshlrev_b32 v16, 8, v16")
    a("v_lshl_add_u32 v16, v13, 7, v16")
    a("v_and_b32 v17, 7, v0")
    a("v_lshl_add_u32 v16, v17, 4, v16")
    a(f"s_lshl_b32 s52, s{sW}, 10")
    a(f"s_add_u32 s52, s52, {L_AFR}")
    a(f"v_add_u32 v{vAFW}, s52, v16")
    a("v_bfe_u32 v16, v0, 4, 1")
    a("v_lshl_add_u32 v16, v16, 2, v13")
    a("v_and_b32 v17, 15, v0")
    a("v_lshlrev_b32 v17, 3, v17")
    a(f"v_lshl_add_u32 v{vEPO}, v16, 10, v17")
    a("v_lshlrev_b32 v114, 2, v16")
    a("v_mov_b32 v115, v16")
    a(f"v_mul_u32_u24 v16, {REC}, v0")
    for i in range(4):
        a(f"v_mov_b32 v{20+i}, 0x3f803f80")
    a("v_mov_b32 v24, 0")
    a("v_mov_b32 v25, 0")
    a(f"v_mov_b32 v17, {L_CNT}")
    a(f"s_cmp_eq_u32 s{sW}, 0")
    a("s_cbranch_scc0 K2_noinit")
    a("ds_write_b128 v16, v[20:23] offset:2048")
    a("ds_write_b64 v17, v[24:25]")
    a.label("K2_noinit")
    for i in range(16):
        a(f"v_mov_b32 v{C+i}, 0")
    a(f"s_mov_b32 s{sSLOW}, 0")
    a(f"s_cmp_lt_u32 s{sW}, 4")
    a("s_cbranch_scc0 K2_noprio")
    a("s_setprio 1")
    a.label("K2_noprio")
    a("s_waitcnt vmcnt(17)")
    a("v_max_u32 v14, v14, v15")
    a("s_nop 1")
    for d in ("row_shr:1 row_mask:0xf", "row_shr:2 row_mask:0xf", "row_shr:4 row_mask:0xf", "row_shr:8 row_mask:0xf",
              "row_bcast:15 row_mask:0xa", "row_bcast:31 row_mask:0xc"):
        a(f"v_max_u32_dpp v14, v14, v14 {d} bank_mask:0xf")
        a("s_nop 1")
    a(f"v_readlane_b32 s{sKEY}, v14, 63")
    a("s_nop 3")
    a(f"s_and_b32 s{sIDX}, s{sKEY}, 0xffff")
    a(f"s_sub_u32 s{sIDX}, 2047, s{sIDX}")
    a(f"s_and_b32 s{sIDX}, s{sIDX}, 2047")
    nrec1 = U + 2
    p1 = (nrec1 + 3) // 4
    a(f"s_waitcnt vmcnt({16 - p1}) lgkmcnt(0)")
    a("s_barrier")
    LG, LD, LXS, D1, TM = 128, 160, 176, 208, 212
    a(f"s_cmp_eq_u32 s{sMOE}, 0")
    a("s_cbranch_scc1 K2_restart")
    a("v_lshrrev_b32 v16, 1, v0")
    a("v_mul_u32_u24 v16, 3584, v16")
    a("v_and_b32 v17, 1, v0")
    a("v_lshl_add_u32 v16, v17, 4, v16")
    a("v_lshrrev_b32 v17, 2, v0")
    a("v_lshlrev_b32 v17, 10, v17")
    a("v_and_b32 v18, 3, v0")
    a("v_lshl_add_u32 v17, v18, 4, v17")
    a("v_lshrrev_b32 v18, 4, v0")
    a("v_lshlrev_b32 v18, 4, v18")
    a(f"s_and_b32 s52, s{sV}, 1")
    a(f"s_mul_i32 s53, s52, {256*3584}")
    a(f"s_lshl_b32 s54, s{sSL}, 5")
    a("s_add_u32 s53, s53, s54")
    for i in range(8):
        a(f"buffer_load_dwordx4 {vr(LG+4*i,4)}, v16, s[{MW}:{MW+3}], s53 offen")
        if i < 7:
            a(f"s_add_u32 s53, s53, {32*3584}")
    a(f"s_lshl_b32 s53, s{sIDX}, 10")
    a("s_lshl_b32 s52, s52, 9")
    a("s_add_u32 s53, s53, s52")
    for i in range(8):
        a(f"buffer_load_dwordx4 {vr(LXS+4*i,4)}, v18, s[{X}:{X+3}], s53 offen offset:{i*64}")
    a(f"s_lshl_b32 s53, s{sSL}, 14")
    a(f"s_lshl_b32 s54, s{sV}, 8")
    a("s_add_u32 s53, s53, s54")
    for i in range(4):
        a(f"buffer_load_dwordx4 {vr(LD+4*i,4)}, v17, s[{WD}:{WD+3}], s53 offen offset:{i*64}")

    a.label("K2_restart")
    a(f"ds_read_b128 {vr(KB[1],4)}, v{vL16}")
    a(f"ds_read_b128 {vr(KB[0],4)}, v{vL16} offset:{REC}")
    a(f"v_subrev_u32 v16, {REC}, v{vAVA0}")
    a(f"v_cmp_lt_u32 vcc, 15, v12")
    a(f"v_mov_b32 v{vAK}, v{vAK0}")
    a(f"v_mov_b32 v{vAVA}, v{vAVA0}")
    a(f"v_cndmask_b32 v16, v16, v{vAVA0}, vcc")
    a(f"v_mov_b32 v{vAVB}, v{vAVB0}")
    a(f"ds_read_b128 {vr(VA[0],4)}, v16")
    for i in range(16):
        a(f"v_mov_b32 v{O+i}, 0")
    for i in range(8):
        a(f"v_mov_b32 v{S1+8+i}, 0")
    for i in range(4):
        a(f"v_mov_b32 v{VB[0]+i}, 0")
    a(f"s_mov_b32 s{sIT}, 0")
    a("s_waitcnt lgkmcnt(2)")
    a(f"v_mfma_f32_32x32x16_bf16 {vr(S0,16)}, {vr(KB[1],4)}, {vr(Q,4)}, {vr(C,16)}")
    a("s_nop 11")
    a(".p2align 6")
    a.label("K2_loop")
    for j in range(U):
        cur = S0 if j % 2 == 0 else S1
        oth = S1 if j % 2 == 0 else S0
        b, nb = j % 2, 1 - j % 2
        e = [f"v_exp_f32 v{cur+i}, v{cur+i}" for i in range(16)]
        pv1 = f"v_smfmac_f32_32x32x32_bf16 {vr(O,16)}, {vr(VB[b],4)}, {vr(oth+8,8)}, v{vPIDX}"
        qk = f"v_mfma_f32_32x32x16_bf16 {vr(oth,16)}, {vr(KB[b],4)}, {vr(Q,4)}, {vr(C,16)}"
        pv0 = f"v_smfmac_f32_32x32x32_bf16 {vr(O,16)}, {vr(VA[b],4)}, {vr(cur,8)}, v{vPIDX}"
        rd = [f"ds_read_b128 {vr(VB[nb],4)}, v{vAVB} offset:{j*REC}",
              f"ds_read_b128 {vr(KB[nb],4)}, v{vAK} offset:{j*REC}",
              f"ds_read_b128 {vr(VA[nb],4)}, v{vAVA} offset:{j*REC}"]
        seq = e[0:2] + ["s_waitcnt lgkmcnt(0)"] + rd + [pv1] + e[2:5] + [qk] + e[5:10] + [pv0] + e[10:16]
        if j == U - 1:
            k = seq.index(pv0) + 1
            adds = [f"v_add_u32 v{vAK}, {U*REC}, v{vAK}", f"v_add_u32 v{vAVA}, {U*REC}, v{vAVA}",
                    f"v_add_u32 v{vAVB}, {U*REC}, v{vAVB}"]
            seq = seq[:k] + adds + seq[k:]
        for s in seq:
            a(s)
    a(f"s_add_u32 s{sIT}, s{sIT}, 1")
    a(f"s_cmp_lt_u32 s{sIT}, 3")
    a("s_cbranch_scc1 K2_special")
    a(f"s_cmp_lt_u32 s{sIT}, {NIT}")
    a("s_cbranch_scc1 K2_loop")

    a("s_waitcnt lgkmcnt(0)")
    a(f"v_smfmac_f32_32x32x32_bf16 {vr(O,16)}, {vr(VB[0],4)}, {vr(S1+8,8)}, v{vPIDX}")
    a("v_mov_b32 v16, 0")
    a("v_mov_b32 v17, 0")
    a("s_nop 10")
    a(f"v_rcp_f32 v18, v{O+8}")
    for i in range(4):
        a(f"v_pk_fma_f32 v[16:17], {vr(O+2*i,2)}, 0, v[16:17]")
    lo, hi = fbits(2.0 ** -32), fbits(2.0 ** 64)
    a(f"v_add_f32 v16, v16, v17")
    a(f"v_add_f32 v16, v16, v{O+8}")
    a(f"v_subrev_u32 v16, {lo:#x}, v16")
    a(f"v_cmp_lt_u32 vcc, {hi - lo:#x}, v16")
    for i in range(4):
        a(f"v_pk_mul_f32 {vr(O+2*i,2)}, {vr(O+2*i,2)}, v[18:19] op_sel_hi:[1,0]")
    a("s_cbranch_vccnz K2_unsafe")
    a.label("K2_safe")
    for i in range(4):
        a(f"v_cvt_pk_bf16_f32 v{20+i}, v{O+2*i}, v{O+2*i+1}")
    a(f"ds_write_b128 v{vAFW}, v[20:23]")
    ACC, AF, PR = 16, 64, 80
    a(f"s_cmp_lt_u32 s{sW}, 4")
    a("s_cbranch_scc1 K2_service")
    a.label("K2_join")
    for i in range(16):
        a(f"v_mov_b32 v{ACC+i}, 0")
    a(f"s_lshl_b32 s52, s{sBROW}, 13")
    a(f"s_lshl_b32 s53, s{sW}, 7")
    a("s_add_u32 s52, s52, s53")
    a(f"s_lshl_b32 s53, s{sV}, 11")
    a(f"s_add_u32 s53, s53, {L_PART}")
    a(f"v_add_u32 v32, s53, v{vL16}")
    a(f"v_add_u32 v33, {L_AFR + 4096}, v{vL16}")
    a("s_waitcnt lgkmcnt(0)")
    a("s_barrier")
    for t in range(4):
        a(f"ds_read_b128 {vr(AF+4*t,4)}, v33 offset:{t*1024}")
    a(f"s_cmp_lt_u32 s{sW}, 4")
    a("s_cbranch_scc1 K2_nopart")
    a(f"ds_read_b128 {vr(PR,4)}, v32")
    a(f"ds_read_b128 {vr(PR+4,4)}, v32 offset:1024")
    a.label("K2_nopart")
    a("s_waitcnt vmcnt(0) lgkmcnt(0)")
    for t in range(4):
        for u in range(4):
            a(f"v_smfmac_f32_16x16x64_bf16 {vr(ACC+4*u,4)}, {vr(AF+4*t,4)}, {vr(WO+(t*4+u)*8,8)}, v{vOIDX}")
    a("s_nop 4")

    def fold(acc):
        for u in range(4):
            for rr in range(2):
                a(f"v_permlane32_swap_b32 v{acc+4*u+2*rr}, v{acc+4*u+2*rr+1}")
        for u in range(4):
            for rr in range(2):
                a(f"v_add_f32 v{acc+4*u+2*rr}, v{acc+4*u+2*rr}, v{acc+4*u+2*rr+1}")

    fold(ACC)
    for rr in range(2):
        for u in range(4):
            a(f"v_fma_f32 v{PR+4*rr+u}, v{vG+rr}, v{ACC+4*u+2*rr}, v{PR+4*rr+u}")
    for rr in range(2):
        a(f"v_cvt_pk_bf16_f32 v{40+2*rr}, v{PR+4*rr}, v{PR+4*rr+1}")
        a(f"v_cvt_pk_bf16_f32 v{41+2*rr}, v{PR+4*rr+2}, v{PR+4*rr+3}")
    a(f"buffer_store_dwordx2 v[40:41], v{vEPO}, s[{OUT}:{OUT+3}], s52 offen")
    a(f"buffer_store_dwordx2 v[42:43], v{vEPO}, s[{OUT}:{OUT+3}], s52 offen offset:2048")
    a.label("K2_exit")
    a("s_endpgm")

    def wo_loads(sreg):
        for t in range(4):
            for h in range(2):
                for i in range(4):
                    r = WO + t*32 + h*16 + i*4
                    a(f"buffer_load_dwordx4 {vr(r,4)}, v{vL16}, s[{WS}:{WS+3}], s{sreg} offen offset:{i*1024}")
                if not (t == 3 and h == 1):
                    a(f"s_add_u32 s{sreg}, s{sreg}, {4096 if h == 0 else 65536 - 4096}")

    def spin(addr_off, target, tag, vt):
        a(f"v_mov_b32 v{vt}, {L_CNT}")
        a("s_mov_b32 s60, 0")
        a.label(f"K2_spin_{tag}")
        a(f"ds_read_b32 v{vt+1}, v{vt} offset:{addr_off}")
        a("s_waitcnt lgkmcnt(0)")
        a(f"v_readfirstlane_b32 s52, v{vt+1}")
        a("s_nop 0")
        a(f"s_cmp_ge_u32 s52, {target}")
        a(f"s_cbranch_scc1 K2_spun_{tag}")
        a("s_sleep 1")
        a("s_add_u32 s60, s60, 1")
        a("s_cmp_lt_u32 s60, 0x400000")
        a(f"s_cbranch_scc1 K2_spin_{tag}")
        a.label(f"K2_spun_{tag}")

    def signal(addr_off, vt):
        a(f"v_mov_b32 v{vt}, {L_CNT}")
        a(f"v_mov_b32 v{vt+1}, 1")
        a("s_mov_b64 exec, 1")
        a(f"ds_add_u32 v{vt}, v{vt+1} offset:{addr_off}")
        a("s_mov_b64 exec, -1")

    a.label("K2_special")
    a(f"s_cmp_lg_u32 s{sSLOW}, 0")
    a("s_cbranch_scc1 K2_loop")
    a(f"s_cmp_eq_u32 s{sIT}, 1")
    a("s_cbranch_scc1 K2_it1")
    a.c("iteration 2: the expert partial sums of this wave have landed -> count the arrival")
    a(f"s_cmp_eq_u32 s{sMOE}, 0")
    a("s_cbranch_scc1 K2_loop")
    a("v_mov_b32 v116, 1")
    a("v_mov_b32 v117, 0")
    a("s_waitcnt vmcnt(0)")
    a("s_mov_b64 exec, 1")
    a(f"buffer_atomic_add v116, v117, s[{DBG}:{DBG+3}], 0 offen")
    a("s_mov_b64 exec, -1")
    a("s_branch K2_loop")
    a.label("K2_it1")
    a(f"s_cmp_eq_u32 s{sMOE}, 0")
    a("s_cbranch_scc0 K2_moe")
    a("s_waitcnt vmcnt(0)")
    a("s_barrier")
    a.label("K2_pref")
    a.c("prefetch 16 output-projection operands + gate values")
    a(f"s_lshl_b32 s52, s{sBROW}, 5")
    a(f"s_add_u32 s52, s52, {WS_G}")
    a(f"buffer_load_dword v{vG}, v114, s[{WS}:{WS+3}], s52 offen")
    a(f"buffer_load_dword v{vG+1}, v114, s[{WS}:{WS+3}], s52 offen offset:8")
    a(f"s_lshl_b32 s52, s{sV}, 13")
    a(f"s_add_u32 s52, s52, {WS_WOF + 4*8192}")
    a(f"s_lshr_b32 s53, s{sW}, 2")
    a("s_lshl_b32 s53, s53, 18")
    a("s_add_u32 s52, s52, s53")
    wo_loads(52)
    a("s_branch K2_loop")

    a.label("K2_moe")
    a("s_waitcnt vmcnt(20)")
    a("s_barrier")
    a("s_setprio 3")
    a(f"s_lshl_b32 s52, s{sV}, 10")
    a(f"s_add_u32 s52, s52, {L_MOEW}")
    a(f"v_add_u32 v{TM}, s52, v{vL16}")
    a(f"v_bfe_u32 v{TM+1}, v0, 2, 2")
    a(f"v_lshrrev_b32 v{TM+2}, 4, v0")
    a(f"v_and_b32 v{TM+3}, 3, v0")
    a(f"v_lshlrev_b32 v{TM+3}, 3, v{TM+3}")
    a(f"v_lshl_add_u32 v{TM+4}, v{TM+2}, 3, v{TM+1}")
    a(f"v_lshl_add_u32 v{TM+4}, v{TM+4}, 5, v{TM+3}")
    a(f"v_add_u32 v{TM+4}, s52, v{TM+4}")
    a(f"v_lshrrev_b32 v{TM+5}, 5, v0")
    a(f"v_lshl_add_u32 v{TM+6}, v{TM+5}, 3, v{TM+1}")
    a(f"v_lshl_add_u32 v{TM+6}, v{TM+6}, 6, v{TM+3}")
    a(f"v_and_b32 v{TM+7}, 1, v{TM+2}")
    a(f"v_lshl_add_u32 v{TM+6}, v{TM+7}, 5, v{TM+6}")
    a(f"v_add_u32 v{TM+6}, s52, v{TM+6}")
    a("s_waitcnt vmcnt(12)")
    for i in range(8):
        a(f"ds_write_b128 v{TM}, {vr(LG+4*i,4)}")
        a(f"ds_read_b64_tr_b16 {vr(LG+4*i,2)}, v{TM+4}")
        a(f"ds_read_b64_tr_b16 {vr(LG+4*i+2,2)}, v{TM+4} offset:128")
        if i in (2, 5):
            a("s_waitcnt lgkmcnt(3)")
    a("s_waitcnt vmcnt(4) lgkmcnt(0)")
    for i in range(8):
        cc = "0" if i == 0 else vr(D1, 4)
        a(f"v_mfma_f32_16x16x32_bf16 {vr(D1,4)}, {vr(LG+4*i,4)}, {vr(LXS+4*i,4)}, {cc}")
    a("s_waitcnt vmcnt(0)")
    for i in range(4):
        a(f"ds_write_b128 v{TM}, {vr(LD+4*i,4)}")
        a(f"ds_read_b64_tr_b16 {vr(LD+4*i,2)}, v{TM+6}")
        a(f"ds_read_b64_tr_b16 {vr(LD+4*i+2,2)}, v{TM+6} offset:256")
    a(f"s_lshl_b32 s53, s{sV}, 6")
    a(f"s_add_u32 s53, s53, {L_HP}")
    a(f"v_lshl_add_u32 v{TM+1}, v{TM+2}, 4, s53")
    a(f"ds_write_b128 v{TM+1}, {vr(D1,4)}")
    signal(4, TM + 8)
    spin(4, 4, "L", TM + 8)
    a(f"v_and_b32 v{TM+1}, 15, v0")
    a(f"v_lshlrev_b32 v{TM+2}, 2, v{TM+1}")
    a(f"v_add_u32 v{TM+2}, {L_HP}, v{TM+2}")
    a(f"ds_read2_b32 {vr(D1,2)}, v{TM+2} offset0:0 offset1:16")
    a(f"ds_read2_b32 {vr(D1+2,2)}, v{TM+2} offset0:32 offset1:48")
    a(f"s_lshl_b32 s53, s{sV}, 5")
    a(f"s_add_u32 s53, s53, {L_HB}")
    a(f"v_lshl_add_u32 v{TM+1}, v{TM+1}, 1, s53")
    a(f"v_lshl_add_u32 v{TM+5}, v{TM+5}, 4, s53")
    a("s_waitcnt lgkmcnt(0)")
    a(f"v_add_f32 v{D1}, v{D1}, v{D1+1}")
    a(f"v_add_f32 v{D1+2}, v{D1+2}, v{D1+3}")
    a(f"v_cvt_pk_bf16_f32 v{D1}, v{D1}, v{D1+2}")
    a(f"v_lshlrev_b32 v{D1+1}, 16, v{D1}")
    a(f"v_mul_f32 v{D1+2}, {fbits(-math.log2(math.e)):#x}, v{D1+1}")
    a(f"v_exp_f32 v{D1+2}, v{D1+2}")
    a(f"v_and_b32 v{D1}, 0xffff0000, v{D1}")
    a(f"v_add_f32 v{D1+2}, 1.0, v{D1+2}")
    a(f"v_rcp_f32 v{D1+2}, v{D1+2}")
    a("s_nop 0")
    a(f"v_mul_f32 v{D1+1}, v{D1+1}, v{D1+2}")
    a(f"v_cvt_pk_bf16_f32 v{D1+1}, v{D1+1}, v{D1+1}")
    a(f"v_and_b32 v{D1+1}, 0xffff0000, v{D1+1}")
    a(f"v_mul_f32 v{D1}, v{D1}, v{D1+1}")
    a(f"v_cvt_pk_bf16_f32 v{D1}, v{D1}, v{D1}")
    a(f"ds_write_b16 v{TM+1}, v{D1}")
    a(f"ds_read_b128 {vr(D1,4)}, v{TM+5}")
    a(f"v_lshlrev_b32 v{TM+2}, 2, v0")
    a(f"s_lshl_b32 s53, s{sV}, 9")
    a(f"s_add_u32 s53, s53, {WS_YACC}")
    a("s_waitcnt lgkmcnt(0)")
    DD = [128, 144, 176, 192]
    for i in range(4):
        a(f"v_mfma_f32_32x32x16_bf16 {vr(DD[i],16)}, {vr(D1,4)}, {vr(LD+4*i,4)}, 0")
    a("s_nop 15")
    a(f"v_permlane32_swap_b32 v{DD[0]}, v{DD[1]}")
    a(f"v_permlane32_swap_b32 v{DD[2]}, v{DD[3]}")
    a("s_nop 1")
    a(f"v_mov_b32 v116, v{DD[0]}")
    a(f"v_mov_b32 v117, v{DD[2]}")
    a(f"v_mov_b32 v118, v{TM+2}")
    a(f"buffer_atomic_add_f32 v116, v118, s[{WS}:{WS+3}], s53 offen")
    a(f"buffer_atomic_add_f32 v117, v118, s[{WS}:{WS+3}], s53 offen offset:256")
    a("s_setprio 0")
    a("s_branch K2_pref")

    a.label("K2_service")
    a("s_waitcnt lgkmcnt(0)")
    signal(0, 24)
    XR = 96
    a(f"s_lshl_b32 s54, s{sBROW}, 13")
    a(f"s_lshl_b32 s53, s{sW}, 7")
    a("s_add_u32 s54, s54, s53")
    for grp in range(2):
        for rr in range(2):
            a(f"buffer_load_dwordx2 {vr(XR+4*grp+2*rr,2)}, v{vEPO}, s[{X}:{X+3}], s54 offen offset:{(512 if grp == 0 else 0) + rr*2048}")
    for i in range(32):
        a(f"v_mov_b32 v{ACC+i}, 0")
    spin(0, 4, "E", 60)
    a(f"v_add_u32 v60, {L_AFR}, v{vL16}")
    for t in range(4):
        a(f"ds_read_b128 {vr(AF+4*t,4)}, v60 offset:{t*1024}")
    a("s_waitcnt vmcnt(0) lgkmcnt(0)")
    for t in range(4):
        for u in range(4):
            a(f"v_smfmac_f32_16x16x64_bf16 {vr(ACC+4*u,4)}, {vr(AF+4*t,4)}, {vr(WO+(t*4+u)*8,8)}, v{vOIDX}")
    a(f"s_lshl_b32 s52, s{sV}, 13")
    a(f"s_add_u32 s52, s52, {WS_WOF}")
    wo_loads(52)
    BR = 48
    for grp in range(2):
        for rr in range(2):
            for h in range(2):
                src = XR + 4*grp + 2*rr + h
                a(f"v_lshlrev_b32 v{BR+8*grp+4*rr+2*h}, 16, v{src}")
                a(f"v_and_b32 v{BR+8*grp+4*rr+2*h+1}, 0xffff0000, v{src}")
    a(f"s_lshr_b32 s52, s{sIDX}, 3")
    a(f"s_cmp_eq_u32 s52, s{sBROW}")
    a("s_cbranch_scc0 K2_notowner")
    a.c("this workgroup owns the routed token: wait for all expert partial sums, then add the update")
    a("v_mov_b32 v97, 0")
    a("s_mov_b32 s60, 0")
    a.label("K2_ypoll")
    a("v_mov_b32 v96, 0")
    a("s_mov_b64 exec, 1")
    a(f"buffer_atomic_add v96, v97, s[{DBG}:{DBG+3}], 0 offen sc0")
    a("s_mov_b64 exec, -1")
    a("s_waitcnt vmcnt(0)")
    a("v_readfirstlane_b32 s52, v96")
    a("s_nop 0")
    a(f"s_cmp_ge_u32 s52, {NMOE_WAVES}")
    a("s_cbranch_scc1 K2_yready")
    a("s_sleep 8")
    a("s_add_u32 s60, s60, 1")
    a("s_cmp_lt_u32 s60, 0x100000")
    a("s_cbranch_scc1 K2_ypoll")
    a.label("K2_yready")
    YR = 96
    for i in range(8):
        a(f"v_mov_b32 v{YR+i}, 0")
    a("v_and_b32 v104, 15, v0")
    a("v_lshlrev_b32 v104, 4, v104")
    a(f"s_lshl_b32 s52, s{sW}, 8")
    a(f"s_add_u32 s52, s52, {WS_YACC}")
    for grp in range(2):
        for h in range(2):
            a(f"buffer_atomic_add_x2 {vr(YR+4*grp+2*h,2)}, v104, s[{WS}:{WS+3}], s52 offen offset:{(1024 if grp == 0 else 0) + 8*h} sc0")
    a(f"s_and_b32 s53, s{sKEY}, 0xffff0000")
    a("s_ashr_i32 s54, s53, 31")
    a("s_not_b32 s54, s54")
    a("s_or_b32 s54, s54, 0x80000000")
    a("s_xor_b32 s53, s53, s54")
    a("s_and_b32 s53, s53, 0xffff0000")
    a(f"v_mov_b32 v105, {fbits(-math.log2(math.e)):#x}")
    a("v_mul_f32 v105, s53, v105")
    a("v_exp_f32 v105, v105")
    a(f"s_and_b32 s53, s{sIDX}, 7")
    a("v_add_f32 v105, 1.0, v105")
    a("v_rcp_f32 v105, v105")
    a("s_sub_u32 s54, s53, 2")
    a("v_cmp_eq_u32 s[56:57], s53, v115")
    a("v_cvt_pk_bf16_f32 v105, v105, v105")
    a("v_cmp_eq_u32 s[58:59], s54, v115")
    a("v_and_b32 v105, 0xffff0000, v105")
    a("s_waitcnt vmcnt(0)")
    for i in range(8):
        a(f"v_cvt_pk_bf16_f32 v{YR+i}, v{YR+i}, v{YR+i}")
        a(f"v_and_b32 v{YR+i}, 0xffff0000, v{YR+i}")
        a(f"v_mul_f32 v{YR+i}, v{YR+i}, v105")
    for grp in range(2):
        for rr in range(2):
            for u in range(4):
                a(f"v_cndmask_b32 v106, 0, v{YR+4*grp+u}, s[{56+2*rr}:{57+2*rr}]")
                a(f"v_add_f32 v{BR+8*grp+4*rr+u}, v{BR+8*grp+4*rr+u}, v106")
    a.label("K2_notowner")
    a(f"v_sub_f32 v104, 1.0, v{vG}")
    a(f"v_sub_f32 v105, 1.0, v{vG+1}")
    fold(ACC)
    for grp in range(2):
        for rr in range(2):
            for u in range(4):
                a(f"v_mul_f32 v{BR+8*grp+4*rr+u}, v{104+rr}, v{BR+8*grp+4*rr+u}")
    for rr in range(2):
        for u in range(4):
            a(f"v_fmac_f32 v{BR+4*rr+u}, v{vG+rr}, v{ACC+4*u+2*rr}")
    a(f"s_lshl_b32 s53, s{sV}, 11")
    a(f"s_add_u32 s53, s53, {L_PART}")
    a(f"v_add_u32 v96, s53, v{vL16}")
    a(f"ds_write_b128 v96, {vr(BR,4)}")
    a(f"ds_write_b128 v96, {vr(BR+4,4)} offset:1024")
    a("s_waitcnt vmcnt(0)")
    for t in range(4):
        for u in range(4):
            a(f"v_smfmac_f32_16x16x64_bf16 {vr(ACC+16+4*u,4)}, {vr(AF+4*t,4)}, {vr(WO+(t*4+u)*8,8)}, v{vOIDX}")
    a(f"s_lshl_b32 s52, s{sV}, 13")
    a(f"s_add_u32 s52, s52, {WS_WOF + 4*65536}")
    wo_loads(52)
    fold(ACC + 16)
    for rr in range(2):
        for u in range(4):
            a(f"v_fma_f32 v{PR+4*rr+u}, v{vG+rr}, v{ACC+16+4*u+2*rr}, v{BR+8+4*rr+u}")
    a("s_branch K2_join")

    a.label("K2_unsafe")
    a(f"s_cmp_lg_u32 s{sSLOW}, 0")
    a("s_cbranch_scc1 K2_safe")
    a(f"s_mov_b32 s{sSLOW}, 1")
    a(f"v_mov_b32 v{vAK}, v{vL16}")
    a(f"v_mov_b32 v{O}, 0xff800000")
    a(f"s_mov_b32 s{sIT}, 0")
    a.label("K2_maxloop")
    a(f"ds_read_b128 {vr(KB[0],4)}, v{vAK}")
    a(f"v_add_u32 v{vAK}, {REC}, v{vAK}")
    a("s_waitcnt lgkmcnt(0)")
    a(f"v_mfma_f32_32x32x16_bf16 {vr(S0,16)}, {vr(KB[0],4)}, {vr(Q,4)}, 0")
    a("s_nop 15")
    for i in range(8):
        a(f"v_max3_f32 v{O}, v{S0+2*i}, v{S0+2*i+1}, v{O}")
    a(f"s_add_u32 s{sIT}, s{sIT}, 1")
    a(f"s_cmp_lt_u32 s{sIT}, 64")
    a("s_cbranch_scc1 K2_maxloop")
    a(f"v_mov_b32 v{O+1}, v{O}")
    a("s_nop 1")
    a(f"v_permlane32_swap_b32 v{O}, v{O+1}")
    a("s_nop 1")
    a(f"v_max_f32 v{O}, v{O}, v{O+1}")
    for i in range(16):
        a(f"v_sub_f32 v{C+i}, 0, v{O}")
    a("s_branch K2_restart")


HEADER = """; Kernarg layout for this problem (112 bytes, ptrs only, base s[0:1]):
;   offset  80: gate_w (512)   offset  88: d_out (1,2048,512) bf16   offset  96: d_debug   offset 104: d_ws
; @launch kernel=prep_kernel grid=(256,1,1) block=(512,1,1) lds={k1lds}
; @launch kernel=attn_kernel grid=(256,1,1) block=(512,1,1) lds={k2lds}
;
; prep_kernel : Q/K/V projections, router scores, mix gate, fragment-order copies of K, V^T and wo.
; attn_kernel : one workgroup = 8 query rows x 32 heads; softmax(QK^T)V, output projection, routed expert, mix.
;
; is then range-checked at run time (2^-32 <= sum <= 2^64, accumulators finite); a wave that sees any row outside
.amdgcn_target "amdgcn-amd-amdhsa--gfx950"
.text
"""

KD = """.amdhsa_kernel {name}
  .amdhsa_next_free_vgpr {vgpr}
  .amdhsa_next_free_sgpr {sgpr}
  .amdhsa_accum_offset {vgpr}
  .amdhsa_group_segment_fixed_size 0
  .amdhsa_kernarg_size 112
  .amdhsa_user_sgpr_count 2
  .amdhsa_user_sgpr_kernarg_segment_ptr 1
  .amdhsa_system_sgpr_workgroup_id_x 1
.end_amdhsa_kernel
"""


def generate(opt):
    out = HEADER.format(k1lds=K1_LDS, k2lds=K2_LDS)
    for name, fn in (("prep_kernel", gen_k1), ("attn_kernel", gen_k2)):
        a = Asm()
        fn(a, opt)
        out += f".globl {name}\n.p2align 8\n.type {name},@function\n" + a.text()
    out += '.section .rodata,"a"\n.p2align 6\n'
    out += KD.format(name="prep_kernel", vgpr=128, sgpr=64)
    out += ".p2align 6\n"
    out += KD.format(name="attn_kernel", vgpr=256, sgpr=64)
    return out


if __name__ == "__main__":
    opt = {}
    path = f"cdna_kernels/{NAME}.s"
    for arg in sys.argv[1:]:
        k, v = arg.split("=")
        if k == "out":
            path = v
        else:
            opt[k] = int(v)
    open(path, "w").write(generate(opt))
    print("wrote", path)
```

```python
import sys, struct, math

NAME = "gated_mix__grouped_kv_mqa__moe_arch_mod__prompt"

WS_QF = 0x000000
WS_KV = 0x200000
WS_WOF = 0x220000
WS_G = 0x2A0000
WS_CAND = 0x2A2000
WS_YACC = 0x2A4000
NREP = 16
WS_YFLG = WS_YACC + NREP * 2048
WS_END = WS_YFLG + 2048

KA = dict(x=0, wq=8, wk=16, wv=24, wo=32, bx=40, wr=48, wg=56, wu=64, wd=72, gw=80, out=88, dbg=96, ws=104)


def fbits(f):
    return struct.unpack("<I", struct.pack("<f", f))[0]


class Asm:
    def __init__(self):
        self.L = []

    def __call__(self, s):
        for line in s.strip("\n").split("\n"):
            line = line.strip()
            if not line:
                continue
            if line.endswith(":") or line.startswith("."):
                self.L.append(line)
            else:
                self.L.append("    " + line)

    def label(self, n):
        self.L.append(n + ":")

    def c(self, s):
        self.L.append("    ; " + s)

    def text(self):
        return "\n".join(self.L) + "\n"


STAMP = [False]
WS_STAMP = 0x300000


def stamp(a, i):
    if STAMP[0]:
        a(f"s_memtime s[{64+2*i}:{65+2*i}]")
        a("s_waitcnt lgkmcnt(0)")


def stamp_flush(a, ws, wave, base, n=16):
    if STAMP[0]:
        a(f"s_memrealtime s[{64+2*15}:{65+2*15}]")
        a("s_waitcnt lgkmcnt(0)")
        a("s_mov_b64 exec, 1")
        a(f"s_lshl_b32 s96, s2, 3")
        a(f"s_add_u32 s96, s96, s{wave}")
        a(f"s_lshl_b32 s96, s96, 6")
        a(f"s_add_u32 s96, s96, {base}")
        a("v_mov_b32 v1, 0")
        for i in range(n):
            a(f"v_mov_b32 v2, s{64+2*i}")
            a(f"buffer_store_dword v2, v1, s[{ws}:{ws+3}], s96 offen offset:{4*i}")


def stamp_init(a):
    if STAMP[0]:
        for i in range(16):
            a(f"s_mov_b64 s[{64+2*i}:{65+2*i}], 0")
        a(f"s_memrealtime s[{64+2*14}:{65+2*14}]")
        a("s_memtime s[64:65]")


def vr(a, n):
    return f"v[{a}:{a+n-1}]" if n > 1 else f"v{a}"


def srd(a, base, key, nbytes):
    a(f"s_load_dwordx2 s[{base}:{base+1}], s[0:1], {KA[key]}")
    a(f"s_mov_b32 s{base+2}, {nbytes}")
    a(f"s_mov_b32 s{base+3}, 0x20000")


K1_LDS = 147456
LX, LW, LE = 0, 65536, 131072


def gen_k1(a, opt):
    X, WQ, EX, WO, WR, GW, WS = 8, 12, 16, 20, 24, 28, 32
    a.label("prep_kernel")
    a("s_cmp_ge_u32 s2, 256")
    a("s_cbranch_scc1 K1_exit")
    stamp_init(a)
    srd(a, X, "x", 2097152)
    srd(a, WQ, "wq", 524288)
    a(f"s_load_dwordx4 s[36:39], s[0:1], {KA['wk']}")
    srd(a, WO, "wo", 524288)
    srd(a, WR, "wr", 1024)
    srd(a, GW, "gw", 1024)
    srd(a, WS, "ws", 0x400000 if STAMP[0] else WS_END)
    a(f"s_mov_b32 s{EX+2}, 16384")
    a(f"s_mov_b32 s{EX+3}, 0x20000")
    a("v_lshrrev_b32 v1, 6, v0")
    a("v_and_b32 v0, 63, v0")
    a("v_readfirstlane_b32 s40, v1")
    a("s_and_b32 s41, s2, 7")
    a("s_lshr_b32 s42, s2, 3")
    a("s_and_b32 s43, s42, 7")
    a("s_lshr_b32 s42, s42, 3")
    a("s_lshl_b32 s41, s41, 2")
    a("s_add_u32 s42, s42, s41")
    a("s_add_u32 s56, s42, s43")
    a("v_lshrrev_b32 v2, 4, v0")
    a("v_and_b32 v3, 15, v0")
    a("v_lshlrev_b32 v4, 4, v0")
    a("s_and_b32 s44, s40, 3")
    a("s_lshl_b32 s45, s44, 2")
    a("v_add_u32 v5, s45, v2")
    a("v_xor_b32 v5, v5, v3")
    a("v_lshlrev_b32 v5, 4, v5")
    a("v_lshl_add_u32 v5, v2, 10, v5")
    a("v_and_b32 v6, 1, v2")
    a("v_lshlrev_b32 v6, 2, v6")
    a("v_and_b32 v7, 7, v0")
    a("v_xor_b32 v6, v6, v7")
    a("v_lshlrev_b32 v6, 4, v6")
    a("v_lshrrev_b32 v8, 3, v0")
    a("v_lshl_add_u32 v6, v8, 10, v6")
    a("v_lshlrev_b32 v9, 3, v3")
    a("v_lshl_add_u32 v9, v2, 13, v9")
    a("v_add_u32 v10, 4096, v9")
    a("s_lshl_b32 s46, s44, 8")
    a("v_lshl_add_u32 v11, v0, 2, s46")
    a("s_lshl_b32 s47, s42, 16")
    a("s_lshl_b32 s48, s44, 12")
    a("s_add_u32 s47, s47, s48")
    a("s_lshl_b32 s48, s44, 13")
    a("s_lshl_b32 s49, s43, 7")
    a("s_add_u32 s48, s48, s49")
    a("s_lshl_b32 s49, s44, 10")
    a("s_waitcnt lgkmcnt(0)")
    stamp(a, 1)
    a("s_cmp_eq_u32 s43, 0")
    a(f"s_cselect_b64 s[{EX}:{EX+1}], s[36:37], s[38:39]")
    a("s_cmp_lt_u32 s40, 4")
    a("s_cbranch_scc1 K1_main")
    a("s_cmp_lt_u32 s43, 2")
    a("s_cbranch_scc1 K1_pre_kv")
    a("s_cmp_eq_u32 s43, 2")
    a("s_cbranch_scc1 K1_pre_rg")
    a("s_cmp_eq_u32 s43, 3")
    a("s_cbranch_scc0 K1_dma")
    a.c("wo job: job = rb*4+v ; t = job>>4 ; wn = (job>>1)&7 ; hh = job&1")
    a("s_lshl_b32 s50, s42, 2")
    a("s_add_u32 s50, s50, s44")
    a("s_lshr_b32 s51, s50, 4")
    a("s_lshl_b32 s51, s51, 16")
    a("s_and_b32 s52, s50, 1")
    a("s_lshl_b32 s52, s52, 15")
    a("s_add_u32 s51, s51, s52")
    a("s_bfe_u32 s52, s50, 0x30001")
    a("s_lshl_b32 s52, s52, 7")
    a("s_add_u32 s51, s51, s52")
    for dd in range(8):
        a(f"buffer_load_dwordx2 {vr(64+2*dd,2)}, v{9+(dd>>2)}, s[{WO}:{WO+3}], s51 offen offset:{(dd&3)*1024}")
    a("s_branch K1_dma")
    a.label("K1_pre_rg")
    a(f"buffer_load_dword v64, v11, s[{WR}:{WR+3}], 0 offen")
    a(f"buffer_load_dword v65, v11, s[{GW}:{GW+3}], 0 offen")
    a("s_branch K1_dma")
    a.label("K1_pre_kv")
    a("s_lshl_b32 s50, s44, 10")
    for c in range(4):
        a(f"s_add_u32 s51, s56, {c}")
        a("s_and_b32 s51, s51, 3")
        a("s_lshl_b32 s51, s51, 12")
        a(f"s_add_u32 m0, s50, {LE + c*4096}")
        a("s_add_u32 s51, s51, s50")
        a(f"buffer_load_dwordx4 v4, s[{EX}:{EX+3}], s51 offen lds")
    a.label("K1_dma")

    def dma_chunk(c):
        a(f"s_add_u32 s50, s56, {c}")
        a("s_and_b32 s50, s50, 3")
        a("s_lshl_b32 s51, s50, 8")
        a("s_add_u32 s51, s51, s47")
        a("s_lshl_b32 s52, s50, 17")
        a("s_add_u32 s52, s52, s48")
        for e in range(4):
            a(f"s_add_u32 m0, s49, {LX + c*16384 + e*4096}")
            a("s_nop 0" if e == 0 else "s_add_u32 s52, s52, 32768")
            a(f"buffer_load_dwordx4 v5, s[{X}:{X+3}], s51 offen lds")
            a(f"s_add_u32 m0, s49, {LW + c*16384 + e*4096}")
            a("s_add_u32 s51, s51, 16384")
            a(f"buffer_load_dwordx4 v6, s[{WQ}:{WQ+3}], s52 offen lds")

    for c in range(3):
        dma_chunk(c)
    a("s_branch K1_side")

    a.label("K1_main")
    a.c("main waves: a = w&1 (row half), u = w>>1 (column half)")
    a("s_and_b32 s50, s40, 1")
    a("s_lshr_b32 s51, s40, 1")
    a("v_and_b32 v12, 31, v0")
    a("v_lshrrev_b32 v13, 5, v0")
    a("s_lshl_b32 s52, s50, 13")
    a("v_lshl_add_u32 v14, v12, 8, s52")
    a("v_xor_b32 v15, v13, v3")
    for s in range(8):
        a(f"v_xor_b32 v{16+s}, {2*s}, v15")
        a(f"v_lshl_add_u32 v{16+s}, v{16+s}, 4, v14")
    a("v_bfe_u32 v24, v0, 2, 2")
    a("v_lshl_add_u32 v25, v13, 3, v24")
    a("v_and_b32 v26, 3, v0")
    a("v_lshlrev_b32 v26, 3, v26")
    a("v_and_b32 v27, 1, v2")
    a("v_lshl_add_u32 v26, v27, 5, v26")
    a("s_lshl_b32 s52, s51, 6")
    a("v_add_u32 v26, s52, v26")
    a("v_lshrrev_b32 v27, 1, v24")
    a("v_lshlrev_b32 v27, 6, v27")
    a("v_xor_b32 v26, v26, v27")
    a("v_lshl_add_u32 v24, v25, 7, v26")
    a(f"v_add_u32 v24, {LW}, v24")
    a("v_lshrrev_b32 v25, 3, v12")
    a("v_lshlrev_b32 v25, 13, v25")
    a("v_lshl_add_u32 v25, v13, 9, v25")
    a("v_lshl_add_u32 v25, v7, 4, v25")
    a("s_lshl_b32 s52, s42, 16")
    a("s_lshl_b32 s53, s50, 15")
    a("s_add_u32 s52, s52, s53")
    a("s_lshl_b32 s53, s43, 10")
    a("s_add_u32 s52, s52, s53")
    a("s_lshl_b32 s53, s51, 8")
    a("s_add_u32 s52, s52, s53")
    ACC = 32
    FB, FA = 48, 80
    first = True
    for c in range(4):
        stamp(a, 3 + 2*c)
        a("s_barrier")
        stamp(a, 4 + 2*c)
        def rd(s):
            a(f"ds_read_b128 {vr(FB+4*s,4)}, v{16+s} offset:{c*16384}")
            a(f"ds_read_b64_tr_b16 {vr(FA+4*s,2)}, v24 offset:{c*16384 + s*2048}")
            a(f"ds_read_b64_tr_b16 {vr(FA+4*s+2,2)}, v24 offset:{c*16384 + s*2048 + 512}")
        for s in range(4):
            rd(s)
        for s in range(8):
            a(f"s_waitcnt lgkmcnt({min(9, 3*(7-s))})")
            cc = "0" if first else vr(ACC, 16)
            a(f"v_mfma_f32_32x32x16_bf16 {vr(ACC,16)}, {vr(FA+4*s,4)}, {vr(FB+4*s,4)}, {cc}")
            first = False
            if s < 4:
                rd(s + 4)
    a("s_nop 11")
    for i in range(8):
        a(f"v_cvt_pk_bf16_f32 v{48+i}, v{ACC+2*i}, v{ACC+2*i+1}")
    a(f"buffer_store_dwordx4 v[48:51], v25, s[{WS}:{WS+3}], s52 offen")
    a(f"buffer_store_dwordx4 v[52:55], v25, s[{WS}:{WS+3}], s52 offen offset:128")
    stamp(a, 11)
    if STAMP[0]:
        a("s_waitcnt vmcnt(0)")
    stamp(a, 12)
    stamp_flush(a, WS, 40, WS_STAMP)
    a("s_endpgm")

    a.label("K1_side")
    a("s_cmp_lt_u32 s43, 3")
    a("s_cbranch_scc1 K1_side_mm")
    a("s_waitcnt vmcnt(16)")
    a("s_barrier")
    dma_chunk(3)
    for n in (16, 8, 0):
        a(f"s_waitcnt vmcnt({n})")
        a("s_barrier")
    a("s_cmp_eq_u32 s43, 3")
    a("s_cbranch_scc0 K1_zero")
    a.c("wo job: 8x4 block per lane -> four 16-byte fragments")
    a("s_mov_b32 s54, 0x05040100")
    a("s_mov_b32 s55, 0x07060302")
    pairs = [(0, 1), (4, 5), (2, 3), (6, 7)]
    for u in range(4):
        for i, (d0, d1) in enumerate(pairs):
            a(f"v_perm_b32 v{80+4*u+i}, v{64+2*d1+(u>>1)}, v{64+2*d0+(u>>1)}, s{54+(u&1)}")
    a("s_lshl_b32 s50, s42, 2")
    a("s_add_u32 s50, s50, s44")
    a("s_lshr_b32 s51, s50, 1")
    a("s_lshl_b32 s51, s51, 13")
    a("s_and_b32 s52, s50, 1")
    a("s_lshl_b32 s52, s52, 10")
    a("s_add_u32 s51, s51, s52")
    a(f"s_add_u32 s51, s51, {WS_WOF}")
    a("s_add_u32 s52, s51, 4096")
    for u in range(4):
        a(f"buffer_store_dwordx4 {vr(80+4*u,4)}, v4, s[{WS}:{WS+3}], s{51+(u>>1)} offen offset:{(u&1)*2048}")
    a("s_endpgm")
    a.label("K1_zero")
    a("s_cmp_eq_u32 s43, 4")
    a("s_cbranch_scc0 K1_exit")
    a("s_lshl_b32 s50, s42, 2")
    a("s_add_u32 s50, s50, s44")
    a(f"s_cmp_lt_u32 s50, {NREP * 2 + 2}")
    a("s_cbranch_scc0 K1_exit")
    for i in range(4):
        a(f"v_mov_b32 v{64+i}, 0")
    a("s_lshl_b32 s50, s50, 10")
    a(f"s_add_u32 s51, s50, {WS_YACC}")
    a(f"buffer_store_dwordx4 v[64:67], v4, s[{WS}:{WS+3}], s51 offen sc1")
    a("s_endpgm")

    a.label("K1_side_mm")
    a("s_lshl_b32 s52, s44, 12")
    a("v_lshl_add_u32 v14, v3, 8, s52")
    a("v_xor_b32 v15, v2, v3")
    for s in range(4):
        a(f"v_xor_b32 v{16+s}, {4*s}, v15")
        a(f"v_lshl_add_u32 v{16+s}, v{16+s}, 4, v14")
    a("v_bfe_u32 v24, v0, 2, 2")
    a("v_lshl_add_u32 v24, v2, 3, v24")
    a("v_and_b32 v26, 3, v0")
    a("v_lshlrev_b32 v26, 3, v26")
    a("v_lshl_add_u32 v24, v24, 5, v26")
    a(f"v_add_u32 v24, {LE}, v24")
    a("s_cmp_eq_u32 s43, 2")
    a("s_cbranch_scc0 K1_mm_go")
    a.c("router/gate: column 0 = w_r, column 1 = gate_w of the extra matrix (other columns unused)")
    a("v_lshlrev_b32 v27, 4, v11")
    a("s_lshl_b32 s54, s56, 12")
    a("v_subrev_u32 v27, s54, v27")
    a("v_and_b32 v27, 16383, v27")
    a(f"v_add_u32 v27, {LE}, v27")
    a("s_mov_b32 s54, 0x05040100")
    a("s_mov_b32 s55, 0x07060302")
    a("s_waitcnt vmcnt(24)")
    a("v_perm_b32 v66, v65, v64, s54")
    a("v_perm_b32 v67, v65, v64, s55")
    a("ds_write_b32 v27, v66")
    a("ds_write_b32 v27, v67 offset:32")
    a("s_waitcnt lgkmcnt(0)")
    a.label("K1_mm_go")
    D1, D2, FB, FA = 32, 36, 48, 80
    a("s_waitcnt vmcnt(16)")
    a("s_barrier")
    dma_chunk(3)
    first = True
    for c in range(4):
        if c != 1:
            a(f"s_waitcnt vmcnt({[16, 0, 8, 0][c]})")
            a("s_barrier")
        for s in range(4):
            a(f"ds_read_b128 {vr(FB+4*s,4)}, v{16+s} offset:{c*16384}")
            a(f"ds_read_b64_tr_b16 {vr(FA+4*s,2)}, v24 offset:{c*4096 + s*1024}")
            a(f"ds_read_b64_tr_b16 {vr(FA+4*s+2,2)}, v24 offset:{c*4096 + s*1024 + 128}")
        for s in range(4):
            a(f"s_waitcnt lgkmcnt({3*(3-s)})")
            c1 = "0" if first else vr(D1, 4)
            c2 = "0" if first else vr(D2, 4)
            a(f"v_mfma_f32_16x16x32_bf16 {vr(D1,4)}, {vr(FA+4*s,4)}, {vr(FB+4*s,4)}, {c1}")
            a(f"v_mfma_f32_16x16x32_bf16 {vr(D2,4)}, {vr(FB+4*s,4)}, {vr(FA+4*s,4)}, {c2}")
            first = False
    a("s_lshl_b32 s50, s42, 1")
    a("s_lshr_b32 s51, s44, 1")
    a("s_add_u32 s50, s50, s51")
    a("s_lshl_b32 s50, s50, 11")
    a(f"s_add_u32 s50, s50, {WS_KV}")
    a("s_and_b32 s51, s44, 1")
    a("v_and_b32 v12, 1, v2")
    a("v_lshrrev_b32 v13, 1, v2")
    a("v_lshlrev_b32 v14, 4, v3")
    a("s_cmp_eq_u32 s43, 1")
    a("s_cbranch_scc1 K1_st_v")
    a("s_cmp_eq_u32 s43, 2")
    a("s_cbranch_scc1 K1_st_rg")
    a.c("K fragment store")
    a("s_lshl_b32 s51, s51, 8")
    a("s_add_u32 s50, s50, s51")
    a("v_lshl_add_u32 v14, v12, 9, v14")
    a("v_lshl_add_u32 v14, v13, 3, v14")
    for i in range(4):
        a(f"v_mul_f32 v{D1+i}, {fbits(0.25 * math.log2(math.e)):#x}, v{D1+i}")
    a(f"v_cvt_pk_bf16_f32 v40, v{D1}, v{D1+1}")
    a(f"v_cvt_pk_bf16_f32 v41, v{D1+2}, v{D1+3}")
    a(f"buffer_store_dwordx2 v[40:41], v14, s[{WS}:{WS+3}], s50 offen")
    a("s_endpgm")
    a.label("K1_st_v")
    a("s_lshl_b32 s51, s51, 8")
    a("s_add_u32 s50, s50, s51")
    a("v_lshl_add_u32 v14, v13, 9, v14")
    a("v_lshl_add_u32 v14, v12, 3, v14")
    a(f"v_cvt_pk_bf16_f32 v40, v{D2}, v{D2+1}")
    a(f"v_cvt_pk_bf16_f32 v41, v{D2+2}, v{D2+3}")
    a(f"buffer_store_dwordx2 v[40:41], v14, s[{WS}:{WS+3}], s50 offen offset:1024")
    a("s_endpgm")
    a.label("K1_st_rg")
    a.c("lanes 0..15: D1[0] = router score, D1[1] = gate logit of token rb*64+16v+lane")
    a("s_lshl_b32 s50, s42, 6")
    a("s_lshl_b32 s51, s44, 4")
    a("s_add_u32 s50, s50, s51")
    a(f"v_cvt_pk_bf16_f32 v40, v{D1}, v{D1+1}")
    a("v_and_b32 v41, 0xffff0000, v40")
    a(f"v_mul_f32 v41, {fbits(-math.log2(math.e)):#x}, v41")
    a("v_exp_f32 v41, v41")
    a("v_lshlrev_b32 v42, 16, v40")
    a("v_add_f32 v41, 1.0, v41")
    a("v_rcp_f32 v41, v41")
    a("v_ashrrev_i32 v43, 31, v42")
    a("v_or_b32 v43, 0x80000000, v43")
    a("v_cvt_pk_bf16_f32 v41, v41, v41")
    a("v_xor_b32 v42, v42, v43")
    a("v_and_b32 v42, 0xffff0000, v42")
    a("v_and_b32 v41, 0xffff0000, v41")
    a("s_sub_u32 s51, 2047, s50")
    a("v_sub_u32 v43, s51, v0")
    a("v_or_b32 v42, v42, v43")
    a("v_lshlrev_b32 v44, 2, v0")
    a("s_lshl_b32 s51, s50, 2")
    a(f"s_add_u32 s51, s51, {WS_G}")
    for sh in (1, 2, 4, 8):
        a(f"v_max_u32_dpp v42, v42, v42 row_shr:{sh} row_mask:0xf bank_mask:0xf")
        a("s_nop 1")
    a("s_mov_b64 exec, 0xffff")
    a(f"buffer_store_dword v41, v44, s[{WS}:{WS+3}], s51 offen")
    a("s_lshr_b32 s50, s50, 2")
    a(f"s_add_u32 s50, s50, {WS_CAND - 60}")
    a("s_mov_b64 exec, 0x8000")
    a(f"buffer_store_dword v42, v44, s[{WS}:{WS+3}], s50 offen")
    a.label("K1_exit")
    a("s_endpgm")


PREC = 2560
WREC = 8 * PREC
L_Q = 0
L_PART = 8192
L_AFR = L_PART + 4 * WREC
L_FLG = L_AFR + 8192
L_MAX = L_FLG + 256
L_MOEW = L_MAX + 1024
L_HP = L_MOEW + 4096
L_HB = L_HP + 256
L_Y = L_HB + 128
K2_LDS = L_Y + 2048
NMOE_WAVES = 112 * 4
LOG2E = math.log2(math.e)


def gen_k2(a, opt):
    LOOP = 0
    NUP = opt.get("nup", 6)
    X, WS, OUT, DBG, MW, WD = 8, 12, 16, 20, 24, 28
    sW, sBROW, sIDX, sSLOW, sMOE, sV, sSL, sKEY, sROT, sQB, sKV, sBAD = 40, 41, 42, 44, 45, 46, 47, 48, 49, 43, 61, 62
    vL16, vPIDX, Z = 1, 5, 6
    Q, O, S0, S1, K, V = 8, 16, 32, 48, 64, 128
    vQA = 2
    a.label("attn_kernel")
    a("s_cmp_ge_u32 s2, 256")
    a("s_cbranch_scc1 K2_exit")
    stamp_init(a)
    a(f"s_load_dwordx2 s[{WS}:{WS+1}], s[0:1], {KA['ws']}")
    a(f"s_load_dwordx2 s[{X}:{X+1}], s[0:1], {KA['x']}")
    a(f"s_load_dwordx2 s[{OUT}:{OUT+1}], s[0:1], {KA['out']}")
    a(f"s_load_dwordx4 s[32:35], s[0:1], {KA['wg']}")
    a(f"s_load_dwordx2 s[{WD}:{WD+1}], s[0:1], {KA['wd']}")
    for r, n in ((WS, 0x400000 if STAMP[0] else WS_END), (X, 2097152), (OUT, 2097152), (WD, 1835008), (MW, 1835008)):
        a(f"s_mov_b32 s{r+2}, {n}")
        a(f"s_mov_b32 s{r+3}, 0x20000")
    a("v_lshrrev_b32 v12, 6, v0")
    a("v_and_b32 v0, 63, v0")
    a(f"v_readfirstlane_b32 s{sW}, v12")
    a(f"v_lshlrev_b32 v{vL16}, 4, v0")
    a("s_and_b32 s50, s2, 7")
    a("s_lshr_b32 s51, s2, 3")
    a(f"s_lshl_b32 s{sBROW}, s50, 5")
    a(f"s_add_u32 s{sBROW}, s{sBROW}, s51")
    a(f"s_and_b32 s{sROT}, s51, 7")
    a(f"s_and_b32 s{sV}, s{sW}, 3")
    a(f"s_lshl_b32 s{sQB}, s{sBROW}, 13")
    a(f"s_mov_b32 s{sSLOW}, 0")
    a(f"s_cmp_ge_u32 s{sW}, 4")
    a("s_cbranch_scc1 K2_service")

    a("s_lshl_b32 s52, s51, 12")
    a(f"s_lshl_b32 s53, s{sV}, 15")
    a(f"s_add_u32 s{sKV}, s52, s53")
    a(f"s_lshl_b32 s52, s{sROT}, 10")
    a(f"s_add_u32 s52, s52, s{sQB}")
    a(f"s_mul_i32 s54, s{sV}, {WREC}")
    a("s_mov_b32 m0, s54")
    a(f"v_mov_b32 v{vQA}, v{vL16}")
    a("v_mov_b32 v3, 0")
    a(f"v_mov_b32 v{vPIDX}, 0xdddd")
    a("v_and_b32 v14, 11, v0")
    a("v_cmp_eq_u32 vcc, 0, v14")
    a("v_mov_b32 v13, 0x3f803f80")
    a(f"v_mov_b64 {vr(Z,2)}, 0")
    a("v_cndmask_b32 v14, 0, v13, vcc")
    a("v_cndmask_b32 v15, 0, v13, vcc")
    for j in range(8):
        for i in range(2):
            a(f"v_mov_b64 {vr(V+8*j+4+2*i,2)}, v[14:15]")
    a("s_waitcnt lgkmcnt(0)")
    stamp(a, 1)
    a(f"buffer_load_dwordx4 {vr(Q,4)}, v{vL16}, s[{WS}:{WS+3}], s52 offen")

    def kvload(j):
        L = []
        if j % 2 == 0:
            L += [f"s_and_b32 s{sKV}, s{sKV}, 0x1ffff", f"s_add_u32 s53, s{sKV}, {WS_KV}", f"s_add_u32 s{sKV}, s{sKV}, 4096"]
        L += [f"buffer_load_dwordx4 {vr(K+4*j,4)}, v{vL16}, s[{WS}:{WS+3}], s53 offen offset:{(j&1)*2048}",
              f"buffer_load_dwordx4 {vr(V+8*j,4)}, v{vL16}, s[{WS}:{WS+3}], s53 offen offset:{(j&1)*2048+1024}"]
        return L

    for j in range(NUP):
        for x in kvload(j):
            a(x)
    for j in range(8, 16):
        for i in range(2):
            a(f"v_mov_b64 {vr(V+8*j+4+2*i,2)}, v[14:15]")
    for i in range(8):
        a(f"v_mov_b64 {vr(O+2*i,2)}, 0")
    stamp(a, 2)
    a(f"s_waitcnt vmcnt({2*NUP - 1})")
    stamp(a, 3)
    a(f"v_mfma_f32_32x32x16_bf16 {vr(S0,16)}, {vr(K,4)}, {vr(Q,4)}, 0")
    a("s_nop 11")

    def pv(j, half, buf):
        return f"v_smfmac_f32_32x32x32_bf16 {vr(O,16)}, {vr(V+8*j+4*half,4)}, {vr(buf+8*half,8)}, v{vPIDX}"

    def publish(t):
        return [f"ds_write_addtid_b32 v{O+r} offset:{L_PART + t*PREC + r*256}" for r in range(9)]

    def flag(t):
        return f"ds_write_addtid_b32 v{vPIDX} offset:{L_PART + t*PREC + 2304}"

    def coltile(t, first=False, last=False, rel=False):
        tp = 0 if rel else t - 1
        for j in range(16):
            cur, oth = (S0, S1) if j % 2 == 0 else (S1, S0)
            e = [f"v_exp_f32 v{cur+i}, v{cur+i}" for i in range(16)]
            qk = [f"v_mfma_f32_32x32x16_bf16 {vr(oth,16)}, {vr(K+4*((j+1)&15),4)}, {vr(Q,4)}, 0"]
            if last and j == 15:
                qk = []
            pv1 = [pv((j - 1) & 15, 1, oth)]
            pv0 = [pv(j, 0, cur)]
            pre, post, late = [], [], []
            if first:
                if j == 0:
                    pv1 = []
                issued = min(16, NUP + j)
                need = 2 * (j + 1) + 1 if j < 15 else 32
                pre = [f"s_waitcnt vmcnt({2*issued - need})"]
                post = [f"v_permlane16_swap_b32 v{V+8*j+i}, v{V+8*j+4+i}" for i in range(4)]
                if NUP + j < 16:
                    late = kvload(NUP + j)
                if NUP + j == 16:
                    late = ["s_barrier"]
            if j == 14 and not last:
                post = post + [f"ds_read_b128 {vr(Q,4)}, v{vQA} offset:{(1 if rel else t + 1)*1024}"]
            if j == 15 and not last:
                pre = pre + ["s_waitcnt lgkmcnt(0)"]
            if not first and j == 0:
                seq = e[0:2] + pv1 + e[2:5] + qk + e[5:14] + publish(tp) + \
                    [f"v_mfma_f32_32x32x8_bf16 {vr(O,16)}, {vr(Z,2)}, {vr(Z,2)}, 0"] + e[14:16]
            elif not first and j == 1:
                seq = e[0:2] + [pv(0, 0, oth)] + e[2:5] + pv1 + e[5:8] + qk + \
                    [flag(tp)] + e[8:11] + pv0 + e[11:16] + ["s_nop 1"]
            else:
                seq = e[0:2] + pv1 + e[2:5] + pre + qk + post + e[5:10] + pv0 + e[10:13] + late + e[13:16]
            if opt.get("fine") and t == 3 and j in (0, 2, 4, 8, 14):
                stamp(a, {0: 6, 2: 7, 4: 8, 8: 9, 14: 10}[j])
            if opt.get("fine") and t == 4 and j == 0:
                stamp(a, 11)
            for x in seq:
                a(x)

    coltile(0, first=True)
    stamp(a, 4)
    if LOOP:
        a("s_mov_b32 s55, 1")
        a(f"v_add_u32 v{vQA}, 1024, v{vQA}")
        a(".p2align 6")
        a.label("K2_cloop")
        coltile(1, rel=True)
        a(f"s_add_u32 m0, m0, {PREC}")
        a(f"v_add_u32 v{vQA}, 1024, v{vQA}")
        a("s_add_u32 s55, s55, 1")
        a("s_cmp_lt_u32 s55, 8")
        a("s_cbranch_scc1 K2_cloop")
        a(pv(15, 1, S1))
        a("s_nop 11")
        for x in publish(0) + [flag(0)]:
            a(x)
    else:
        for t in range(1, 8):
            coltile(t, last=(t == 7))
        a("s_nop 1")
        a(pv(15, 1, S1))
        a("s_nop 11")
        for x in publish(7) + [flag(7)]:
            a(x)
    stamp(a, 5)
    a.label("K2_final")
    a(f"v_mov_b32 v13, {L_FLG}")
    a("s_waitcnt lgkmcnt(0)")
    a("s_barrier")
    a("ds_read_b32 v14, v13 offset:48")
    a("s_waitcnt lgkmcnt(0)")
    a("v_readfirstlane_b32 s53, v14")
    a("s_nop 0")
    a(f"s_cmp_gt_u32 s53, s{sSLOW}")
    a("s_cbranch_scc1 K2_unsafe")
    stamp(a, 12)
    if STAMP[0]:
        a("s_waitcnt vmcnt(0)")
    stamp(a, 13)
    stamp_flush(a, WS, sW, WS_STAMP + 0x20000)
    a.label("K2_exit")
    a("s_endpgm")

    vOIDX, vEPO, vQ0, vONE, vFA, vF1, vRS, vFE = 2, 3, 4, 5, 6, 7, 8, 111
    G, TT = 10, 12
    ACC, PR, RAW, AF, XR, YR = 16, 48, 64, 104, 112, 120
    BUF = [128, 192]
    a.label("K2_service")
    a("s_setprio 2")
    a(f"s_mul_i32 s{sSL}, s50, 14")
    a(f"s_add_u32 s{sSL}, s{sSL}, s51")
    a("s_cmp_lt_u32 s51, 14")
    a(f"s_cselect_b32 s{sMOE}, {0 if opt.get('abl', 0) & 4 else 1}, 0")
    clear_flags(a)
    a("v_and_b32 v14, 8, v0")
    a("v_cmp_ne_u32 vcc, 0, v14")
    a("v_mov_b32 v14, 0x4444")
    a("v_mov_b32 v15, 0xeeee")
    a(f"v_mov_b32 v{vONE}, 1")
    a(f"v_cndmask_b32 v{vOIDX}, v14, v15, vcc")
    a("v_lshrrev_b32 v13, 5, v0")
    a("v_bfe_u32 v14, v0, 4, 1")
    a(f"v_lshl_add_u32 v{vQ0}, v14, 2, v13")
    a("v_and_b32 v14, 15, v0")
    a("v_lshlrev_b32 v14, 3, v14")
    a(f"v_lshl_add_u32 v{vEPO}, v{vQ0}, 10, v14")
    a("v_and_b32 v14, 3, v0")
    a(f"v_mul_u32_u24 v{vFA}, {WREC}, v14")
    a(f"v_add_u32 v{vFA}, {L_PART + 2304}, v{vFA}")
    a("v_lshlrev_b32 v14, 2, v14")
    a(f"v_add_u32 v{vFE}, {L_FLG}, v14")
    a(f"v_mov_b32 v{vF1}, {L_FLG}")
    a("v_bfe_u32 v13, v0, 3, 1")
    a("v_lshrrev_b32 v14, 4, v0")
    a("v_lshl_add_u32 v13, v13, 2, v14")
    a("v_and_b32 v14, 7, v0")
    a("v_lshl_add_u32 v13, v13, 3, v14")
    a("v_lshlrev_b32 v13, 2, v13")
    a(f"v_add_u32 v{vRS}, {L_PART}, v13")
    a(f"v_add_u32 v110, {L_PART + 2*WREC}, v13")
    a("v_lshlrev_b32 v12, 3, v0")
    a(f"s_mov_b32 s52, {WS_CAND}")
    a(f"s_lshl_b32 s53, s{sV}, 1")
    a(f"s_add_u32 s54, s53, s{sROT}")
    a(f"s_lshl_b32 s53, s53, 10")
    a("s_waitcnt lgkmcnt(0)")
    stamp(a, 1)
    a(f"buffer_load_dwordx2 v[14:15], v12, s[{WS}:{WS+3}], s52 offen")
    for e in range(2):
        a(f"s_add_u32 s55, s54, {e}")
        a("s_and_b32 s55, s55, 7")
        a("s_lshl_b32 s55, s55, 10")
        a(f"s_add_u32 m0, s53, {L_Q + e*1024}")
        a(f"s_add_u32 s55, s55, s{sQB}")
        a(f"buffer_load_dwordx4 v{vL16}, s[{WS}:{WS+3}], s55 offen lds")
    a(f"s_bitcmp1_b32 s{sW}, 1")
    a(f"s_cselect_b64 s[{MW}:{MW+1}], s[34:35], s[32:33]")
    a("s_waitcnt vmcnt(2)")
    argmax(a, 14, sKEY, sIDX)
    a("s_waitcnt vmcnt(0)")
    stamp(a, 2)
    a("s_barrier")
    stamp(a, 3)

    def spin(addr, off, tag, vt, sleep):
        a("s_mov_b32 s60, 0")
        a.label(f"K2_spin_{tag}")
        a(f"ds_read_b32 v{vt}, v{addr} offset:{off}")
        a("s_waitcnt lgkmcnt(0)")
        a(f"v_cmp_eq_u32 vcc, 0, v{vt}")
        a(f"s_cbranch_vccz K2_spun_{tag}")
        a(f"s_sleep {sleep}")
        a("s_add_u32 s60, s60, 1")
        a("s_cmp_lt_u32 s60, 0x400000")
        a(f"s_cbranch_scc1 K2_spin_{tag}")
        a.label(f"K2_spun_{tag}")

    LG, LXS, LD, D1, TM = 128, 160, 192, 208, 212
    a(f"s_cmp_eq_u32 s{sMOE}, 0")
    a("s_cbranch_scc1 K2_nomoe")
    a("v_lshrrev_b32 v48, 1, v0")
    a("v_mul_u32_u24 v48, 3584, v48")
    a("v_and_b32 v49, 1, v0")
    a("v_lshl_add_u32 v48, v49, 4, v48")
    a("v_lshrrev_b32 v49, 2, v0")
    a("v_lshlrev_b32 v49, 10, v49")
    a("v_and_b32 v50, 3, v0")
    a("v_lshl_add_u32 v49, v50, 4, v49")
    a("v_lshrrev_b32 v50, 4, v0")
    a("v_lshlrev_b32 v50, 4, v50")
    a(f"s_and_b32 s55, s{sV}, 1")
    a(f"s_mul_i32 s53, s55, {256*3584}")
    a(f"s_lshl_b32 s54, s{sSL}, 5")
    a("s_add_u32 s53, s53, s54")
    for i in range(8):
        a(f"buffer_load_dwordx4 {vr(LG+4*i,4)}, v48, s[{MW}:{MW+3}], s53 offen")
        if i < 7:
            a(f"s_add_u32 s53, s53, {32*3584}")
    a(f"s_lshl_b32 s53, s{sSL}, 14")
    a(f"s_lshl_b32 s54, s{sV}, 8")
    a("s_add_u32 s53, s53, s54")
    for i in range(4):
        a(f"buffer_load_dwordx4 {vr(LD+4*i,4)}, v49, s[{WD}:{WD+3}], s53 offen offset:{i*64}")
    a(f"s_lshl_b32 s53, s{sIDX}, 10")
    a("s_lshl_b32 s55, s55, 9")
    a("s_add_u32 s53, s53, s55")
    for i in range(8):
        a(f"buffer_load_dwordx4 {vr(LXS+4*i,4)}, v50, s[{X}:{X+3}], s53 offen offset:{i*64}")
    a(f"s_lshl_b32 s52, s{sV}, 10")
    a(f"s_add_u32 s52, s52, {L_MOEW}")
    a(f"v_add_u32 v{TM}, s52, v{vL16}")
    a(f"v_bfe_u32 v{TM+1}, v0, 2, 2")
    a(f"v_lshrrev_b32 v{TM+2}, 4, v0")
    a(f"v_and_b32 v{TM+3}, 3, v0")
    a(f"v_lshlrev_b32 v{TM+3}, 3, v{TM+3}")
    a(f"v_lshl_add_u32 v{TM+4}, v{TM+2}, 3, v{TM+1}")
    a(f"v_lshl_add_u32 v{TM+4}, v{TM+4}, 5, v{TM+3}")
    a(f"v_add_u32 v{TM+4}, s52, v{TM+4}")
    a(f"v_lshrrev_b32 v{TM+5}, 5, v0")
    a(f"v_lshl_add_u32 v{TM+6}, v{TM+5}, 3, v{TM+1}")
    a(f"v_lshl_add_u32 v{TM+6}, v{TM+6}, 6, v{TM+3}")
    a(f"v_and_b32 v{TM+7}, 1, v{TM+2}")
    a(f"v_lshl_add_u32 v{TM+6}, v{TM+7}, 5, v{TM+6}")
    a(f"v_add_u32 v{TM+6}, s52, v{TM+6}")
    stamp(a, 9)
    a("s_waitcnt vmcnt(8)")
    stamp(a, 10)
    for i in range(8):
        a(f"ds_write_b128 v{TM}, {vr(LG+4*i,4)}")
        a(f"ds_read_b64_tr_b16 {vr(LG+4*i,2)}, v{TM+4}")
        a(f"ds_read_b64_tr_b16 {vr(LG+4*i+2,2)}, v{TM+4} offset:128")
        if i in (3, 7):
            a("s_waitcnt lgkmcnt(0)")
    for i in range(4):
        a(f"ds_write_b128 v{TM}, {vr(LD+4*i,4)}")
        a(f"ds_read_b64_tr_b16 {vr(LD+4*i,2)}, v{TM+6}")
        a(f"ds_read_b64_tr_b16 {vr(LD+4*i+2,2)}, v{TM+6} offset:256")
    a("s_waitcnt vmcnt(0)")
    for i in range(8):
        cc = "0" if i == 0 else vr(D1, 4)
        a(f"v_mfma_f32_16x16x32_bf16 {vr(D1,4)}, {vr(LG+4*i,4)}, {vr(LXS+4*i,4)}, {cc}")
    a(f"s_lshl_b32 s53, s{sV}, 6")
    a(f"s_add_u32 s53, s53, {L_HP}")
    a(f"v_lshl_add_u32 v{TM+1}, v{TM+2}, 4, s53")
    a(f"s_lshl_b32 s53, s{sV}, 2")
    a(f"v_add_u32 v{TM+8}, s53, v{vF1}")
    a("s_waitcnt lgkmcnt(0)")
    a("s_nop 3")
    a(f"ds_write_b128 v{TM+1}, {vr(D1,4)}")
    a(f"ds_write_b32 v{TM+8}, v{vONE} offset:32")
    spin(vFE, 32, "L", TM + 9, 1)
    a(f"v_and_b32 v{TM+1}, 15, v0")
    a(f"v_lshlrev_b32 v{TM+2}, 2, v{TM+1}")
    a(f"v_add_u32 v{TM+2}, {L_HP}, v{TM+2}")
    a(f"ds_read2_b32 {vr(D1,2)}, v{TM+2} offset0:0 offset1:16")
    a(f"ds_read2_b32 {vr(D1+2,2)}, v{TM+2} offset0:32 offset1:48")
    a(f"s_lshl_b32 s53, s{sV}, 5")
    a(f"s_add_u32 s53, s53, {L_HB}")
    a(f"v_lshl_add_u32 v{TM+1}, v{TM+1}, 1, s53")
    a(f"v_lshl_add_u32 v{TM+5}, v{TM+5}, 4, s53")
    a("s_waitcnt lgkmcnt(0)")
    a(f"v_add_f32 v{D1}, v{D1}, v{D1+1}")
    a(f"v_add_f32 v{D1+2}, v{D1+2}, v{D1+3}")
    a(f"v_cvt_pk_bf16_f32 v{D1}, v{D1}, v{D1+2}")
    a(f"v_lshlrev_b32 v{D1+1}, 16, v{D1}")
    a(f"v_mul_f32 v{D1+2}, {fbits(-LOG2E):#x}, v{D1+1}")
    a(f"v_exp_f32 v{D1+2}, v{D1+2}")
    a(f"v_and_b32 v{D1}, 0xffff0000, v{D1}")
    a(f"v_add_f32 v{D1+2}, 1.0, v{D1+2}")
    a(f"v_rcp_f32 v{D1+2}, v{D1+2}")
    a("s_nop 0")
    a(f"v_mul_f32 v{D1+1}, v{D1+1}, v{D1+2}")
    a(f"v_cvt_pk_bf16_f32 v{D1+1}, v{D1+1}, v{D1+1}")
    a(f"v_and_b32 v{D1+1}, 0xffff0000, v{D1+1}")
    a(f"v_mul_f32 v{D1}, v{D1}, v{D1+1}")
    a(f"v_cvt_pk_bf16_f32 v{D1}, v{D1}, v{D1}")
    a(f"ds_write_b16 v{TM+1}, v{D1}")
    a(f"ds_read_b128 {vr(D1,4)}, v{TM+5}")
    a(f"v_lshlrev_b32 v{TT}, 2, v0")
    a(f"s_lshl_b32 s53, s{sV}, 9")
    a(f"s_add_u32 s53, s53, {WS_YACC}")
    a(f"s_and_b32 s52, s{sSL}, {NREP-1}")
    a("s_lshl_b32 s52, s52, 11")
    a("s_add_u32 s53, s53, s52")
    a("s_waitcnt lgkmcnt(0)")
    DD = [16, 32, 48, 64]
    for i in range(4):
        a(f"v_mfma_f32_32x32x16_bf16 {vr(DD[i],16)}, {vr(D1,4)}, {vr(LD+4*i,4)}, 0")
    a("s_nop 15")
    a(f"v_permlane32_swap_b32 v{DD[0]}, v{DD[1]}")
    a(f"v_permlane32_swap_b32 v{DD[2]}, v{DD[3]}")
    a(f"buffer_atomic_add_f32 v{DD[0]}, v{TT}, s[{WS}:{WS+3}], s53 offen")
    a(f"buffer_atomic_add_f32 v{DD[2]}, v{TT}, s[{WS}:{WS+3}], s53 offen offset:256")
    a(f"v_mov_b32 v{TT+1}, 0")
    a(f"s_lshl_b32 s52, s{sSL}, 2")
    a(f"s_add_u32 s52, s52, s{sV}")
    a("s_lshl_b32 s52, s52, 2")
    a(f"s_add_u32 s52, s52, {WS_YFLG}")
    stamp(a, 11)
    a("s_waitcnt vmcnt(0)")
    a("s_mov_b64 exec, 1")
    a(f"buffer_store_dword v{vONE}, v{TT+1}, s[{WS}:{WS+3}], s52 offen sc1")
    a("s_mov_b64 exec, -1")
    a.label("K2_nomoe")
    stamp(a, 4)

    ABL = opt.get("abl", 0)

    def wo_loads(t):
        if ABL & 1:
            return
        a(f"s_add_u32 s52, s{sROT}, {t}")
        a("s_and_b32 s52, s52, 7")
        a("s_lshl_b32 s52, s52, 16")
        a("s_add_u32 s52, s52, s54")
        for h in range(4):
            for i in range(4):
                a(f"buffer_load_dwordx4 {vr(BUF[t%2]+h*16+i*4,4)}, v{vL16}, s[{WS}:{WS+3}], s52 offen offset:{i*1024}")
            if h < 3:
                a("s_add_u32 s52, s52, 4096")

    def fold(acc):
        for u in range(4):
            for rr in range(2):
                a(f"v_permlane32_swap_b32 v{acc+4*u+2*rr}, v{acc+4*u+2*rr+1}")
        for u in range(4):
            for rr in range(2):
                a(f"v_add_f32 v{acc+4*u+2*rr}, v{acc+4*u+2*rr}, v{acc+4*u+2*rr+1}")

    lo, hi = fbits(2.0 ** -32), fbits(2.0 ** 120)

    def reduce_norm(t):
        u0 = t * PREC // 256
        for hw in range(2):
            a(f"ds_read2st64_b32 {vr(RAW+32+2*hw,2)}, v{[vRS, 110][hw]} offset0:{u0+8} offset1:{u0+8+WREC//256}")
        for w in range(4):
            if w == 3:
                a("s_waitcnt lgkmcnt(8)")
            for i in range(4):
                o = u0 + (w & 1) * (WREC // 256) + 2 * i
                a(f"ds_read2st64_b32 {vr(RAW+8*w+2*i,2)}, v{[vRS, 110][w >> 1]} offset0:{o} offset1:{o+1}")
        a(f"v_pk_add_f32 {vr(RAW+32,2)}, {vr(RAW+32,2)}, {vr(RAW+34,2)}")
        a("s_waitcnt lgkmcnt(8)")
        a(f"v_add_f32 v{RAW+32}, v{RAW+32}, v{RAW+33}")
        for i in range(4):
            a(f"v_pk_add_f32 {vr(RAW+2*i,2)}, {vr(RAW+2*i,2)}, {vr(RAW+8+2*i,2)}")
        a(f"v_rcp_f32 v{RAW+34}, v{RAW+32}")
        a(f"v_subrev_u32 v{RAW+32}, {lo:#x}, v{RAW+32}")
        a(f"v_cmp_lt_u32 vcc, {hi - lo:#x}, v{RAW+32}")
        a("s_waitcnt lgkmcnt(0)")
        for i in range(4):
            a(f"v_pk_add_f32 {vr(RAW+16+2*i,2)}, {vr(RAW+16+2*i,2)}, {vr(RAW+24+2*i,2)}")
        a(f"s_or_b64 s[{sBAD}:{sBAD+1}], s[{sBAD}:{sBAD+1}], vcc")
        for i in range(4):
            a(f"v_pk_add_f32 {vr(RAW+2*i,2)}, {vr(RAW+2*i,2)}, {vr(RAW+16+2*i,2)}")
        for i in range(4):
            a(f"v_pk_mul_f32 {vr(RAW+2*i,2)}, {vr(RAW+2*i,2)}, {vr(RAW+34,2)} op_sel_hi:[1,0]")
        for i in range(4):
            a(f"v_cvt_pk_bf16_f32 v{AF+i}, v{RAW+2*i}, v{RAW+2*i+1}")

    a.label("K2_project")
    if ABL & 8:
        a("s_branch K2_final")
    a(f"s_lshl_b32 s54, s{sV}, 14")
    a(f"s_add_u32 s54, s54, {WS_WOF}")
    wo_loads(0)
    wo_loads(1)
    for i in range(16):
        a(f"v_mov_b64 {vr(ACC+2*i,2)}, 0")
    a(f"v_add_u32 v9, {L_AFR}, v{vL16}")
    a(f"s_mov_b64 s[{sBAD}:{sBAD+1}], 0")
    for t in range(8):
        if t < 7:
            a(f"s_cmp_eq_u32 s{sV}, {t & 3}")
            a(f"s_cbranch_scc0 K2_wait{t}")
            spin(vFA, t * PREC, f"P{t}", RAW, opt.get("sl1", 4))
            reduce_norm(t)
            a(f"ds_write_b128 v9, {vr(AF,4)} offset:{t*1024}")
            a(f"ds_write_b32 v{vF1}, v{vONE} offset:{4*t}")
            a(f"s_branch K2_have{t}")
            a.label(f"K2_wait{t}")
            spin(vF1, 4 * t, f"A{t}", RAW, opt.get("sl2", 6))
            a(f"ds_read_b128 {vr(AF,4)}, v9 offset:{t*1024}")
            a.label(f"K2_have{t}")
            a(f"s_waitcnt vmcnt(16) lgkmcnt(0)")
        else:
            a("s_waitcnt vmcnt(0)")
            stamp(a, 6)
            spin(vFA, t * PREC, f"P{t}", RAW, 0)
            stamp(a, 7)
            reduce_norm(t)
            a("s_nop 1")
        for u in range(8):
            if not (ABL & 2):
                a(f"v_smfmac_f32_16x16x64_bf16 {vr(ACC+4*u,4)}, {vr(AF,4)}, {vr(BUF[t%2]+u*8,8)}, v{vOIDX}")
        if t == 5:
            a(f"s_lshl_b32 s55, s{sBROW}, 13")
            a(f"s_lshl_b32 s53, s{sV}, 8")
            a("s_add_u32 s55, s55, s53")
            a(f"v_lshlrev_b32 v{TT+1}, 2, v{vQ0}")
            a(f"s_lshl_b32 s52, s{sBROW}, 5")
            a(f"s_add_u32 s52, s52, {WS_G}")
            a(f"buffer_load_dword v{G}, v{TT+1}, s[{WS}:{WS+3}], s52 offen")
            a(f"buffer_load_dword v{G+1}, v{TT+1}, s[{WS}:{WS+3}], s52 offen offset:8")
            for grp in range(2):
                for rr in range(2):
                    a(f"buffer_load_dwordx2 {vr(XR+4*grp+2*rr,2)}, v{vEPO}, s[{X}:{X+3}], s55 offen offset:{grp*128 + rr*2048}")
        if t < 6:
            wo_loads(t + 2)
        if t == 5:
            a("s_waitcnt vmcnt(16)")
            for grp in range(2):
                for rr in range(2):
                    for h in range(2):
                        src = XR + 4*grp + 2*rr + h
                        a(f"v_lshlrev_b32 v{PR+8*grp+4*rr+2*h}, 16, v{src}")
                        a(f"v_and_b32 v{PR+8*grp+4*rr+2*h+1}, 0xffff0000, v{src}")
            a(f"s_lshr_b32 s52, s{sIDX}, 3")
            a(f"s_cmp_eq_u32 s52, s{sBROW}")
            if not (ABL & 4):
                a("s_cbranch_scc1 K2_owner")
            a.label("K2_owned")
            a(f"v_sub_f32 v{TT}, 1.0, v{G}")
            a(f"v_sub_f32 v{TT+2}, 1.0, v{G+1}")
            for grp in range(2):
                for rr in range(2):
                    for h in range(2):
                        r = PR + 8*grp + 4*rr + 2*h
                        a(f"v_pk_mul_f32 {vr(r,2)}, {vr(r,2)}, {vr(TT+2*rr,2)} op_sel_hi:[1,0]")
    a("s_nop 0")
    for grp in range(2):
        fold(ACC + 16 * grp)
        for rr in range(2):
            for u in range(4):
                a(f"v_fmac_f32 v{PR+8*grp+4*rr+u}, v{G+rr}, v{ACC+16*grp+4*u+2*rr}")
            a(f"v_cvt_pk_bf16_f32 v{XR+4*grp+2*rr}, v{PR+8*grp+4*rr}, v{PR+8*grp+4*rr+1}")
            a(f"v_cvt_pk_bf16_f32 v{XR+4*grp+2*rr+1}, v{PR+8*grp+4*rr+2}, v{PR+8*grp+4*rr+3}")
            a(f"buffer_store_dwordx2 {vr(XR+4*grp+2*rr,2)}, v{vEPO}, s[{OUT}:{OUT+3}], s55 offen offset:{grp*128 + rr*2048}")
    stamp(a, 8)
    a(f"v_mul_f32 v{TT}, 0, v{ACC}")
    a(f"v_fmac_f32 v{TT}, 0, v{ACC+2}")
    a(f"v_cmp_u_f32 vcc, v{TT}, v{TT}")
    a(f"s_or_b64 s[{sBAD}:{sBAD+1}], s[{sBAD}:{sBAD+1}], vcc")
    a("s_cbranch_scc0 K2_final")
    if not ABL:
        a(f"ds_write_b32 v{vF1}, v{vONE} offset:48")
    a("s_branch K2_final")

    a.label("K2_owner")
    a(f"v_min_u32 v{TT}, 55, v0")
    a(f"v_lshlrev_b32 v{TT}, 5, v{TT}")
    a(f"s_mov_b32 s52, {WS_YFLG}")
    a("s_mov_b32 s60, 0")
    a.label("K2_ypoll")
    a(f"buffer_load_dwordx4 {vr(RAW,4)}, v{TT}, s[{WS}:{WS+3}], s52 offen sc1")
    a(f"buffer_load_dwordx4 {vr(RAW+4,4)}, v{TT}, s[{WS}:{WS+3}], s52 offen offset:16 sc1")
    a("s_waitcnt vmcnt(0)")
    a(f"v_min3_u32 v{RAW}, v{RAW}, v{RAW+1}, v{RAW+2}")
    a(f"v_min3_u32 v{RAW+3}, v{RAW+3}, v{RAW+4}, v{RAW+5}")
    a(f"v_min3_u32 v{RAW}, v{RAW}, v{RAW+6}, v{RAW+7}")
    a(f"v_min_u32 v{RAW}, v{RAW}, v{RAW+3}")
    a(f"v_cmp_eq_u32 vcc, 0, v{RAW}")
    a("s_cbranch_vccz K2_yready")
    a("s_sleep 8")
    a("s_add_u32 s60, s60, 1")
    a("s_cmp_lt_u32 s60, 0x100000")
    a("s_cbranch_scc1 K2_ypoll")
    a.label("K2_yready")
    for i in range(NREP):
        a(f"v_mov_b64 {vr(RAW+2*i,2)}, 0")
    a(f"v_lshlrev_b32 v{TT}, 3, v0")
    a(f"s_lshl_b32 s52, s{sV}, 9")
    a(f"v_add_u32 v{TT+2}, s52, v{TT}")
    a(f"v_add_u32 v{TT+2}, {L_Y}, v{TT+2}")
    a(f"v_and_b32 v{TT+3}, 15, v0")
    a(f"v_lshl_add_u32 v{TT+3}, v{TT+3}, 4, s52")
    a(f"v_add_u32 v{TT+3}, {L_Y}, v{TT+3}")
    a(f"s_add_u32 s52, s52, {WS_YACC}")
    for i in range(NREP):
        a(f"buffer_atomic_add_x2 {vr(RAW+2*i,2)}, v{TT}, s[{WS}:{WS+3}], s52 offen offset:{(i&1)*2048} sc0")
        if i & 1 and i < NREP - 1:
            a("s_add_u32 s52, s52, 4096")
    a(f"s_and_b32 s53, s{sKEY}, 0xffff0000")
    a("s_ashr_i32 s52, s53, 31")
    a("s_not_b32 s52, s52")
    a("s_or_b32 s52, s52, 0x80000000")
    a("s_xor_b32 s53, s53, s52")
    a("s_and_b32 s53, s53, 0xffff0000")
    a(f"v_mov_b32 v{TT+1}, {fbits(-LOG2E):#x}")
    a(f"v_mul_f32 v{TT+1}, s53, v{TT+1}")
    a(f"v_exp_f32 v{TT+1}, v{TT+1}")
    a(f"s_and_b32 s53, s{sIDX}, 5")
    a(f"v_add_f32 v{TT+1}, 1.0, v{TT+1}")
    a(f"v_rcp_f32 v{TT+1}, v{TT+1}")
    a(f"v_cmp_eq_u32 s[56:57], s53, v{vQ0}")
    a(f"v_cvt_pk_bf16_f32 v{TT+1}, v{TT+1}, v{TT+1}")
    a(f"v_and_b32 v{TT+1}, 0xffff0000, v{TT+1}")
    a("s_waitcnt vmcnt(0)")
    n = NREP
    while n > 1:
        n //= 2
        for i in range(n):
            a(f"v_pk_add_f32 {vr(RAW+2*i,2)}, {vr(RAW+2*i,2)}, {vr(RAW+2*(i+n),2)}")
    a(f"v_cvt_pk_bf16_f32 v{RAW}, v{RAW}, v{RAW+1}")
    a(f"v_and_b32 v{RAW+1}, 0xffff0000, v{RAW}")
    a(f"v_lshlrev_b32 v{RAW}, 16, v{RAW}")
    a(f"v_mul_f32 v{RAW}, v{RAW}, v{TT+1}")
    a(f"v_mul_f32 v{RAW+1}, v{RAW+1}, v{TT+1}")
    a(f"ds_write_b64 v{TT+2}, {vr(RAW,2)}")
    a(f"ds_read_b128 {vr(YR,4)}, v{TT+3}")
    a(f"ds_read_b128 {vr(YR+4,4)}, v{TT+3} offset:256")
    a("s_waitcnt lgkmcnt(0)")
    a("s_mov_b64 exec, s[56:57]")
    a(f"s_bitcmp1_b32 s{sIDX}, 1")
    a("s_cbranch_scc1 K2_yrow1")
    for rr in range(2):
        if rr == 1:
            a.label("K2_yrow1")
        for grp in range(2):
            for h in range(2):
                r = PR + 8*grp + 4*rr + 2*h
                a(f"v_pk_add_f32 {vr(r,2)}, {vr(r,2)}, {vr(YR+4*grp+2*h,2)}")
        a("s_mov_b64 exec, -1")
        if rr == 0:
            a("s_branch K2_owned")
    a("s_branch K2_owned")

    C = S1
    a.label("K2_unsafe")
    a(f"s_mov_b32 s{sSLOW}, 1")
    a("s_waitcnt vmcnt(0)")
    a("s_barrier")
    clear_flags(a)
    a("v_mov_b32 v15, 0xff800000")
    for i in range(4):
        a(f"ds_write_b32 v12, v15 offset:{256 + 256*i}")
    a("s_waitcnt lgkmcnt(0)")
    a("s_barrier")
    a(f"s_cmp_lt_u32 s{sW}, 4")
    a("s_cbranch_scc1 K2_maxpass")
    a("s_barrier")
    a("s_branch K2_project")
    a.label("K2_maxpass")
    a("v_and_b32 v13, 31, v0")
    a("v_lshlrev_b32 v13, 2, v13")
    a(f"v_add_u32 v13, {L_MAX}, v13")
    a(f"v_mov_b32 v15, v{vL16}")
    a("s_mov_b32 s55, 0")
    a.label("K2_maxloop")
    a(f"ds_read_b128 {vr(Q,4)}, v15")
    a("v_mov_b32 v14, 0xff800000")
    a("s_waitcnt lgkmcnt(0)")
    for j in range(16):
        a(f"v_mfma_f32_32x32x16_bf16 {vr(S0,16)}, {vr(K+4*j,4)}, {vr(Q,4)}, 0")
        a("s_nop 15")
        for i in range(8):
            a(f"v_max3_f32 v14, v{S0+2*i}, v{S0+2*i+1}, v14")
    a("ds_max_f32 v13, v14")
    a("v_add_u32 v13, 128, v13")
    a("v_add_u32 v15, 1024, v15")
    a("s_add_u32 s55, s55, 1")
    a("s_cmp_lt_u32 s55, 8")
    a("s_cbranch_scc1 K2_maxloop")
    a("s_waitcnt lgkmcnt(0)")
    a("s_barrier")
    a("v_subrev_u32 v13, 1024, v13")
    a(f"v_mov_b32 v15, v{vL16}")
    a("v_lshl_add_u32 v3, v0, 2, s54")
    a("s_mov_b32 s55, 0")
    a.label("K2_exactloop")
    a(f"ds_read_b128 {vr(Q,4)}, v15")
    a("ds_read_b32 v14, v13")
    for i in range(8):
        a(f"v_mov_b64 {vr(O+2*i,2)}, 0")
    a("s_waitcnt lgkmcnt(0)")
    for i in range(16):
        a(f"v_sub_f32 v{C+i}, 0, v14")
    a("s_nop 1")
    for j in range(16):
        a(f"v_mfma_f32_32x32x16_bf16 {vr(S0,16)}, {vr(K+4*j,4)}, {vr(Q,4)}, {vr(C,16)}")
        a("s_nop 15")
        for i in range(16):
            a(f"v_exp_f32 v{S0+i}, v{S0+i}")
        a("s_nop 1")
        a(pv(j, 0, S0))
        a(pv(j, 1, S0))
    a("s_nop 15")
    for r in range(9):
        a(f"ds_write_b32 v3, v{O+r} offset:{L_PART + r*256}")
    a(f"ds_write_b32 v3, v{vPIDX} offset:{L_PART + 2304}")
    a("s_waitcnt lgkmcnt(0)")
    a("v_add_u32 v13, 128, v13")
    a("v_add_u32 v15, 1024, v15")
    a(f"v_add_u32 v3, {PREC}, v3")
    a("s_add_u32 s55, s55, 1")
    a("s_cmp_lt_u32 s55, 8")
    a("s_cbranch_scc1 K2_exactloop")
    a("s_branch K2_final")


def clear_flags(a):
    a("v_and_b32 v13, 31, v0")
    a(f"v_mul_u32_u24 v13, {PREC}, v13")
    a("v_lshlrev_b32 v12, 2, v0")
    a(f"v_add_u32 v12, {L_FLG}, v12")
    a("v_mov_b32 v14, 0")
    a(f"ds_write_b32 v13, v14 offset:{L_PART + 2304}")
    a("ds_write_b32 v12, v14")


def argmax(a, v, sKEY, sIDX):
    a(f"v_max_u32 v{v}, v{v}, v{v+1}")
    a("s_nop 1")
    for d in ("row_shr:1 row_mask:0xf", "row_shr:2 row_mask:0xf", "row_shr:4 row_mask:0xf", "row_shr:8 row_mask:0xf",
              "row_bcast:15 row_mask:0xa", "row_bcast:31 row_mask:0xc"):
        a(f"v_max_u32_dpp v{v}, v{v}, v{v} {d} bank_mask:0xf")
        a("s_nop 1")
    a(f"v_readlane_b32 s{sKEY}, v{v}, 63")
    a("s_nop 3")
    a(f"s_and_b32 s{sIDX}, s{sKEY}, 0xffff")
    a(f"s_sub_u32 s{sIDX}, 2047, s{sIDX}")
    a(f"s_and_b32 s{sIDX}, s{sIDX}, 2047")


HEADER = """; Kernarg layout for this problem (112 bytes, ptrs only, base s[0:1]):
;   offset  80: gate_w (512)   offset  88: d_out (1,2048,512) bf16   offset  96: d_debug   offset 104: d_ws
; @launch kernel=prep_kernel grid=(256,1,1) block=(512,1,1) lds={k1lds}
; @launch kernel=attn_kernel grid=(256,1,1) block=(512,1,1) lds={k2lds}
;
; prep_kernel : Q/K/V projections, router scores, mix gate, fragment-order copies of K, V^T and wo.
; attn_kernel : one workgroup = 8 query rows x 32 heads; softmax(QK^T)V, output projection, routed expert, mix.
;
; is range-checked at run time (2^-32 <= sum <= 2^120, results finite); a workgroup that sees any row outside that
.amdgcn_target "amdgcn-amd-amdhsa--gfx950"
.text
"""

KD = """.amdhsa_kernel {name}
  .amdhsa_next_free_vgpr {vgpr}
  .amdhsa_next_free_sgpr {sgpr}
  .amdhsa_accum_offset {vgpr}
  .amdhsa_group_segment_fixed_size 0
  .amdhsa_kernarg_size 112
  .amdhsa_user_sgpr_count 2
  .amdhsa_user_sgpr_kernarg_segment_ptr 1
  .amdhsa_system_sgpr_workgroup_id_x 1
.end_amdhsa_kernel
"""


def generate(opt):
    STAMP[0] = bool(opt.get("stamp", 0))
    nsg = 100 if STAMP[0] else 64
    out = HEADER.format(k1lds=K1_LDS, k2lds=K2_LDS)
    for name, fn in (("prep_kernel", gen_k1), ("attn_kernel", gen_k2)):
        a = Asm()
        fn(a, opt)
        out += f".globl {name}\n.p2align 8\n.type {name},@function\n" + a.text()
    out += '.section .rodata,"a"\n.p2align 6\n'
    out += KD.format(name="prep_kernel", vgpr=128, sgpr=nsg)
    out += ".p2align 6\n"
    out += KD.format(name="attn_kernel", vgpr=256, sgpr=nsg)
    return out


if __name__ == "__main__":
    opt = {}
    path = f"cdna_kernels/{NAME}.s"
    for arg in sys.argv[1:]:
        k, v = arg.split("=")
        if k == "out":
            path = v
        else:
            opt[k] = int(v)
    open(path, "w").write(generate(opt))
    print("wrote", path)
```

```python
import sys, struct, math

NAME = "gated_mix__grouped_kv_mqa__moe_arch_mod__prompt"

WS_QF = 0x000000
WS_KV = 0x200000
WS_WOF = 0x220000
WS_G = 0x2A0000
WS_CAND = 0x2A2000
WS_YACC = 0x2A4000
NREP = 16
WS_YFLG = WS_YACC + NREP * 2048
WS_END = WS_YFLG + 448 * 128

KA = dict(x=0, wq=8, wk=16, wv=24, wo=32, bx=40, wr=48, wg=56, wu=64, wd=72, gw=80, out=88, dbg=96, ws=104)


def fbits(f):
    return struct.unpack("<I", struct.pack("<f", f))[0]


class Asm:
    def __init__(self):
        self.L = []

    def __call__(self, s):
        for line in s.strip("\n").split("\n"):
            line = line.strip()
            if not line:
                continue
            if line.endswith(":") or line.startswith("."):
                self.L.append(line)
            else:
                self.L.append("    " + line)

    def label(self, n):
        self.L.append(n + ":")

    def c(self, s):
        self.L.append("    ; " + s)

    def text(self):
        return "\n".join(self.L) + "\n"


STAMP = [False]
WS_STAMP = 0x300000


def stamp(a, i):
    if STAMP[0] == 1 or (STAMP[0] == 2 and i in (12, 13)):
        a(f"s_memtime s[{64+2*i}:{65+2*i}]")
        a("s_waitcnt lgkmcnt(0)")


def stamp_flush(a, ws, wave, base, n=16):
    if STAMP[0]:
        a(f"s_memrealtime s[{64+2*15}:{65+2*15}]")
        a("s_waitcnt lgkmcnt(0)")
        a("s_mov_b64 exec, 1")
        a(f"s_lshl_b32 s96, s2, 3")
        a(f"s_add_u32 s96, s96, s{wave}")
        a(f"s_lshl_b32 s96, s96, 6")
        a(f"s_add_u32 s96, s96, {base}")
        a("v_mov_b32 v1, 0")
        for i in (range(n) if STAMP[0] == 1 else (0, 13, 14, 15)):
            a(f"v_mov_b32 v2, s{64+2*i}")
            a(f"buffer_store_dword v2, v1, s[{ws}:{ws+3}], s96 offen offset:{4*i}")


def stamp_init(a):
    if STAMP[0]:
        for i in range(16):
            a(f"s_mov_b64 s[{64+2*i}:{65+2*i}], 0")
        a(f"s_memrealtime s[{64+2*14}:{65+2*14}]")
        a("s_memtime s[64:65]")


PROBE = [None]
WS_PROBE = 0x2F0000


def probe(a, name):
    if PROBE[0] == name:
        a("s_memrealtime s[98:99]")


def probe_flush(a, ws, names):
    if PROBE[0] in names:
        a("s_waitcnt lgkmcnt(0)")
        a("s_mov_b64 exec, 1")
        a("s_lshl_b32 s96, s2, 2")
        a(f"s_add_u32 s96, s96, {WS_PROBE}")
        a("v_mov_b32 v1, 0")
        a("v_mov_b32 v2, s98")
        a(f"buffer_store_dword v2, v1, s[{ws}:{ws+3}], s96 offen")


WAITK = """.globl wait_kernel
.p2align 8
.type wait_kernel,@function
wait_kernel:
    s_load_dwordx2 s[4:5], s[0:1], 104
    s_mov_b32 s6, 0x400000
    s_mov_b32 s7, 0x20000
    v_lshlrev_b32 v1, 4, v0
    s_mov_b32 s12, %d
    s_memrealtime s[8:9]
    s_waitcnt lgkmcnt(0)
    buffer_load_dwordx4 v[4:7], v1, s[4:7], s12 offen
    s_waitcnt vmcnt(0)
    v_sub_u32 v4, s8, v4
    v_sub_u32 v5, s8, v5
    v_sub_u32 v6, s8, v6
    v_sub_u32 v7, s8, v7
    v_%s_u32 v4, v4, v5
    v_%s_u32 v6, v6, v7
    v_%s_u32 v4, v4, v6
    s_nop 1
    v_%s_u32_dpp v4, v4, v4 row_shr:1 row_mask:0xf bank_mask:0xf
    s_nop 1
    v_%s_u32_dpp v4, v4, v4 row_shr:2 row_mask:0xf bank_mask:0xf
    s_nop 1
    v_%s_u32_dpp v4, v4, v4 row_shr:4 row_mask:0xf bank_mask:0xf
    s_nop 1
    v_%s_u32_dpp v4, v4, v4 row_shr:8 row_mask:0xf bank_mask:0xf
    s_nop 1
    v_%s_u32_dpp v4, v4, v4 row_bcast:15 row_mask:0xa bank_mask:0xf
    s_nop 1
    v_%s_u32_dpp v4, v4, v4 row_bcast:31 row_mask:0xc bank_mask:0xf
    s_nop 1
    v_readlane_b32 s13, v4, 63
    s_nop 3
    s_sub_u32 s13, s8, s13
    s_mov_b32 s10, 0
W_loop:
    s_memrealtime s[8:9]
    s_waitcnt lgkmcnt(0)
    s_sub_u32 s8, s8, s13
    s_add_u32 s10, s10, 1
    s_cmp_gt_u32 s10, 100000
    s_cbranch_scc1 W_done
    s_cmp_lt_u32 s8, 5000
    s_cbranch_scc1 W_loop
W_done:
    s_endpgm
"""


def vr(a, n):
    return f"v[{a}:{a+n-1}]" if n > 1 else f"v{a}"


def srd(a, base, key, nbytes):
    a(f"s_load_dwordx2 s[{base}:{base+1}], s[0:1], {KA[key]}")
    a(f"s_mov_b32 s{base+2}, {nbytes}")
    a(f"s_mov_b32 s{base+3}, 0x20000")


LX, LW, LE = 0, 65536, 131072
K1_LDS = 147456


def gen_k1(a, opt):
    X, WQ, EX, WO, WR, GW, WS = 8, 24, 12, 16, 20, 28, 32
    a.label("prep_kernel")
    a("s_cmp_ge_u32 s2, 256")
    a("s_cbranch_scc1 K1_exit")
    probe(a, "k1start")
    stamp_init(a)
    a("s_load_dwordx16 s[8:23], s[0:1], 0")
    a("s_load_dwordx8 s[28:35], s[0:1], 80")
    a("v_lshrrev_b32 v1, 6, v0")
    a("v_and_b32 v0, 63, v0")
    a("v_readfirstlane_b32 s40, v1")
    a("s_bfe_u32 s43, s2, 0x30003")
    a("s_and_b32 s41, s2, 7")
    a("s_lshr_b32 s42, s2, 6")
    a("s_lshl2_add_u32 s42, s41, s42")
    a("v_and_b32 v3, 15, v0")
    a("v_lshrrev_b32 v2, 4, v0")
    a("v_and_b32 v7, 7, v0")
    a("s_and_b32 s44, s40, 3")
    a("s_cmp_lt_u32 s40, 4")
    a("s_cbranch_scc1 K1_producer")
    if opt.get("k1cpf", 1):
        a("s_cmp_eq_u32 s43, 7")
        a("s_cbranch_scc0 K1_main")
        a("s_getpc_b64 s[56:57]")
        a.label("K1_pc")
        a("s_lshl_b32 s53, s44, 13")
        a("v_lshl_add_u32 v140, v0, 7, s53")
        a("v_min_u32 v140, K2_unsafe - K1_pc, v140")
        a("v_mov_b32 v141, s57")
        a("v_add_co_u32 v140, vcc, s56, v140")
        a("s_nop 1")
        a("v_addc_co_u32 v141, vcc, 0, v141, vcc")
        a("global_load_dword v143, v[140:141], off")
    a("s_branch K1_main")
    a.label("K1_producer")
    a(f"s_mov_b32 s{WQ+2}, 524288")
    a(f"s_mov_b32 s{WQ+3}, 0x20000")
    a("s_add_u32 s56, s42, s43")
    a("v_lshl_add_u32 v5, s44, 2, v2")
    a("v_xor_b32 v5, v5, v3")
    a("v_lshlrev_b32 v5, 4, v5")
    a("v_lshl_add_u32 v5, v2, 10, v5")
    a("v_lshlrev_b32 v6, 2, v2")
    a("v_and_b32 v6, 4, v6")
    a("v_xor_b32 v6, v6, v7")
    a("v_lshlrev_b32 v6, 4, v6")
    a("v_lshrrev_b32 v8, 3, v0")
    a("v_lshl_add_u32 v6, v8, 10, v6")
    a("s_lshl4_add_u32 s47, s42, s44")
    a("s_lshl_b32 s47, s47, 12")
    a("s_lshl_b32 s49, s44, 10")
    a("s_lshl_b32 s48, s43, 7")
    a("s_lshl3_add_u32 s48, s49, s48")

    def late_srds():
        a("s_cmp_eq_u32 s43, 0")
        a(f"s_cselect_b64 s[{EX}:{EX+1}], s[12:13], s[14:15]")
        a(f"s_mov_b64 s[{WS}:{WS+1}], s[34:35]")
        for r, n in ((WO, 524288), (WR, 1024), (GW, 1024), (EX, 16384), (WS, 0x400000 if (STAMP[0] or PROBE[0]) else WS_END)):
            a(f"s_mov_b32 s{r+2}, {n}")
            a(f"s_mov_b32 s{r+3}, 0x20000")

    def dma_chunk(c, ex):
        a(f"s_add_u32 s50, s56, {c}")
        a("s_and_b32 s50, s50, 3")
        a("s_lshl_b32 s51, s50, 8")
        a("s_add_u32 s51, s51, s47")
        a("s_lshl_b32 s52, s50, 17")
        a("s_add_u32 s52, s52, s48")
        for e in range(4):
            a(f"s_add_u32 m0, s49, {LX + c*16384 + e*4096}")
            a("s_lshl_b32 s50, s50, 12" if e == 0 else "s_add_u32 s52, s52, 32768")
            a(f"buffer_load_dwordx4 v5, s[{X}:{X+3}], s51 offen lds")
            a(f"s_add_u32 m0, s49, {LW + c*16384 + e*4096}")
            a("s_add_u32 s51, s51, 16384")
            a(f"buffer_load_dwordx4 v6, s[{WQ}:{WQ+3}], s52 offen lds")
        if ex:
            ex_load(c)

    def ex_load(c):
        a(f"s_add_u32 m0, s49, {LE + c*4096}")
        a("s_add_u32 s50, s50, s49")
        a(f"buffer_load_dwordx4 v4, s[{EX}:{EX+3}], s50 offen lds")

    XO = opt.get("xorder", 0)

    def x0(e):
        a(f"s_add_u32 m0, s{61 + (e >> 1)}, {LX + (e & 1)*4096}")
        a(f"s_add_u32 s53, s{54 + (e >> 1)}, {(e & 1)*16384}")
        a(f"buffer_load_dwordx4 v5, s[{X}:{X+3}], s53 offen lds")

    def w0(e):
        a(f"s_add_u32 m0, s49, {LW + e*4096}")
        a(f"s_add_u32 s53, s52, {e*32768}")
        a(f"buffer_load_dwordx4 v6, s[{WQ}:{WQ+3}], s53 offen lds")

    def chunk0_head():
        a("s_and_b32 s50, s56, 3")
        a("s_lshl_b32 s51, s50, 8")
        a("s_add_u32 s51, s51, s47")
        a("s_lshl_b32 s52, s50, 17")
        a("s_add_u32 s52, s52, s48")
        a(f"s_and_b32 s53, s43, {4 if XO else 0}")
        a("s_lshl_b32 s62, s53, 11")
        a("s_add_u32 s61, s62, s49")
        a("s_xor_b32 s62, s61, 8192")
        a("s_lshl_b32 s53, s53, 13")
        a("s_add_u32 s54, s51, s53")
        a("s_xor_b32 s55, s54, 32768")
        a("s_lshl_b32 s50, s50, 12")
        a("s_waitcnt lgkmcnt(0)")
        a(f"s_mov_b64 s[{WQ}:{WQ+1}], s[10:11]")
        a(f"s_mov_b32 s{X+2}, 2097152")
        a(f"s_mov_b32 s{X+3}, 0x20000")
        stamp(a, 1)
        x0(0); w0(0); x0(1); w0(1)

    def rest_of_chunk0(ex):
        if XO:
            w0(2); w0(3)
            if ex:
                ex_load(0)
            x0(2); x0(3)
        else:
            x0(2); w0(2); x0(3); w0(3)
            if ex:
                ex_load(0)

    def produce(ex):
        n = 9 if ex else 8
        rest_of_chunk0(ex)
        stamp(a, 2)
        dma_chunk(1, ex)
        stamp(a, 3)
        a(f"s_waitcnt vmcnt({n})")
        stamp(a, 4)
        a("s_barrier")
        dma_chunk(2, ex)
        a(f"s_waitcnt vmcnt({n})")
        a("s_barrier")
        dma_chunk(3, ex)
        a(f"s_waitcnt vmcnt({n})")
        a("s_barrier")
        a("s_waitcnt vmcnt(0)")
        stamp(a, 5)
        a("s_barrier")
        if STAMP[0] == 1:
            a("s_add_u32 s97, s44, 4")
            stamp_flush(a, WS, 97, WS_STAMP)
            a("s_mov_b64 exec, -1")

    chunk0_head()
    late_srds()
    a.c("wo job = (cb-3)*32 + rb = (t, v, hh, gh): 32 lanes, 8x8 block per lane -> 8 half fragments")
    a("v_lshlrev_b32 v4, 4, v0")
    a("s_sub_u32 s58, s43, 3")
    a("s_lshl_b32 s58, s58, 5")
    a("s_add_u32 s58, s58, s42")
    a("s_lshr_b32 s59, s58, 4")
    a("s_lshl_b32 s59, s59, 16")
    a("s_and_b32 s53, s58, 3")
    a("s_lshl_b32 s53, s53, 14")
    a("s_add_u32 s59, s59, s53")
    a("s_bfe_u32 s53, s58, 0x20002")
    a("s_lshl_b32 s53, s53, 8")
    a("s_add_u32 s59, s59, s53")
    a("v_lshlrev_b32 v9, 4, v3")
    a("v_lshl_add_u32 v9, v2, 13, v9")
    a("v_add_u32 v10, 4096, v9")
    a("s_lshl_b32 s53, s56, 8")
    a("v_add_u32 v11, s53, v4")
    a("v_and_b32 v11, 1023, v11")
    a(f"s_mov_b32 m0, {LE}")
    a("s_cmp_lt_u32 s43, 2")
    a("s_cbranch_scc1 K1_prodkv")
    a("s_cmp_lg_u32 s44, 0")
    a("s_cbranch_scc1 K1_prod")
    a("s_cmp_eq_u32 s43, 7")
    a("s_cbranch_scc1 K1_prod")
    a("s_cmp_eq_u32 s43, 2")
    a("s_cbranch_scc1 K1_exrg")
    a("s_mov_b32 exec_hi, 0")
    for dd in range(8):
        a(f"buffer_load_dwordx4 {vr(64+4*dd,4)}, v{9+(dd>>2)}, s[{WO}:{WO+3}], s59 offen offset:{(dd&3)*1024}")
    a("s_mov_b64 exec, -1")
    a("s_branch K1_prod")
    a.label("K1_exrg")
    a(f"buffer_load_dwordx4 v11, s[{WR}:{WR+3}], 0 offen lds")
    a(f"s_mov_b32 m0, {LE + 1024}")
    a("s_nop 0")
    a(f"buffer_load_dwordx4 v11, s[{GW}:{GW+3}], 0 offen lds")
    a.label("K1_prod")
    produce(False)
    a("s_cmp_eq_u32 s43, 7")
    a("s_cbranch_scc1 K1_zero")
    a("s_cmp_lg_u32 s44, 0")
    a("s_cbranch_scc1 K1_exit")
    a("s_cmp_eq_u32 s43, 2")
    a("s_cbranch_scc1 K1_exit")
    a("s_mov_b32 s54, 0x05040100")
    a("s_mov_b32 s55, 0x07060302")
    a("s_lshr_b32 s51, s58, 2")
    a("s_lshl_b32 s51, s51, 14")
    a("s_and_b32 s52, s58, 3")
    a("s_lshl_b32 s52, s52, 9")
    a("s_add_u32 s51, s51, s52")
    a(f"s_add_u32 s51, s51, {WS_WOF}")
    a("s_mov_b32 exec_hi, 0")
    pairs = [(0, 1), (4, 5), (2, 3), (6, 7)]
    for u in range(8):
        for i, (d0, d1) in enumerate(pairs):
            a(f"v_perm_b32 v{96+4*u+i}, v{64+4*d1+(u>>1)}, v{64+4*d0+(u>>1)}, s{54+(u&1)}")
        a(f"buffer_store_dwordx4 {vr(96+4*u,4)}, v4, s[{WS}:{WS+3}], s51 offen offset:{(u&1)*2048}")
        if u & 1 and u < 7:
            a("s_add_u32 s51, s51, 4096")
    a("s_endpgm")
    a.label("K1_zero")
    a("s_lshl_b32 s50, s42, 2")
    a("s_add_u32 s50, s50, s44")
    a(f"s_cmp_lt_u32 s50, {NREP * 2 + 56}")
    a("s_cbranch_scc0 K1_exit")
    for i in range(4):
        a(f"v_mov_b32 v{64+i}, 0")
    a("s_lshl_b32 s50, s50, 10")
    a(f"s_add_u32 s51, s50, {WS_YACC}")
    a(f"buffer_store_dwordx4 v[64:67], v4, s[{WS}:{WS+3}], s51 offen sc1")
    a.label("K1_exit")
    a("s_endpgm")
    a.label("K1_prodkv")
    produce(True)
    a("s_endpgm")

    a.label("K1_main")
    a.c("main waves: a = v&1 (row half), u = v>>1 (column half)")
    a("s_and_b32 s50, s44, 1")
    a("s_lshr_b32 s51, s44, 1")
    a("v_and_b32 v12, 31, v0")
    a("v_lshrrev_b32 v13, 5, v0")
    a("s_lshl_b32 s52, s50, 13")
    a("v_lshl_add_u32 v14, v12, 8, s52")
    a("v_xor_b32 v15, v13, v3")
    for s in range(8):
        a(f"v_xor_b32 v{16+s}, {2*s}, v15")
        a(f"v_lshl_add_u32 v{16+s}, v{16+s}, 4, v14")
    a("v_bfe_u32 v28, v0, 2, 2")
    a("v_lshl_add_u32 v25, v13, 3, v28")
    a("v_and_b32 v29, 3, v0")
    a("v_lshlrev_b32 v29, 3, v29")
    a("v_and_b32 v27, 1, v2")
    a("v_lshl_add_u32 v26, v27, 5, v29")
    a("s_lshl_b32 s52, s51, 6")
    a("v_add_u32 v26, s52, v26")
    a("v_lshrrev_b32 v27, 1, v28")
    a("v_lshlrev_b32 v27, 6, v27")
    a("v_xor_b32 v26, v26, v27")
    a("v_lshl_add_u32 v24, v25, 7, v26")
    a(f"v_add_u32 v24, {LW}, v24")
    a("v_lshrrev_b32 v25, 3, v12")
    a("v_lshlrev_b32 v25, 13, v25")
    a("v_lshl_add_u32 v25, v13, 9, v25")
    a("v_lshl_add_u32 v25, v7, 4, v25")
    a("s_lshl_b32 s52, s42, 16")
    a("s_lshl_b32 s53, s50, 15")
    a("s_add_u32 s52, s52, s53")
    a("s_lshl_b32 s53, s43, 10")
    a("s_add_u32 s52, s52, s53")
    a("s_lshl_b32 s53, s51, 8")
    a("s_add_u32 s52, s52, s53")
    a("s_lshl_b32 s53, s44, 12")
    a("v_lshl_add_u32 v14, v3, 8, s53")
    a("v_xor_b32 v15, v2, v3")
    for s in range(4):
        a(f"v_xor_b32 v{8+s}, {4*s}, v15")
        a(f"v_lshl_add_u32 v{8+s}, v{8+s}, 4, v14")
    a("v_lshl_add_u32 v26, v2, 3, v28")
    a("v_lshl_add_u32 v26, v26, 5, v29")
    a(f"v_add_u32 v26, {LE}, v26")
    a("s_lshl_b32 s54, s42, 1")
    a("s_add_u32 s54, s54, s51")
    a("s_lshl_b32 s54, s54, 11")
    a(f"s_add_u32 s54, s54, {WS_KV}")
    a("s_lshl_b32 s50, s50, 8")
    a("s_add_u32 s54, s54, s50")
    a("v_and_b32 v12, 1, v2")
    a("v_lshrrev_b32 v13, 1, v2")
    a("v_lshlrev_b32 v14, 4, v3")
    a("s_setprio 1")
    a("s_waitcnt lgkmcnt(0)")
    a(f"s_mov_b64 s[{WS}:{WS+1}], s[34:35]")
    a(f"s_mov_b32 s{WS+2}, {0x400000 if (STAMP[0] or PROBE[0]) else WS_END}")
    a(f"s_mov_b32 s{WS+3}, 0x20000")
    ACC, FB, FA, D1, XB, XA = 32, 48, 80, 4, 112, 128

    def main_loop(role):
        for c in range(4):
            stamp(a, 3 + 2*c)
            a("s_barrier")
            stamp(a, 4 + 2*c)
            if c == 0 and PROBE[0] == "k1b0":
                probe(a, "k1b0")
                a("s_waitcnt lgkmcnt(0)")

            def rd(s):
                a(f"ds_read_b128 {vr(FB+4*s,4)}, v{16+s} offset:{c*16384}")
                a(f"ds_read_b64_tr_b16 {vr(FA+4*s,2)}, v24 offset:{c*16384 + s*2048}")
                a(f"ds_read_b64_tr_b16 {vr(FA+4*s+2,2)}, v24 offset:{c*16384 + s*2048 + 512}")

            ne = {"q": 0, "k": 3, "v": 3, "r": 2}[role]

            def rdx(s):
                a(f"ds_read_b128 {vr(XB+4*s,4)}, v{8+s} offset:{c*16384}")
                if role == "r":
                    a(f"ds_read_b128 {vr(XA+4*s,4)}, v26 offset:{c*256 + s*64}")
                else:
                    a(f"ds_read_b64_tr_b16 {vr(XA+4*s,2)}, v26 offset:{c*4096 + s*1024}")
                    a(f"ds_read_b64_tr_b16 {vr(XA+4*s+2,2)}, v26 offset:{c*4096 + s*1024 + 128}")

            for s in range(4):
                rd(s)
            for s in range(8):
                a(f"s_waitcnt lgkmcnt({9 if s < 4 else 3*(7-s) + ne*(s-4)})")
                cc = "0" if (c == 0 and s == 0) else vr(ACC, 16)
                a(f"v_mfma_f32_32x32x16_bf16 {vr(ACC,16)}, {vr(FA+4*s,4)}, {vr(FB+4*s,4)}, {cc}")
                if s < 4:
                    rd(s + 4)
                elif ne:
                    rdx(s - 4)
            if ne:
                for s in range(4):
                    a(f"s_waitcnt lgkmcnt({ne*(3-s)})")
                    cc = "0" if (c == 0 and s == 0) else vr(D1, 4)
                    A, B = vr(XA+4*s, 4), vr(XB+4*s, 4)
                    if role == "v":
                        A, B = B, A
                    a(f"v_mfma_f32_16x16x32_bf16 {vr(D1,4)}, {A}, {B}, {cc}")
        a(f"s_nop {11 if role == 'q' else 3}")
        for i in range(8):
            a(f"v_cvt_pk_bf16_f32 v{48+i}, v{ACC+2*i}, v{ACC+2*i+1}")
            if i == 3:
                a(f"buffer_store_dwordx4 v[48:51], v25, s[{WS}:{WS+3}], s52 offen")
        a(f"buffer_store_dwordx4 v[52:55], v25, s[{WS}:{WS+3}], s52 offen offset:128")

    def finish():
        probe(a, "k1end")
        probe_flush(a, WS, ("k1start", "k1b0", "k1end"))
        stamp(a, 11)
        if STAMP[0] == 1:
            a("s_waitcnt vmcnt(0)")
        stamp(a, 12)
        stamp_flush(a, WS, 44, WS_STAMP)
        a("s_endpgm")

    a("s_cmp_eq_u32 s43, 0")
    a("s_cbranch_scc1 K1_k")
    a("s_cmp_eq_u32 s43, 1")
    a("s_cbranch_scc1 K1_v")
    a("s_cmp_eq_u32 s43, 2")
    a("s_cbranch_scc1 K1_rg")
    main_loop("q")
    finish()
    a.label("K1_k")
    a("v_lshl_add_u32 v14, v12, 9, v14")
    a("v_lshl_add_u32 v14, v13, 3, v14")
    main_loop("k")
    a(f"v_cvt_pk_bf16_f32 v60, v{D1}, v{D1+1}")
    a(f"v_cvt_pk_bf16_f32 v61, v{D1+2}, v{D1+3}")
    for i in range(2):
        a(f"v_lshlrev_b32 v{D1+2*i}, 16, v{60+i}")
        a(f"v_and_b32 v{D1+2*i+1}, 0xffff0000, v{60+i}")
    for i in range(4):
        a(f"v_mul_f32 v{D1+i}, {fbits(0.25 * math.log2(math.e)):#x}, v{D1+i}")
    a(f"v_cvt_pk_bf16_f32 v60, v{D1}, v{D1+1}")
    a(f"v_cvt_pk_bf16_f32 v61, v{D1+2}, v{D1+3}")
    a(f"buffer_store_dwordx2 v[60:61], v14, s[{WS}:{WS+3}], s54 offen")
    finish()
    a.label("K1_v")
    a("v_lshl_add_u32 v14, v13, 9, v14")
    a("v_lshl_add_u32 v14, v12, 3, v14")
    main_loop("v")
    a(f"v_cvt_pk_bf16_f32 v60, v{D1}, v{D1+1}")
    a(f"v_cvt_pk_bf16_f32 v61, v{D1+2}, v{D1+3}")
    a(f"buffer_store_dwordx2 v[60:61], v14, s[{WS}:{WS+3}], s54 offen offset:1024")
    finish()
    a.label("K1_rg")
    a.c("router / gate: operand row 1 = gate_w, every other row = w_r")
    a("v_cmp_eq_u32 vcc, 1, v3")
    a("v_lshlrev_b32 v26, 4, v2")
    a(f"v_add_u32 v26, {LE}, v26")
    a("v_add_u32 v27, 1024, v26")
    a("v_cndmask_b32 v26, v26, v27, vcc")
    a("s_lshl_b32 s50, s42, 6")
    a("s_lshl_b32 s51, s44, 4")
    a("s_add_u32 s50, s50, s51")
    a("s_sub_u32 s51, 2047, s50")
    a("v_sub_u32 v30, s51, v0")
    a("v_lshlrev_b32 v31, 2, v0")
    a("s_lshl_b32 s51, s50, 2")
    a(f"s_add_u32 s51, s51, {WS_G}")
    a("s_lshr_b32 s50, s50, 2")
    a(f"s_add_u32 s50, s50, {WS_CAND - 60}")
    main_loop("r")
    a.c("lanes 0..15: D1[0] = router score, D1[1] = gate logit of token rb*64+16v+lane")
    a(f"v_cvt_pk_bf16_f32 v60, v{D1+1}, v{D1+1}")
    a("v_and_b32 v61, 0xffff0000, v60")
    a(f"v_mul_f32 v61, {fbits(-math.log2(math.e)):#x}, v61")
    a("v_exp_f32 v61, v61")
    a(f"v_ashrrev_i32 v63, 31, v{D1}")
    a("v_add_f32 v61, 1.0, v61")
    a("v_rcp_f32 v61, v61")
    a("v_or_b32 v63, 0x80000000, v63")
    a(f"v_xor_b32 v62, v{D1}, v63")
    a("v_and_b32 v62, 0xfffff800, v62")
    a("v_or_b32 v62, v62, v30")
    a("v_cvt_pk_bf16_f32 v61, v61, v61")
    a("v_and_b32 v61, 0xffff0000, v61")
    for sh in (1, 2, 4, 8):
        a(f"v_max_u32_dpp v62, v62, v62 row_shr:{sh} row_mask:0xf bank_mask:0xf")
        a("s_nop 1")
    a("s_mov_b64 exec, 0xffff")
    a(f"buffer_store_dword v61, v31, s[{WS}:{WS+3}], s51 offen")
    a("s_mov_b64 exec, 0x8000")
    a(f"buffer_store_dword v62, v31, s[{WS}:{WS+3}], s50 offen")
    finish()


PREC = 2560
WREC = 8 * PREC
L_Q = 0
L_PART = 8192
L_AFR = L_PART + 4 * WREC
L_FLG = L_AFR + 8192
L_MAX = L_FLG + 256
L_MOEW = L_MAX + 1024
MREC = 13 * 1024
L_HP = L_MOEW + 4 * MREC
L_HB = L_HP + 256
L_Y = L_HB + 128
K2_LDS = L_Y + 2048
NMOE_WAVES = 112 * 4
LOG2E = math.log2(math.e)


def gen_k2(a, opt):
    LOOP = 0
    NUP = opt.get("nup", 6)
    X, WS, OUT, DBG, MW, WD = 8, 12, 16, 20, 24, 28
    sW, sBROW, sIDX, sSLOW, sMOE, sV, sSL, sKEY, sROT, sQB, sKV, sBAD = 40, 41, 42, 44, 45, 46, 47, 48, 49, 43, 61, 62
    vL16, vPIDX, Z = 1, 5, 6
    Q, O, S0, S1, K, V = 8, 16, 32, 48, 64, 128
    vQA = vL16
    a.label("attn_kernel")
    a("s_cmp_ge_u32 s2, 256")
    a("s_cbranch_scc1 K2_exit")
    probe(a, "k2start")
    stamp_init(a)
    a(f"s_load_dwordx2 s[{WS}:{WS+1}], s[0:1], {KA['ws']}")
    a(f"s_load_dwordx2 s[{X}:{X+1}], s[0:1], {KA['x']}")
    a(f"s_load_dwordx2 s[{OUT}:{OUT+1}], s[0:1], {KA['out']}")
    a("v_lshrrev_b32 v12, 6, v0")
    a("v_and_b32 v0, 63, v0")
    a(f"v_readfirstlane_b32 s{sW}, v12")
    a(f"s_mov_b32 s{WS+2}, {0x400000 if (STAMP[0] or PROBE[0]) else WS_END}")
    a(f"s_mov_b32 s{WS+3}, 0x20000")
    a(f"v_lshlrev_b32 v{vL16}, 4, v0")
    a("s_and_b32 s50, s2, 7")
    a("s_lshr_b32 s51, s2, 3")
    a(f"s_lshl_b32 s{sBROW}, s50, 5")
    a(f"s_add_u32 s{sBROW}, s{sBROW}, s51")
    a(f"s_and_b32 s{sROT}, s51, {opt.get('rotm', 7)}")
    a(f"s_and_b32 s{sV}, s{sW}, 3")
    a(f"s_lshl_b32 s{sQB}, s{sBROW}, 13")
    a(f"s_mov_b32 s{sSLOW}, 0")
    a(f"s_cmp_ge_u32 s{sW}, 4")
    a("s_cbranch_scc1 K2_service")

    def late_srds():
        for r, n in ((X, 2097152), (OUT, 2097152)):
            a(f"s_mov_b32 s{r+2}, {n}")
            a(f"s_mov_b32 s{r+3}, 0x20000")

    LOC = 1
    a(f"s_lshl2_add_u32 s{sKV}, s50, s{sV}")
    a(f"s_lshl_b32 s{sKV}, s{sKV}, 12")
    a(f"s_lshl_b32 s52, s{sROT}, 10")
    a(f"s_add_u32 s52, s52, s{sQB}")
    a(f"s_add_u32 s53, s{sKV}, {WS_KV}")

    def csetup():
        a(f"s_mul_i32 s54, s{sV}, {WREC}")
        a("s_mov_b32 m0, s54")
        a("v_mov_b32 v3, 0")
        a(f"v_mov_b32 v{vPIDX}, 0xdddd")
        a("v_and_b32 v14, 11, v0")
        a("v_cmp_eq_u32 vcc, 0, v14")
        a("v_mov_b32 v13, 0x3f803f80")
        a(f"v_mov_b64 {vr(Z,2)}, 0")
        a("v_cndmask_b32 v14, 0, v13, vcc")
        a("v_cndmask_b32 v15, 0, v13, vcc")
        a(f"v_mfma_f32_32x32x8_bf16 {vr(O,16)}, {vr(Z,2)}, {vr(Z,2)}, 0")
        for j in range(16):
            for i in range(2):
                a(f"v_mov_b64 {vr(V+8*j+4+2*i,2)}, v[14:15]")

    if opt.get("early", 1):
        csetup()
    a("s_waitcnt lgkmcnt(0)")
    stamp(a, 1)
    a(f"buffer_load_dwordx4 {vr(Q,4)}, v{vL16}, s[{WS}:{WS+3}], s52 offen")

    def kvload(j):
        L = []
        so = 53 if j < 2 else 32 + j // 2
        L += [f"buffer_load_dwordx4 {vr(K+4*j,4)}, v{vL16}, s[{WS}:{WS+3}], s{so} offen offset:{(j&1)*2048}",
              f"buffer_load_dwordx4 {vr(V+8*j,4)}, v{vL16}, s[{WS}:{WS+3}], s{so} offen offset:{(j&1)*2048+1024}"]
        return L

    def pair_off(m):
        a("s_add_u32 s55, s55, 1")
        a(f"s_lshl_b32 s56, s55, 14")
        a(f"s_add_u32 s56, s56, s{sKV}")
        a("s_and_b32 s56, s56, 0x1ffff")
        a(f"s_add_u32 s{32+m}, s56, {WS_KV}")
        a("s_cmp_eq_u32 s55, 7")
        a("s_cselect_b32 s55, 0, s55")

    for j in range(NUP):
        if j == 2:
            a("s_mul_i32 s55, s51, 37")
            a("s_lshr_b32 s55, s55, 8")
            a("s_mul_i32 s55, s55, 7")
            a("s_sub_u32 s55, s51, s55")
        if j >= 2 and j % 2 == 0:
            pair_off(j // 2)
        for x in kvload(j):
            a(x)
    for m in range((NUP + 1) // 2, 8):
        pair_off(m)
    late_srds()
    if not opt.get("early", 1):
        csetup()
    stamp(a, 2)
    a(f"s_waitcnt vmcnt({2*NUP - 1})")
    stamp(a, 3)
    probe(a, "k2go")
    a(f"v_mfma_f32_32x32x16_bf16 {vr(S0,16)}, {vr(K,4)}, {vr(Q,4)}, 0")
    a("s_nop 11")

    def pv(j, half, buf):
        return f"v_smfmac_f32_32x32x32_bf16 {vr(O,16)}, {vr(V+8*j+4*half,4)}, {vr(buf+8*half,8)}, v{vPIDX}"

    def publish(t):
        if opt.get("nopub"):
            return []
        return [f"ds_write_addtid_b32 v{O+r} offset:{L_PART + t*PREC + r*256}" for r in range(9)]

    def flag(t):
        if opt.get("noflag"):
            return "s_nop 0"
        return f"ds_write_addtid_b32 v{vPIDX} offset:{L_PART + t*PREC + 2304}"

    def coltile(t, first=False, last=False, rel=False):
        tp = 0 if rel else t - 1
        for j in range(16):
            cur, oth = (S0, S1) if j % 2 == 0 else (S1, S0)
            e = [f"v_exp_f32 v{cur+i}, v{cur+i}" for i in range(16)]
            qk = [f"v_mfma_f32_32x32x16_bf16 {vr(oth,16)}, {vr(K+4*((j+1)&15),4)}, {vr(Q,4)}, 0"]
            if last and j == 15:
                qk = []
            pv1 = [pv((j - 1) & 15, 1, oth)]
            pv0 = [pv(j, 0, cur)]
            pre, post, late = [], [], []
            if first:
                if j == 0:
                    pv1 = []
                issued = min(16, NUP + j)
                need = 2 * (j + 1) + 1 if j < 15 else 32
                pre = [f"s_waitcnt vmcnt({2*issued - need})"]
                post = [f"v_permlane16_swap_b32 v{V+8*j+i}, v{V+8*j+4+i}" for i in range(4)]
                if NUP + j < 16:
                    late = kvload(NUP + j)
                if not opt.get("skew"):
                    if NUP + j == 16:
                        late = ["s_barrier"]
                elif NUP + j in (16, 17):
                    k = NUP + j - 16
                    late = [f"s_bitcmp{k}_b32 s{sW}, 1", f"s_cbranch_scc0 K2_nb{k}", "s_barrier", f"K2_nb{k}:"]
            if j == 14 and not last and not opt.get("noq"):
                post = post + [f"ds_read_b128 {vr(Q,4)}, v{vQA} offset:{(1 if rel else t + 1)*1024}"]
            if j == 15 and not last:
                pre = pre + ["s_waitcnt lgkmcnt(0)"]
            zero = [f"v_mfma_f32_32x32x8_bf16 {vr(O,16)}, {vr(Z,2)}, {vr(Z,2)}, 0"]
            ILV = opt.get("ilv", 1)
            P = publish(tp)
            if not first and j == 0:
                if ILV == 0:
                    seq = e[0:2] + pv1 + e[2:5] + qk + e[5:14] + P + zero + e[14:16]
                elif ILV == 1:
                    seq = e[0:2] + pv1 + e[2:5] + qk + e[5:13] + P[0:3] + e[13:14] + P[3:6] + e[14:15] + P[6:9] + zero + e[15:16]
                elif ILV == 2:
                    seq = e[0:2] + pv1 + e[2:5] + qk + e[5:13] + P[0:2] + e[13:14] + P[2:4] + e[14:15] + P[4:6] + e[15:16] + P[6:8]
                elif ILV == 3:
                    cp = [f"v_mov_b64 v[12:13], {vr(O+4,2)}", f"v_mov_b64 v[14:15], {vr(O+6,2)}", f"v_mov_b32 v4, v{O+8}"]
                    seq = e[0:2] + pv1 + e[2:5] + qk + e[5:13] + P[0:1] + cp[0:1] + P[1:2] + cp[1:2] + e[13:14] + P[2:3] + cp[2:3] + e[14:15] + P[3:4] + zero + e[15:16]
            elif not first and j == 1:
                if ILV == 2:
                    seq = e[0:1] + P[8:9] + zero + e[1:4] + [pv(0, 0, oth)] + e[4:7] + pv1 + e[7:10] + qk + \
                        [flag(tp)] + e[10:13] + pv0 + e[13:16] + ["s_nop 3"]
                elif ILV == 3:
                    late5 = [x.replace(f"v{O+4+i} ", f"v{[12,13,14,15,4][i]} ") for i, x in enumerate(P[4:9])]
                    seq = e[0:3] + [pv(0, 0, oth)] + e[3:6] + pv1 + e[6:9] + qk + late5[0:1] + e[9:10] + late5[1:2] + e[10:11] + late5[2:3] + \
                        e[11:12] + pv0 + e[12:13] + late5[3:4] + e[13:14] + late5[4:5] + e[14:15] + [flag(tp)] + e[15:16]
                elif ILV == 1:
                    seq = e[0:3] + [pv(0, 0, oth)] + e[3:6] + pv1 + e[6:9] + qk + \
                        [flag(tp)] + e[9:12] + pv0 + e[12:16] + ["s_nop 2"]
                else:
                    seq = e[0:2] + [pv(0, 0, oth)] + e[2:5] + pv1 + e[5:8] + qk + \
                        [flag(tp)] + e[8:11] + pv0 + e[11:16] + ["s_nop 1"]
            else:
                seq = e[0:2] + pv1 + e[2:5] + pre + qk + post + e[5:10] + pv0 + e[10:13] + late + e[13:16]
            if opt.get("fine") and t == 3 and j in (0, 2, 4, 8, 14):
                stamp(a, {0: 6, 2: 7, 4: 8, 8: 9, 14: 10}[j])
            if opt.get("fine") and t == 4 and j == 0:
                stamp(a, 11)
            for x in seq:
                a(x)

    coltile(0, first=True)
    probe(a, "k2fp")
    stamp(a, 4)
    if LOOP:
        a("s_mov_b32 s55, 1")
        a(f"v_add_u32 v{vQA}, 1024, v{vQA}")
        a(".p2align 6")
        a.label("K2_cloop")
        coltile(1, rel=True)
        a(f"s_add_u32 m0, m0, {PREC}")
        a(f"v_add_u32 v{vQA}, 1024, v{vQA}")
        a("s_add_u32 s55, s55, 1")
        a("s_cmp_lt_u32 s55, 8")
        a("s_cbranch_scc1 K2_cloop")
        a(pv(15, 1, S1))
        a("s_nop 11")
        for x in publish(0) + [flag(0)]:
            a(x)
    else:
        for t in range(1, 8):
            coltile(t, last=(t == 7))
        a("s_nop 1")
        a(pv(15, 1, S1))
        a("s_nop 11")
        for x in publish(7):
            a(x)
    a.label("K2_ctail")
    a("s_waitcnt lgkmcnt(0)")
    stamp(a, 5)
    probe(a, "k2cend")
    a("s_barrier")
    a("s_barrier")
    a.label("K2_final")
    a(f"v_mov_b32 v13, {L_FLG}")
    a("s_waitcnt lgkmcnt(0)")
    a("s_barrier")
    a("ds_read_b32 v14, v13 offset:48")
    a("s_waitcnt lgkmcnt(0)")
    a("v_readfirstlane_b32 s53, v14")
    a("s_nop 0")
    a(f"s_cmp_gt_u32 s53, s{sSLOW}")
    a("s_cbranch_scc1 K2_unsafe")
    probe(a, "k2end")
    if PROBE[0]:
        a(f"s_cmp_ge_u32 s{sW}, 4")
        a("s_cbranch_scc1 K2_exit")
    probe_flush(a, WS, ("k2start", "k2go", "k2fp", "k2cend", "k2end"))
    stamp(a, 12)
    if STAMP[0] == 1:
        a("s_waitcnt vmcnt(0)")
    stamp(a, 13)
    stamp_flush(a, WS, sW, WS_STAMP + 0x20000)
    a.label("K2_exit")
    a("s_endpgm")

    vOIDX, vEPO, vAW, vONE, vFA, vF1, vRS, vFE, vRS2 = 2, 3, 4, 5, 6, 7, 8, 111, 110
    G, TT = 10, 12
    ACC, PR, RAW, AF, XR, YR = 16, 48, 64, 104, 112, 120
    BUF = [128, 192]
    LG, LXS, LD, D1, TM, MA = 16, 48, 80, 96, 100, 112
    ABL = opt.get("abl", 0)
    a.label("K2_service")
    late_srds()
    a(f"s_load_dwordx4 s[32:35], s[0:1], {KA['wg']}")
    a(f"s_load_dwordx2 s[{WD}:{WD+1}], s[0:1], {KA['wd']}")
    for r in (WD, MW):
        a(f"s_mov_b32 s{r+2}, 1835008")
        a(f"s_mov_b32 s{r+3}, 0x20000")
    a(f"s_mul_i32 s{sSL}, s50, 14")
    a(f"s_add_u32 s{sSL}, s{sSL}, s51")
    a("s_cmp_lt_u32 s51, 14")
    a(f"s_cselect_b32 s{sMOE}, {0 if ABL & 4 else 1}, 0")
    def code_prefetch():
        a("s_getpc_b64 s[56:57]")
        a.label("K2_pc")
        a("s_sub_u32 s56, s56, K2_pc - attn_kernel")
        a("s_subb_u32 s57, s57, 0")
        a(f"s_lshl_b32 s52, s{sV}, 13")
        a("v_lshl_add_u32 v126, v0, 7, s52")
        a("v_min_u32 v126, K2_unsafe - attn_kernel, v126")
        a("global_load_dword v127, v126, s[56:57]")

    if opt.get("cpf", 0) == 1:
        code_prefetch()
    clear_flags(a)
    a("v_and_b32 v16, 2, v0")
    a("v_cmp_ne_u32 vcc, 0, v16")
    a("v_mov_b32 v16, 0x4444")
    a("v_mov_b32 v17, 0xeeee")
    a(f"v_mov_b32 v{vONE}, 1")
    a(f"v_cndmask_b32 v{vOIDX}, v16, v17, vcc")
    a("v_lshrrev_b32 v18, 4, v0")
    a("v_and_b32 v19, 15, v0")
    a("v_lshlrev_b32 v16, 4, v19")
    a(f"v_lshl_add_u32 v{vEPO}, v18, 11, v16")
    a("v_and_b32 v20, 3, v0")
    a(f"v_mul_u32_u24 v{vFA}, {WREC}, v20")
    a(f"v_add_u32 v{vFA}, {L_PART + 2304}, v{vFA}")
    a("v_lshlrev_b32 v16, 2, v20")
    a(f"v_add_u32 v{vFE}, {L_FLG}, v16")
    a(f"v_mov_b32 v{vF1}, {L_FLG}")
    a("v_bfe_u32 v16, v0, 1, 1")
    a("v_lshl_add_u32 v16, v16, 2, v18")
    a("v_bfe_u32 v21, v0, 2, 2")
    a("v_lshl_add_u32 v16, v16, 2, v21")
    a("v_and_b32 v17, 1, v0")
    a("v_lshl_add_u32 v16, v16, 1, v17")
    a("v_lshlrev_b32 v16, 2, v16")
    a(f"v_add_u32 v{vRS}, {L_PART}, v16")
    a(f"v_add_u32 v{vRS2}, {L_PART + 2*WREC}, v16")
    a("v_bfe_u32 v16, v0, 1, 4")
    a("v_lshrrev_b32 v22, 5, v0")
    a("v_lshl_add_u32 v16, v16, 1, v22")
    a("v_lshl_add_u32 v16, v16, 1, v17")
    a(f"s_lshl_b32 s52, s{sV}, 2")
    a(f"s_add_u32 s52, s52, {L_AFR + 7*1024}")
    a(f"v_lshl_add_u32 v{vAW}, v16, 4, s52")
    a(f"v_add_u32 v9, {L_AFR}, v{vL16}")
    a(f"v_lshrrev_b32 v{MA}, 1, v0")
    a(f"v_mul_u32_u24 v{MA}, 3584, v{MA}")
    a(f"v_lshl_add_u32 v{MA}, v17, 4, v{MA}")
    a(f"v_lshrrev_b32 v{MA+1}, 2, v0")
    a(f"v_lshlrev_b32 v{MA+1}, 10, v{MA+1}")
    a(f"v_lshl_add_u32 v{MA+1}, v20, 4, v{MA+1}")
    a(f"v_lshlrev_b32 v{MA+3}, 2, v0")
    a(f"s_mul_i32 s58, s{sV}, {MREC}")
    a(f"s_add_u32 s58, s58, {L_MOEW}")
    a(f"s_and_b32 s52, s{sV}, 1")
    a("s_lshl_b32 s52, s52, 9")
    a("s_add_u32 s52, s52, s58")
    a(f"v_lshl_add_u32 v{TM}, v18, 4, s52")
    a("s_mov_b32 s52, s58")
    a("v_lshlrev_b32 v20, 3, v20")
    a(f"v_lshl_add_u32 v{TM+1}, v18, 3, v21")
    a(f"v_lshl_add_u32 v{TM+1}, v{TM+1}, 5, v20")
    a(f"v_add_u32 v{TM+1}, s52, v{TM+1}")
    a(f"v_lshl_add_u32 v{TM+2}, v22, 3, v21")
    a(f"v_lshl_add_u32 v{TM+2}, v{TM+2}, 6, v20")
    a("v_and_b32 v16, 1, v18")
    a(f"v_lshl_add_u32 v{TM+2}, v16, 5, v{TM+2}")
    a(f"v_add_u32 v{TM+2}, s52, v{TM+2}")
    a(f"s_lshl_b32 s52, s{sV}, 6")
    a(f"s_add_u32 s52, s52, {L_HP}")
    a(f"v_lshl_add_u32 v{TM+3}, v18, 4, s52")
    a(f"s_lshl_b32 s52, s{sV}, 2")
    a(f"v_add_u32 v{TM+4}, s52, v{vF1}")
    a(f"v_lshlrev_b32 v{TM+5}, 2, v19")
    a(f"v_add_u32 v{TM+5}, {L_HP}, v{TM+5}")
    a(f"s_lshl_b32 s52, s{sV}, 5")
    a(f"s_add_u32 s52, s52, {L_HB}")
    a(f"v_lshl_add_u32 v{TM+6}, v19, 1, s52")
    a(f"v_lshl_add_u32 v{TM+7}, v22, 4, s52")
    a(f"v_mov_b32 v{TM+8}, 0")
    if opt.get("mtouch", 0):
        a("v_lshrrev_b32 v118, 2, v0")
        a("v_mul_u32_u24 v118, 3584, v118")
        a("v_lshl_add_u32 v118, v20, 4, v118")
        a("s_mul_i32 s36, s50, 448")
        a("s_andn2_b32 s36, s36, 127")
        a("s_lshl_b32 s39, s51, 1")
        a(f"s_and_b32 s38, s{sV}, 1")
        a("s_add_u32 s39, s39, s38")
        a("s_and_b32 s39, s39, 31")
        a(f"s_mul_i32 s37, s39, {16*3584}")
        a("s_add_u32 s36, s36, s37")
        a("v_min_u32 v117, 55, v0")
        a("v_lshlrev_b32 v117, 7, v117")
        a(f"s_mul_i32 s37, s50, {224*1024}")
        a(f"s_mul_i32 s38, s39, {56*128}")
        a("s_add_u32 s37, s37, s38")
    a("v_lshlrev_b32 v12, 3, v0")
    a(f"s_mov_b32 s52, {WS_CAND}")
    a(f"s_lshl_b32 s53, s{sV}, 1")
    a(f"s_add_u32 s54, s53, s{sROT}")
    a(f"s_lshl_b32 s53, s53, 10")
    a("s_waitcnt lgkmcnt(0)")
    stamp(a, 1)
    a(f"buffer_load_dwordx2 v[14:15], v12, s[{WS}:{WS+3}], s52 offen")
    for e in range(2):
        a(f"s_add_u32 s55, s54, {e}")
        a("s_and_b32 s55, s55, 7")
        a("s_lshl_b32 s55, s55, 10")
        a(f"s_add_u32 m0, s53, {L_Q + e*1024}")
        a(f"s_add_u32 s55, s55, s{sQB}")
        a(f"buffer_load_dwordx4 v{vL16}, s[{WS}:{WS+3}], s55 offen lds")
    a(f"s_bitcmp1_b32 s{sW}, 1")
    a(f"s_cselect_b64 s[{MW}:{MW+1}], s[34:35], s[32:33]")
    a(f"s_setprio {opt.get('sprio', 2)}")
    a("s_waitcnt vmcnt(2)")
    argmax(a, 14, sKEY, sIDX)
    a("s_waitcnt vmcnt(0)")
    stamp(a, 2)
    a("s_barrier")
    stamp(a, 3)
    if opt.get("mtouch", 0):
        a("s_cmp_lt_u32 s51, 16")
        a("s_cbranch_scc1 K2_t2")
        a(f"buffer_load_dword v119, v118, s[{MW}:{MW+3}], s36 offen")
        a(f"s_cmp_ge_u32 s{sV}, 2")
        a("s_cbranch_scc1 K2_t2")
        a(f"buffer_load_dword v116, v117, s[{WD}:{WD+3}], s37 offen")
        a.label("K2_t2")
    if opt.get("cpf", 0) == 2:
        code_prefetch()

    def spin(addr, off, tag, vt, sleep):
        a("s_mov_b32 s60, 0")
        a.label(f"K2_spin_{tag}")
        a(f"ds_read_b32 v{vt}, v{addr} offset:{off}")
        a("s_waitcnt lgkmcnt(0)")
        a(f"v_cmp_eq_u32 vcc, 0, v{vt}")
        a(f"s_cbranch_vccz K2_spun_{tag}")
        a(f"s_sleep {sleep}")
        a("s_add_u32 s60, s60, 1")
        a("s_cmp_lt_u32 s60, 0x400000")
        a(f"s_cbranch_scc1 K2_spin_{tag}")
        a.label(f"K2_spun_{tag}")

    WP = opt.get("wpace", 12)

    def wo_loads(t):
        if ABL & 1:
            return
        a(f"s_add_u32 s52, s{sROT}, {t}")
        a("s_and_b32 s52, s52, 7")
        a("s_lshl_b32 s52, s52, 16")
        a("s_add_u32 s52, s52, s54")
        for h in range(4):
            a(f"s_waitcnt vmcnt({WP})")
            for i in range(4):
                a(f"buffer_load_dwordx4 {vr(BUF[t%2]+h*16+i*4,4)}, v{vL16}, s[{WS}:{WS+3}], s52 offen offset:{i*1024}")
            if h < 3:
                a("s_add_u32 s52, s52, 4096")

    a(f"s_cmp_eq_u32 s{sMOE}, 0")
    a("s_cbranch_scc1 K2_project")
    a(f"s_lshl_b32 s54, s{sV}, 14")
    a(f"s_add_u32 s54, s54, {WS_WOF}")
    if opt.get("wfirst", 1):
        wo_loads(0)
        wo_loads(1)
        a("s_waitcnt vmcnt(4)")
    a(f"s_and_b32 s55, s{sV}, 1")
    a(f"s_mul_i32 s53, s55, {256*3584}")
    a(f"s_lshl_b32 s52, s{sSL}, 5")
    a("s_add_u32 s53, s53, s52")
    a(f"s_lshl_b32 s56, s{sSL}, 1")
    MP = opt.get("mpace", 3)
    a(f"s_lshl_b32 s57, s{sIDX}, 10")
    a("s_add_u32 m0, s58, 12288")
    a("s_nop 0")
    a(f"buffer_load_dwordx4 v{vL16}, s[{X}:{X+3}], s57 offen lds")
    for i in range(8):
        a(f"s_add_u32 s57, s56, {i}")
        a("s_and_b32 s57, s57, 7")
        a("s_lshl_b32 s59, s57, 10")
        a("s_add_u32 m0, s59, s58")
        a(f"s_mul_i32 s57, s57, {32*3584}")
        a("s_add_u32 s57, s57, s53")
        if i >= MP:
            a(f"s_waitcnt vmcnt({MP - 1})")
        a(f"buffer_load_dwordx4 v{MA}, s[{MW}:{MW+3}], s57 offen lds")
    a(f"s_lshl_b32 s53, s{sSL}, 14")
    a(f"s_lshl_b32 s52, s{sV}, 8")
    a("s_add_u32 s53, s53, s52")
    a(f"s_waitcnt vmcnt({MP - 1})")
    for i in range(4):
        a(f"s_add_u32 m0, s58, {8192 + i*1024}")
        a("s_nop 0" if i == 0 else "s_add_u32 s53, s53, 64")
        a(f"buffer_load_dwordx4 v{MA+1}, s[{WD}:{WD+3}], s53 offen lds")
    stamp(a, 9)
    a("s_waitcnt vmcnt(4)")
    for i in range(8):
        a(f"ds_read_b64_tr_b16 {vr(LG+4*i,2)}, v{TM+1} offset:{i*1024}")
        a(f"ds_read_b64_tr_b16 {vr(LG+4*i+2,2)}, v{TM+1} offset:{i*1024 + 128}")
        a(f"ds_read_b128 {vr(LXS+4*i,4)}, v{TM} offset:{12288 + i*64}")
        if i in (3, 7):
            a("s_waitcnt lgkmcnt(0)")
    stamp(a, 10)
    for i in range(8):
        cc = "0" if i == 0 else vr(D1, 4)
        a(f"v_mfma_f32_16x16x32_bf16 {vr(D1,4)}, {vr(LG+4*i,4)}, {vr(LXS+4*i,4)}, {cc}")
        if opt.get("gap", 6):
            a(f"s_nop {opt.get('gap', 6) - 1}")
    a("s_waitcnt vmcnt(0)")
    for i in range(4):
        a(f"ds_read_b64_tr_b16 {vr(LD+4*i,2)}, v{TM+2} offset:{8192 + i*1024}")
        a(f"ds_read_b64_tr_b16 {vr(LD+4*i+2,2)}, v{TM+2} offset:{8192 + i*1024 + 256}")
    a(f"ds_write_b128 v{TM+3}, {vr(D1,4)}")
    a(f"ds_write_b32 v{TM+4}, v{vONE} offset:32")
    spin(vFE, 32, "L", TM + 9, opt.get("sll", 1))
    a(f"ds_read2_b32 {vr(D1,2)}, v{TM+5} offset0:0 offset1:32")
    a(f"ds_read2_b32 {vr(D1+2,2)}, v{TM+5} offset0:16 offset1:48")
    a("s_waitcnt lgkmcnt(0)")
    a(f"v_pk_add_f32 {vr(D1,2)}, {vr(D1,2)}, {vr(D1+2,2)}")
    a(f"v_cvt_pk_bf16_f32 v{D1}, v{D1}, v{D1+1}")
    a(f"v_lshlrev_b32 v{D1+1}, 16, v{D1}")
    a(f"v_mul_f32 v{D1+2}, {fbits(-LOG2E):#x}, v{D1+1}")
    a(f"v_exp_f32 v{D1+2}, v{D1+2}")
    a(f"v_and_b32 v{D1}, 0xffff0000, v{D1}")
    a(f"v_add_f32 v{D1+2}, 1.0, v{D1+2}")
    a(f"v_rcp_f32 v{D1+2}, v{D1+2}")
    a("s_nop 0")
    a(f"v_mul_f32 v{D1+1}, v{D1+1}, v{D1+2}")
    a(f"v_cvt_pk_bf16_f32 v{D1+1}, v{D1+1}, v{D1+1}")
    a(f"v_and_b32 v{D1+1}, 0xffff0000, v{D1+1}")
    a(f"v_mul_f32 v{D1}, v{D1}, v{D1+1}")
    a(f"v_cvt_pk_bf16_f32 v{D1}, v{D1}, v{D1}")
    a(f"ds_write_b16 v{TM+6}, v{D1}")
    a(f"ds_read_b128 {vr(D1,4)}, v{TM+7}")
    a(f"s_lshl_b32 s53, s{sV}, 9")
    a(f"s_add_u32 s53, s53, {WS_YACC}")
    a(f"s_and_b32 s52, s{sSL}, {NREP-1}")
    a("s_lshl_b32 s52, s52, 11")
    a("s_add_u32 s53, s53, s52")
    a("s_waitcnt lgkmcnt(0)")
    DD = [16, 32, 48, 64]
    for i in range(4):
        a(f"v_mfma_f32_32x32x16_bf16 {vr(DD[i],16)}, {vr(D1,4)}, {vr(LD+4*i,4)}, 0")
        if i < 3:
            a(f"s_nop {opt.get('gap2', 14) - 1}")
    a("s_nop 15")
    a(f"v_permlane32_swap_b32 v{DD[0]}, v{DD[1]}")
    a(f"v_permlane32_swap_b32 v{DD[2]}, v{DD[3]}")
    a(f"buffer_atomic_add_f32 v{DD[0]}, v{MA+3}, s[{WS}:{WS+3}], s53 offen")
    a(f"buffer_atomic_add_f32 v{DD[2]}, v{MA+3}, s[{WS}:{WS+3}], s53 offen offset:256")
    a(f"s_lshl_b32 s52, s{sSL}, 2")
    a(f"s_add_u32 s52, s52, s{sV}")
    a("s_lshl_b32 s52, s52, 7")
    a(f"s_add_u32 s52, s52, {WS_YFLG}")
    stamp(a, 11)
    a("s_waitcnt vmcnt(0)")
    a("s_mov_b64 exec, 1")
    a(f"buffer_store_dword v{vONE}, v{TM+8}, s[{WS}:{WS+3}], s52 offen sc1")
    a("s_mov_b64 exec, -1")

    if opt.get("wfirst", 1):
        a("s_branch K2_loaded")

    lo, hi = fbits(2.0 ** -32), fbits(2.0 ** 120)

    def check(l):
        a(f"v_subrev_u32 v{l}, {lo:#x}, v{l}")
        a(f"v_cmp_lt_u32 vcc, {hi - lo:#x}, v{l}")

    def reduce_norm(t):
        u0 = t * PREC // 256
        for hw in range(2):
            a(f"ds_read2st64_b32 {vr(RAW+32+2*hw,2)}, v{[vRS, vRS2][hw]} offset0:{u0+8} offset1:{u0+8+WREC//256}")
        for w in range(4):
            if w == 3:
                a("s_waitcnt lgkmcnt(8)")
            for i in range(4):
                o = u0 + (w & 1) * (WREC // 256) + 2 * i
                a(f"ds_read2st64_b32 {vr(RAW+8*w+2*i,2)}, v{[vRS, vRS2][w >> 1]} offset0:{o} offset1:{o+1}")
        a("s_waitcnt lgkmcnt(0)")
        a(f"v_pk_add_f32 {vr(RAW+32,2)}, {vr(RAW+32,2)}, {vr(RAW+34,2)}")
        for i in range(4):
            a(f"v_pk_add_f32 {vr(RAW+2*i,2)}, {vr(RAW+2*i,2)}, {vr(RAW+8+2*i,2)}")
        a(f"v_add_f32 v{RAW+32}, v{RAW+32}, v{RAW+33}")
        for i in range(4):
            a(f"v_pk_add_f32 {vr(RAW+16+2*i,2)}, {vr(RAW+16+2*i,2)}, {vr(RAW+24+2*i,2)}")
        a(f"v_rcp_f32 v{RAW+34}, v{RAW+32}")
        check(RAW + 32)
        for i in range(4):
            a(f"v_pk_add_f32 {vr(RAW+2*i,2)}, {vr(RAW+2*i,2)}, {vr(RAW+16+2*i,2)}")
        a(f"s_or_b64 s[{sBAD}:{sBAD+1}], s[{sBAD}:{sBAD+1}], vcc")
        for i in range(4):
            a(f"v_pk_mul_f32 {vr(RAW+2*i,2)}, {vr(RAW+2*i,2)}, {vr(RAW+34,2)} op_sel_hi:[1,0]")
        for i in range(4):
            a(f"v_cvt_pk_bf16_f32 v{AF+i}, v{RAW+2*i}, v{RAW+2*i+1}")

    def duty(t):
        a(f"s_cmp_eq_u32 s{sV}, {t & 3}")
        a(f"s_cbranch_scc0 K2_nod{t}")
        spin(vFA, t * PREC, f"P{t}", RAW, opt.get("sl1", 4))
        reduce_norm(t)
        a(f"ds_write_b128 v9, {vr(AF,4)} offset:{t*1024}")
        a(f"ds_write_b32 v{vF1}, v{vONE} offset:{4*t}")
        a.label(f"K2_nod{t}")

    a.label("K2_project")
    stamp(a, 4)
    if ABL & 8:
        a("s_branch K2_ctail")
    a(f"s_lshl_b32 s54, s{sV}, 14")
    a(f"s_add_u32 s54, s54, {WS_WOF}")
    wo_loads(0)
    wo_loads(1)
    a.label("K2_loaded")
    a(f"v_mov_b64 {vr(TT,2)}, 0")
    a("s_nop 1")
    for i in range(2):
        a(f"v_mfma_f32_32x32x8_bf16 {vr(ACC+16*i,16)}, {vr(TT,2)}, {vr(TT,2)}, 0")
        a("s_nop 15")
    a(f"s_mov_b64 s[{sBAD}:{sBAD+1}], 0")
    for t in range(8):
        if t < 7:
            if t == 0:
                duty(0)
            spin(vF1, 4 * t, f"A{t}", RAW, opt.get("sl2", 4))
            a(f"ds_read_b128 {vr(AF,4)}, v9 offset:{t*1024}")
            a(f"s_waitcnt vmcnt(16) lgkmcnt(0)")
        else:
            u0 = 7 * PREC // 256
            a(f"s_lshl_b32 s52, s{sV}, 9")
            a(f"v_lshlrev_b32 v{TT}, 2, v0")
            a(f"v_add_u32 v{TT}, {L_PART}, v{TT}")
            a(f"v_add_u32 v{TT+1}, {2*WREC}, v{TT}")
            a(f"v_add_u32 v{TT+2}, s52, v{TT}")
            a(f"v_add_u32 v{TT+3}, s52, v{TT+1}")
            a("s_waitcnt vmcnt(0)")
            stamp(a, 6)
            a("s_barrier")
            stamp(a, 7)
            for hw in range(2):
                a(f"ds_read2st64_b32 {vr(RAW+8+2*hw,2)}, v{TT+hw} offset0:{u0+8} offset1:{u0+8+WREC//256}")
            for w in range(4):
                o = u0 + (w & 1) * (WREC // 256)
                a(f"ds_read2st64_b32 {vr(RAW+2*w,2)}, v{TT+2+(w>>1)} offset0:{o} offset1:{o+1}")
            a("s_waitcnt lgkmcnt(4)")
            a(f"v_pk_add_f32 {vr(RAW+8,2)}, {vr(RAW+8,2)}, {vr(RAW+10,2)}")
            a(f"v_add_f32 v{RAW+8}, v{RAW+8}, v{RAW+9}")
            a(f"v_rcp_f32 v{RAW+10}, v{RAW+8}")
            a("s_waitcnt lgkmcnt(0)")
            a(f"v_pk_add_f32 {vr(RAW,2)}, {vr(RAW,2)}, {vr(RAW+2,2)}")
            a(f"v_pk_add_f32 {vr(RAW+4,2)}, {vr(RAW+4,2)}, {vr(RAW+6,2)}")
            a(f"v_pk_add_f32 {vr(RAW,2)}, {vr(RAW,2)}, {vr(RAW+4,2)}")
            a(f"v_pk_mul_f32 {vr(RAW,2)}, {vr(RAW,2)}, {vr(RAW+10,2)} op_sel_hi:[1,0]")
            a(f"v_cvt_pk_bf16_f32 v{RAW}, v{RAW}, v{RAW+1}")
            a(f"ds_write_b32 v{vAW}, v{RAW}")
            check(RAW + 8)
            a("s_waitcnt lgkmcnt(0)")
            a("s_barrier")
            a(f"ds_read_b128 {vr(AF,4)}, v9 offset:{7*1024}")
            a(f"s_or_b64 s[{sBAD}:{sBAD+1}], s[{sBAD}:{sBAD+1}], vcc")
            a("s_waitcnt lgkmcnt(0)")
        for u in range(8):
            if not (ABL & 2):
                a(f"v_smfmac_f32_16x16x64_bf16 {vr(ACC+4*u,4)}, {vr(AF,4)}, {vr(BUF[t%2]+u*8,8)}, v{vOIDX}")
                if t < 7 and u < 7 and opt.get("gap", 6):
                    a(f"s_nop {opt.get('gap', 6) - 1}")
        TR = opt.get("tres", 3)
        if t < 5:
            duty(t + 1)
        if t == TR:
            a(f"s_lshl_b32 s55, s{sBROW}, 13")
            a(f"s_lshl_b32 s53, s{sV}, 8")
            a("s_add_u32 s55, s55, s53")
            a(f"v_lshrrev_b32 v{TT+1}, 4, v0")
            a(f"v_lshlrev_b32 v{TT+1}, 3, v{TT+1}")
            a(f"s_lshl_b32 s52, s{sBROW}, 5")
            a(f"s_add_u32 s52, s52, {WS_G}")
            a(f"buffer_load_dwordx2 {vr(G,2)}, v{TT+1}, s[{WS}:{WS+3}], s52 offen")
            for rr in range(2):
                a(f"buffer_load_dwordx4 {vr(XR+4*rr,4)}, v{vEPO}, s[{X}:{X+3}], s55 offen offset:{rr*1024}")
        if t < 6:
            wo_loads(t + 2)
        if t == 5:
            duty(6)
        if t == TR:
            a("s_waitcnt vmcnt(16)")
            for rr in range(2):
                for h in range(4):
                    a(f"v_lshlrev_b32 v{PR+4*h+rr}, 16, v{XR+4*rr+h}")
                    a(f"v_and_b32 v{PR+4*h+2+rr}, 0xffff0000, v{XR+4*rr+h}")
            a(f"s_lshr_b32 s52, s{sIDX}, 3")
            a(f"s_cmp_eq_u32 s52, s{sBROW}")
            if not (ABL & 4):
                a("s_cbranch_scc1 K2_owner")
            a.label("K2_owned")
            a(f"v_pk_add_f32 {vr(TT,2)}, {vr(G,2)}, 1.0 op_sel_hi:[1,0] neg_lo:[1,0] neg_hi:[1,0]")
            for i in range(8):
                a(f"v_pk_mul_f32 {vr(PR+2*i,2)}, {vr(PR+2*i,2)}, {vr(TT,2)}")
    a("s_nop 0")
    for hp in range(2):
        for n in range(8):
            a(f"v_pk_fma_f32 {vr(PR+2*n,2)}, {vr(G,2)}, {vr(ACC+4*n+2*hp,2)}, {vr(PR+2*n,2)}")
    for rr in range(2):
        for h in range(4):
            a(f"v_cvt_pk_bf16_f32 v{XR+4*rr+h}, v{PR+4*h+rr}, v{PR+4*h+2+rr}")
        a(f"buffer_store_dwordx4 {vr(XR+4*rr,4)}, v{vEPO}, s[{OUT}:{OUT+3}], s55 offen offset:{rr*1024}")
    stamp(a, 8)
    a(f"v_pk_add_f32 {vr(TT,2)}, {vr(ACC,2)}, {vr(ACC+2,2)}")
    a(f"v_mul_f32 v{TT}, 0, v{TT}")
    a(f"v_fmac_f32 v{TT}, 0, v{TT+1}")
    a(f"v_cmp_u_f32 vcc, v{TT}, v{TT}")
    a(f"s_or_b64 s[{sBAD}:{sBAD+1}], s[{sBAD}:{sBAD+1}], vcc")
    a("s_cbranch_scc0 K2_final")
    if not ABL:
        a(f"ds_write_b32 v{vF1}, v{vONE} offset:48")
    a("s_branch K2_final")

    a.label("K2_owner")
    a(f"v_lshlrev_b32 v{TT}, 7, v0")
    a("s_mov_b32 s60, 0")
    a.label("K2_ypoll")
    a(f"s_mov_b32 s52, {WS_YFLG}")
    for i in range(7):
        a(f"buffer_load_dword v{RAW+i}, v{TT}, s[{WS}:{WS+3}], s52 offen sc1")
        if i < 6:
            a("s_add_u32 s52, s52, 8192")
    a("s_waitcnt vmcnt(0)")
    a(f"v_min3_u32 v{RAW}, v{RAW}, v{RAW+1}, v{RAW+2}")
    a(f"v_min3_u32 v{RAW+3}, v{RAW+3}, v{RAW+4}, v{RAW+5}")
    a(f"v_min3_u32 v{RAW}, v{RAW}, v{RAW+3}, v{RAW+6}")
    a(f"v_cmp_eq_u32 vcc, 0, v{RAW}")
    a("s_cbranch_vccz K2_yready")
    a("s_sleep 8")
    a("s_add_u32 s60, s60, 1")
    a("s_cmp_lt_u32 s60, 0x100000")
    a("s_cbranch_scc1 K2_ypoll")
    a.label("K2_yready")
    for i in range(NREP):
        a(f"v_mov_b64 {vr(RAW+2*i,2)}, 0")
    a(f"v_lshlrev_b32 v{TT}, 3, v0")
    a(f"s_lshl_b32 s52, s{sV}, 9")
    a(f"v_add_u32 v{TT+2}, s52, v{TT}")
    a(f"v_add_u32 v{TT+2}, {L_Y}, v{TT+2}")
    a(f"v_and_b32 v{TT+3}, 15, v0")
    a(f"v_lshl_add_u32 v{TT+3}, v{TT+3}, 5, s52")
    a(f"v_add_u32 v{TT+3}, {L_Y}, v{TT+3}")
    a(f"s_add_u32 s52, s52, {WS_YACC}")
    for i in range(NREP):
        a(f"buffer_atomic_add_x2 {vr(RAW+2*i,2)}, v{TT}, s[{WS}:{WS+3}], s52 offen offset:{(i&1)*2048} sc0")
        if i & 1 and i < NREP - 1:
            a("s_add_u32 s52, s52, 4096")
    a(f"s_ashr_i32 s52, s{sKEY}, 31")
    a("s_not_b32 s52, s52")
    a("s_or_b32 s52, s52, 0x80000000")
    a(f"s_xor_b32 s53, s{sKEY}, s52")
    a("s_and_b32 s53, s53, 0xfffff800")
    a(f"v_cvt_pk_bf16_f32 v{TT+1}, s53, s53")
    a(f"v_and_b32 v{TT+1}, 0xffff0000, v{TT+1}")
    a(f"v_mul_f32 v{TT+1}, {fbits(-LOG2E):#x}, v{TT+1}")
    a(f"v_exp_f32 v{TT+1}, v{TT+1}")
    a(f"s_bfe_u32 s53, s{sIDX}, 0x20001")
    a(f"v_lshrrev_b32 v{YR}, 4, v0")
    a(f"v_add_f32 v{TT+1}, 1.0, v{TT+1}")
    a(f"v_rcp_f32 v{TT+1}, v{TT+1}")
    a(f"v_cmp_eq_u32 s[56:57], s53, v{YR}")
    a(f"v_cvt_pk_bf16_f32 v{TT+1}, v{TT+1}, v{TT+1}")
    a(f"v_and_b32 v{TT+1}, 0xffff0000, v{TT+1}")
    a("s_waitcnt vmcnt(0)")
    n = NREP
    while n > 1:
        n //= 2
        for i in range(n):
            a(f"v_pk_add_f32 {vr(RAW+2*i,2)}, {vr(RAW+2*i,2)}, {vr(RAW+2*(i+n),2)}")
    a(f"v_cvt_pk_bf16_f32 v{RAW}, v{RAW}, v{RAW+1}")
    a(f"v_and_b32 v{RAW+1}, 0xffff0000, v{RAW}")
    a(f"v_lshlrev_b32 v{RAW}, 16, v{RAW}")
    a(f"v_mul_f32 v{RAW}, v{RAW}, v{TT+1}")
    a(f"v_mul_f32 v{RAW+1}, v{RAW+1}, v{TT+1}")
    a(f"ds_write_b64 v{TT+2}, {vr(RAW,2)}")
    a(f"ds_read_b128 {vr(YR,4)}, v{TT+3}")
    a(f"ds_read_b128 {vr(YR+4,4)}, v{TT+3} offset:16")
    a("s_waitcnt lgkmcnt(0)")
    a("s_mov_b64 exec, s[56:57]")
    a(f"s_bitcmp1_b32 s{sIDX}, 0")
    a("s_cbranch_scc1 K2_yrow1")
    for rr in range(2):
        if rr == 1:
            a.label("K2_yrow1")
        for n in range(8):
            a(f"v_add_f32 v{PR+2*n+rr}, v{PR+2*n+rr}, v{YR+n}")
        a("s_mov_b64 exec, -1")
        if rr == 0:
            a("s_branch K2_owned")
    a("s_branch K2_owned")

    C = S1
    a.label("K2_unsafe")
    a(f"s_mov_b32 s{sSLOW}, 1")
    a("s_waitcnt vmcnt(0)")
    a("s_barrier")
    clear_flags(a)
    a("v_mov_b32 v15, 0xff800000")
    for i in range(4):
        a(f"ds_write_b32 v12, v15 offset:{256 + 256*i}")
    a("s_waitcnt lgkmcnt(0)")
    a("s_barrier")
    a(f"s_cmp_lt_u32 s{sW}, 4")
    a("s_cbranch_scc1 K2_maxpass")
    a("s_barrier")
    a("s_branch K2_project")
    a.label("K2_maxpass")
    a("v_and_b32 v13, 31, v0")
    a("v_lshlrev_b32 v13, 2, v13")
    a(f"v_add_u32 v13, {L_MAX}, v13")
    a(f"v_mov_b32 v15, v{vL16}")
    a("s_mov_b32 s55, 0")
    a.label("K2_maxloop")
    a(f"ds_read_b128 {vr(Q,4)}, v15")
    a("v_mov_b32 v14, 0xff800000")
    a("s_waitcnt lgkmcnt(0)")
    for j in range(16):
        a(f"v_mfma_f32_32x32x16_bf16 {vr(S0,16)}, {vr(K+4*j,4)}, {vr(Q,4)}, 0")
        a("s_nop 15")
        for i in range(8):
            a(f"v_max3_f32 v14, v{S0+2*i}, v{S0+2*i+1}, v14")
    a("ds_max_f32 v13, v14")
    a("v_add_u32 v13, 128, v13")
    a("v_add_u32 v15, 1024, v15")
    a("s_add_u32 s55, s55, 1")
    a("s_cmp_lt_u32 s55, 8")
    a("s_cbranch_scc1 K2_maxloop")
    a("s_waitcnt lgkmcnt(0)")
    a("s_barrier")
    a("v_subrev_u32 v13, 1024, v13")
    a(f"v_mov_b32 v15, v{vL16}")
    a("v_lshl_add_u32 v3, v0, 2, s54")
    a("s_mov_b32 s55, 0")
    a.label("K2_exactloop")
    a(f"ds_read_b128 {vr(Q,4)}, v15")
    a("ds_read_b32 v14, v13")
    for i in range(8):
        a(f"v_mov_b64 {vr(O+2*i,2)}, 0")
    a("s_waitcnt lgkmcnt(0)")
    for i in range(16):
        a(f"v_sub_f32 v{C+i}, 0, v14")
    a("s_nop 1")
    for j in range(16):
        a(f"v_mfma_f32_32x32x16_bf16 {vr(S0,16)}, {vr(K+4*j,4)}, {vr(Q,4)}, {vr(C,16)}")
        a("s_nop 15")
        for i in range(16):
            a(f"v_exp_f32 v{S0+i}, v{S0+i}")
        a("s_nop 1")
        a(pv(j, 0, S0))
        a(pv(j, 1, S0))
    a("s_nop 15")
    for r in range(9):
        a(f"ds_write_b32 v3, v{O+r} offset:{L_PART + r*256}")
    a(f"ds_write_b32 v3, v{vPIDX} offset:{L_PART + 2304}")
    a("s_waitcnt lgkmcnt(0)")
    a("v_add_u32 v13, 128, v13")
    a("v_add_u32 v15, 1024, v15")
    a(f"v_add_u32 v3, {PREC}, v3")
    a("s_add_u32 s55, s55, 1")
    a("s_cmp_lt_u32 s55, 8")
    a("s_cbranch_scc1 K2_exactloop")
    a("s_branch K2_ctail")
    a.label("K2_end")


def clear_flags(a):
    a("v_and_b32 v13, 31, v0")
    a(f"v_mul_u32_u24 v13, {PREC}, v13")
    a("v_lshlrev_b32 v12, 2, v0")
    a(f"v_add_u32 v12, {L_FLG}, v12")
    a("v_mov_b32 v14, 0")
    a(f"ds_write_b32 v13, v14 offset:{L_PART + 2304}")
    a("ds_write_b32 v12, v14")


def argmax(a, v, sKEY, sIDX):
    a(f"v_max_u32 v{v}, v{v}, v{v+1}")
    a("s_nop 1")
    for d in ("row_shr:1 row_mask:0xf", "row_shr:2 row_mask:0xf", "row_shr:4 row_mask:0xf", "row_shr:8 row_mask:0xf",
              "row_bcast:15 row_mask:0xa", "row_bcast:31 row_mask:0xc"):
        a(f"v_max_u32_dpp v{v}, v{v}, v{v} {d} bank_mask:0xf")
        a("s_nop 1")
    a(f"v_readlane_b32 s{sKEY}, v{v}, 63")
    a("s_nop 3")
    a(f"s_andn2_b32 s{sIDX}, 2047, s{sKEY}")


HEADER = """; Kernarg layout for this problem (112 bytes, ptrs only, base s[0:1]):
;   offset  80: gate_w (512)   offset  88: d_out (1,2048,512) bf16   offset  96: d_debug   offset 104: d_ws
; @launch kernel=prep_kernel grid=(256,1,1) block=(512,1,1) lds={k1lds}
; @launch kernel=attn_kernel grid=(256,1,1) block=(512,1,1) lds={k2lds}
;
; prep_kernel : Q/K/V projections, router scores, mix gate, fragment-order copies of K, V^T and wo.
;   waves 4-7: routed-expert slice, reduction of the four key-range partials, normalisation, output projection
;
; is range-checked at run time (2^-32 <= sum <= 2^120, results finite); a workgroup that sees any row outside that
.amdgcn_target "amdgcn-amd-amdhsa--gfx950"
.text
"""

KD = """.amdhsa_kernel {name}
  .amdhsa_next_free_vgpr {vgpr}
  .amdhsa_next_free_sgpr {sgpr}
  .amdhsa_accum_offset {vgpr}
  .amdhsa_group_segment_fixed_size 0
  .amdhsa_kernarg_size 112
  .amdhsa_user_sgpr_count 2
  .amdhsa_user_sgpr_kernarg_segment_ptr 1
  .amdhsa_system_sgpr_workgroup_id_x 1
.end_amdhsa_kernel
"""


def postprocess(text, opt):
    opt.setdefault("k1st", "sc1")
    opt.setdefault("k2st", "sc1")
    out = []
    k1 = True
    for line in text.split("\n"):
        if line.startswith("attn_kernel:"):
            k1 = False
        if "s96" not in line:
            if k1 and "buffer_store" in line and "sc1" not in line and opt.get("k1st"):
                line += " " + opt["k1st"].replace("_", " ")
            if not k1 and "buffer_store_dwordx4" in line and opt.get("k2st"):
                line += " " + opt["k2st"].replace("_", " ")
            if not k1 and "buffer_load_dwordx4" in line and ", s52 offen offset" in line and "sc1" not in line and opt.get("wofl"):
                line += " " + opt["wofl"].replace("_", " ")
        out.append(line)
    return "\n".join(out)


def generate(opt):
    STAMP[0] = opt.get("stamp", 0)
    PROBE[0] = opt.get("probe")
    nsg = 100 if (STAMP[0] or PROBE[0]) else 64
    out = HEADER.format(k1lds=K1_LDS, k2lds=K2_LDS)
    for name, fn in (("prep_kernel", gen_k1), ("attn_kernel", gen_k2)):
        a = Asm()
        fn(a, opt)
        out += f".globl {name}\n.p2align 8\n.type {name},@function\n" + a.text()
    if STAMP[0] == 2:
        out += """.globl post_kernel
.p2align 8
.type post_kernel,@function
post_kernel:
    s_memrealtime s[8:9]
    s_load_dwordx2 s[4:5], s[0:1], 104
    s_mov_b32 s6, 0x400000
    s_mov_b32 s7, 0x20000
    s_mov_b32 s12, 0x33fff0
    v_mov_b32 v1, 0
    s_waitcnt lgkmcnt(0)
    v_mov_b32 v2, s8
    buffer_store_dword v2, v1, s[4:7], s12 offen ; s96
    s_endpgm
"""
        out = out.replace(";\n; prep_kernel :", "; @launch kernel=post_kernel grid=(1,1,1) block=(64,1,1) lds=0\n;\n; prep_kernel :")
    if PROBE[0]:
        op = "max" if opt.get("first") else "min"
        out += WAITK % ((WS_PROBE,) + (op,) * 9)
        out = out.replace(";\n; prep_kernel :", "; @launch kernel=wait_kernel grid=(1,1,1) block=(64,1,1) lds=0\n;\n; prep_kernel :")
    out += '.section .rodata,"a"\n.p2align 6\n'
    out += KD.format(name="prep_kernel", vgpr=144, sgpr=nsg)
    out += ".p2align 6\n"
    out += KD.format(name="attn_kernel", vgpr=256, sgpr=nsg)
    if STAMP[0] == 2:
        out += ".p2align 6\n" + KD.format(name="post_kernel", vgpr=8, sgpr=16)
    if PROBE[0]:
        out += ".p2align 6\n" + KD.format(name="wait_kernel", vgpr=8, sgpr=16)
    return postprocess(out, opt)


if __name__ == "__main__":
    opt = {}
    path = f"cdna_kernels/{NAME}.s"
    for arg in sys.argv[1:]:
        k, v = arg.split("=")
        if k == "out":
            path = v
        else:
            opt[k] = int(v) if v.lstrip("-").isdigit() else v
    open(path, "w").write(generate(opt))
    print("wrote", path)
```

```python
import sys, struct, math

NAME = "gated_mix__grouped_kv_mqa__moe_arch_mod__prompt"

WS_QF = 0x000000
WS_KV = 0x200000
WS_WOF = 0x220000
WS_G = 0x2A0000
WS_CAND = 0x2A2000
WS_YACC = 0x2A4000
NREP = 8
WS_YFLG = WS_YACC + NREP * 2048
WS_END = WS_YFLG + 448 * 128

KA = dict(x=0, wq=8, wk=16, wv=24, wo=32, bx=40, wr=48, wg=56, wu=64, wd=72, gw=80, out=88, dbg=96, ws=104)


def fbits(f):
    return struct.unpack("<I", struct.pack("<f", f))[0]


class Asm:
    def __init__(self):
        self.L = []

    def __call__(self, s):
        for line in s.strip("\n").split("\n"):
            line = line.strip()
            if not line:
                continue
            if line.endswith(":") or line.startswith("."):
                self.L.append(line)
            else:
                self.L.append("    " + line)

    def label(self, n):
        self.L.append(n + ":")

    def c(self, s):
        self.L.append("    ; " + s)

    def text(self):
        return "\n".join(self.L) + "\n"


STAMP = [False]
WS_STAMP = 0x300000


def stamp(a, i):
    if STAMP[0] == 1 or (STAMP[0] == 2 and i in (12, 13)):
        a(f"s_memtime s[{64+2*i}:{65+2*i}]")
        a("s_waitcnt lgkmcnt(0)")


def stamp_flush(a, ws, wave, base, n=16):
    if STAMP[0]:
        a(f"s_memrealtime s[{64+2*15}:{65+2*15}]")
        a("s_waitcnt lgkmcnt(0)")
        a("s_mov_b64 exec, 1")
        a(f"s_lshl_b32 s96, s2, 3")
        a(f"s_add_u32 s96, s96, s{wave}")
        a(f"s_lshl_b32 s96, s96, 6")
        a(f"s_add_u32 s96, s96, {base}")
        a("v_mov_b32 v1, 0")
        for i in (range(n) if STAMP[0] == 1 else (0, 13, 14, 15)):
            a(f"v_mov_b32 v2, s{64+2*i}")
            a(f"buffer_store_dword v2, v1, s[{ws}:{ws+3}], s96 offen offset:{4*i}")


def stamp_init(a):
    if STAMP[0]:
        for i in range(16):
            a(f"s_mov_b64 s[{64+2*i}:{65+2*i}], 0")
        a(f"s_memrealtime s[{64+2*14}:{65+2*14}]")
        a("s_memtime s[64:65]")


PROBE = [None]
WS_PROBE = 0x2F0000


def probe(a, name):
    if PROBE[0] == name:
        a("s_memrealtime s[98:99]")


def probe_flush(a, ws, names):
    if PROBE[0] in names:
        a("s_waitcnt lgkmcnt(0)")
        a("s_mov_b64 exec, 1")
        a("s_lshl_b32 s96, s2, 2")
        a(f"s_add_u32 s96, s96, {WS_PROBE}")
        a("v_mov_b32 v1, 0")
        a("v_mov_b32 v2, s98")
        a(f"buffer_store_dword v2, v1, s[{ws}:{ws+3}], s96 offen")


WAITK = """.globl wait_kernel
.p2align 8
.type wait_kernel,@function
wait_kernel:
    s_load_dwordx2 s[4:5], s[0:1], 104
    s_mov_b32 s6, 0x400000
    s_mov_b32 s7, 0x20000
    v_lshlrev_b32 v1, 4, v0
    s_mov_b32 s12, %d
    s_memrealtime s[8:9]
    s_waitcnt lgkmcnt(0)
    buffer_load_dwordx4 v[4:7], v1, s[4:7], s12 offen
    s_waitcnt vmcnt(0)
    v_sub_u32 v4, s8, v4
    v_sub_u32 v5, s8, v5
    v_sub_u32 v6, s8, v6
    v_sub_u32 v7, s8, v7
    v_%s_u32 v4, v4, v5
    v_%s_u32 v6, v6, v7
    v_%s_u32 v4, v4, v6
    s_nop 1
    v_%s_u32_dpp v4, v4, v4 row_shr:1 row_mask:0xf bank_mask:0xf
    s_nop 1
    v_%s_u32_dpp v4, v4, v4 row_shr:2 row_mask:0xf bank_mask:0xf
    s_nop 1
    v_%s_u32_dpp v4, v4, v4 row_shr:4 row_mask:0xf bank_mask:0xf
    s_nop 1
    v_%s_u32_dpp v4, v4, v4 row_shr:8 row_mask:0xf bank_mask:0xf
    s_nop 1
    v_%s_u32_dpp v4, v4, v4 row_bcast:15 row_mask:0xa bank_mask:0xf
    s_nop 1
    v_%s_u32_dpp v4, v4, v4 row_bcast:31 row_mask:0xc bank_mask:0xf
    s_nop 1
    v_readlane_b32 s13, v4, 63
    s_nop 3
    s_sub_u32 s13, s8, s13
    s_mov_b32 s10, 0
W_loop:
    s_memrealtime s[8:9]
    s_waitcnt lgkmcnt(0)
    s_sub_u32 s8, s8, s13
    s_add_u32 s10, s10, 1
    s_cmp_gt_u32 s10, 100000
    s_cbranch_scc1 W_done
    s_cmp_lt_u32 s8, 5000
    s_cbranch_scc1 W_loop
W_done:
    s_endpgm
"""


def vr(a, n):
    return f"v[{a}:{a+n-1}]" if n > 1 else f"v{a}"


def srd(a, base, key, nbytes):
    a(f"s_load_dwordx2 s[{base}:{base+1}], s[0:1], {KA[key]}")
    a(f"s_mov_b32 s{base+2}, {nbytes}")
    a(f"s_mov_b32 s{base+3}, 0x20000")


LX, LW, LE = 0, 65536, 131072
K1_LDS = 147456


def gen_k1(a, opt):
    X, WQ, EX, WO, WR, GW, WS = 8, 24, 12, 16, 20, 28, 32
    a.label("prep_kernel")
    a("s_cmp_ge_u32 s2, 256")
    a("s_cbranch_scc1 K1_exit")
    probe(a, "k1start")
    stamp_init(a)
    a("s_load_dwordx16 s[8:23], s[0:1], 0")
    a("s_load_dwordx8 s[28:35], s[0:1], 80")
    a("v_lshrrev_b32 v1, 6, v0")
    a("v_and_b32 v0, 63, v0")
    a("v_readfirstlane_b32 s40, v1")
    a("s_bfe_u32 s43, s2, 0x30003")
    a("s_and_b32 s41, s2, 7")
    a("s_lshr_b32 s42, s2, 6")
    a("s_lshl2_add_u32 s42, s41, s42")
    a("v_and_b32 v3, 15, v0")
    a("v_lshrrev_b32 v2, 4, v0")
    a("v_and_b32 v7, 7, v0")
    a("s_and_b32 s44, s40, 3")
    a("s_cmp_lt_u32 s40, 4")
    a("s_cbranch_scc1 K1_producer")
    if opt.get("k1cpf", 1):
        a("s_cmp_eq_u32 s43, 7")
        a("s_cbranch_scc0 K1_main")
        a("s_getpc_b64 s[56:57]")
        a.label("K1_pc")
        a("s_lshl_b32 s53, s44, 13")
        a("v_lshl_add_u32 v140, v0, 7, s53")
        a("v_min_u32 v140, K2_unsafe - K1_pc, v140")
        a("v_mov_b32 v141, s57")
        a("v_add_co_u32 v140, vcc, s56, v140")
        a("s_nop 1")
        a("v_addc_co_u32 v141, vcc, 0, v141, vcc")
        a("global_load_dword v143, v[140:141], off")
    a("s_branch K1_main")
    a.label("K1_producer")
    a(f"s_mov_b32 s{WQ+2}, 524288")
    a(f"s_mov_b32 s{WQ+3}, 0x20000")
    a("s_add_u32 s56, s42, s43")
    a("v_lshl_add_u32 v5, s44, 2, v2")
    a("v_xor_b32 v5, v5, v3")
    a("v_lshlrev_b32 v5, 4, v5")
    a("v_lshl_add_u32 v5, v2, 10, v5")
    a("v_lshlrev_b32 v6, 2, v2")
    a("v_and_b32 v6, 4, v6")
    a("v_xor_b32 v6, v6, v7")
    a("v_lshlrev_b32 v6, 4, v6")
    a("v_lshrrev_b32 v8, 3, v0")
    a("v_lshl_add_u32 v6, v8, 10, v6")
    a("s_lshl4_add_u32 s47, s42, s44")
    a("s_lshl_b32 s47, s47, 12")
    a("s_lshl_b32 s49, s44, 10")
    a("s_lshl_b32 s48, s43, 7")
    a("s_lshl3_add_u32 s48, s49, s48")

    def late_srds():
        a("s_cmp_eq_u32 s43, 0")
        a(f"s_cselect_b64 s[{EX}:{EX+1}], s[12:13], s[14:15]")
        a(f"s_mov_b64 s[{WS}:{WS+1}], s[34:35]")
        for r, n in ((WO, 524288), (WR, 1024), (GW, 1024), (EX, 16384), (WS, 0x400000 if (STAMP[0] or PROBE[0]) else WS_END)):
            a(f"s_mov_b32 s{r+2}, {n}")
            a(f"s_mov_b32 s{r+3}, 0x20000")

    def dma_chunk(c, ex):
        a(f"s_add_u32 s50, s56, {c}")
        a("s_and_b32 s50, s50, 3")
        a("s_lshl_b32 s51, s50, 8")
        a("s_add_u32 s51, s51, s47")
        a("s_lshl_b32 s52, s50, 17")
        a("s_add_u32 s52, s52, s48")
        for e in range(4):
            a(f"s_add_u32 m0, s49, {LX + c*16384 + e*4096}")
            a("s_lshl_b32 s50, s50, 12" if e == 0 else "s_add_u32 s52, s52, 32768")
            a(f"buffer_load_dwordx4 v5, s[{X}:{X+3}], s51 offen lds")
            a(f"s_add_u32 m0, s49, {LW + c*16384 + e*4096}")
            a("s_add_u32 s51, s51, 16384")
            a(f"buffer_load_dwordx4 v6, s[{WQ}:{WQ+3}], s52 offen lds")
        if ex:
            ex_load(c)

    def ex_load(c):
        a(f"s_add_u32 m0, s49, {LE + c*4096}")
        a("s_add_u32 s50, s50, s49")
        a(f"buffer_load_dwordx4 v4, s[{EX}:{EX+3}], s50 offen lds")

    XO = opt.get("xorder", 0)

    def x0(e):
        a(f"s_add_u32 m0, s{61 + (e >> 1)}, {LX + (e & 1)*4096}")
        a(f"s_add_u32 s53, s{54 + (e >> 1)}, {(e & 1)*16384}")
        a(f"buffer_load_dwordx4 v5, s[{X}:{X+3}], s53 offen lds")

    def w0(e):
        a(f"s_add_u32 m0, s49, {LW + e*4096}")
        a(f"s_add_u32 s53, s52, {e*32768}")
        a(f"buffer_load_dwordx4 v6, s[{WQ}:{WQ+3}], s53 offen lds")

    def chunk0_head():
        a("s_and_b32 s50, s56, 3")
        a("s_lshl_b32 s51, s50, 8")
        a("s_add_u32 s51, s51, s47")
        a("s_lshl_b32 s52, s50, 17")
        a("s_add_u32 s52, s52, s48")
        a(f"s_and_b32 s53, s43, {4 if XO else 0}")
        a("s_lshl_b32 s62, s53, 11")
        a("s_add_u32 s61, s62, s49")
        a("s_xor_b32 s62, s61, 8192")
        a("s_lshl_b32 s53, s53, 13")
        a("s_add_u32 s54, s51, s53")
        a("s_xor_b32 s55, s54, 32768")
        a("s_lshl_b32 s50, s50, 12")
        a("s_waitcnt lgkmcnt(0)")
        a(f"s_mov_b64 s[{WQ}:{WQ+1}], s[10:11]")
        a(f"s_mov_b32 s{X+2}, 2097152")
        a(f"s_mov_b32 s{X+3}, 0x20000")
        stamp(a, 1)
        x0(0); w0(0); x0(1); w0(1)

    def rest_of_chunk0(ex):
        if XO:
            w0(2); w0(3)
            if ex:
                ex_load(0)
            x0(2); x0(3)
        else:
            x0(2); w0(2); x0(3); w0(3)
            if ex:
                ex_load(0)

    def produce(ex):
        n = 9 if ex else 8
        rest_of_chunk0(ex)
        stamp(a, 2)
        dma_chunk(1, ex)
        stamp(a, 3)
        if opt.get("k1m", 0) == 0:
            a(f"s_waitcnt vmcnt({n})")
            stamp(a, 4)
            a("s_barrier")
        dma_chunk(2, ex)
        a(f"s_waitcnt vmcnt({n})")
        a("s_barrier")
        dma_chunk(3, ex)
        a(f"s_waitcnt vmcnt({n})")
        a("s_barrier")
        a("s_waitcnt vmcnt(0)")
        stamp(a, 5)
        a("s_barrier")
        if STAMP[0] == 1:
            a("s_add_u32 s97, s44, 4")
            stamp_flush(a, WS, 97, WS_STAMP)
            a("s_mov_b64 exec, -1")

    chunk0_head()
    late_srds()
    a.c("wo job = (cb-3)*32 + rb = (t, v, hh, gh): 32 lanes, 8x8 block per lane -> 8 half fragments")
    a("v_lshlrev_b32 v4, 4, v0")
    a("s_sub_u32 s58, s43, 3")
    a("s_lshl_b32 s58, s58, 5")
    a("s_add_u32 s58, s58, s42")
    a("s_lshr_b32 s59, s58, 4")
    a("s_lshl_b32 s59, s59, 16")
    a("s_and_b32 s53, s58, 3")
    a("s_lshl_b32 s53, s53, 14")
    a("s_add_u32 s59, s59, s53")
    a("s_bfe_u32 s53, s58, 0x20002")
    a("s_lshl_b32 s53, s53, 8")
    a("s_add_u32 s59, s59, s53")
    a("v_lshlrev_b32 v9, 4, v3")
    a("v_lshl_add_u32 v9, v2, 13, v9")
    a("v_add_u32 v10, 4096, v9")
    a("s_lshl_b32 s53, s56, 8")
    a("v_add_u32 v11, s53, v4")
    a("v_and_b32 v11, 1023, v11")
    a(f"s_mov_b32 m0, {LE}")
    a("s_cmp_lt_u32 s43, 2")
    a("s_cbranch_scc1 K1_prodkv")
    a("s_cmp_lg_u32 s44, 0")
    a("s_cbranch_scc1 K1_prod")
    a("s_cmp_eq_u32 s43, 7")
    a("s_cbranch_scc1 K1_prod")
    a("s_cmp_eq_u32 s43, 2")
    a("s_cbranch_scc1 K1_exrg")
    a("s_mov_b32 exec_hi, 0")
    for dd in range(8):
        a(f"buffer_load_dwordx4 {vr(64+4*dd,4)}, v{9+(dd>>2)}, s[{WO}:{WO+3}], s59 offen offset:{(dd&3)*1024}")
    a("s_mov_b64 exec, -1")
    a("s_branch K1_prod")
    a.label("K1_exrg")
    a(f"buffer_load_dwordx4 v11, s[{WR}:{WR+3}], 0 offen lds")
    a(f"s_mov_b32 m0, {LE + 1024}")
    a("s_nop 0")
    a(f"buffer_load_dwordx4 v11, s[{GW}:{GW+3}], 0 offen lds")
    a.label("K1_prod")
    produce(False)
    a("s_cmp_eq_u32 s43, 7")
    a("s_cbranch_scc1 K1_zero")
    a("s_cmp_lg_u32 s44, 0")
    a("s_cbranch_scc1 K1_exit")
    a("s_cmp_eq_u32 s43, 2")
    a("s_cbranch_scc1 K1_exit")
    a("s_mov_b32 s54, 0x05040100")
    a("s_mov_b32 s55, 0x07060302")
    a("s_lshr_b32 s51, s58, 2")
    a("s_lshl_b32 s51, s51, 14")
    a("s_and_b32 s52, s58, 3")
    a("s_lshl_b32 s52, s52, 9")
    a("s_add_u32 s51, s51, s52")
    a(f"s_add_u32 s51, s51, {WS_WOF}")
    a("s_mov_b32 exec_hi, 0")
    pairs = [(0, 1), (4, 5), (2, 3), (6, 7)]
    for u in range(8):
        for i, (d0, d1) in enumerate(pairs):
            a(f"v_perm_b32 v{96+4*u+i}, v{64+4*d1+(u>>1)}, v{64+4*d0+(u>>1)}, s{54+(u&1)}")
        a(f"buffer_store_dwordx4 {vr(96+4*u,4)}, v4, s[{WS}:{WS+3}], s51 offen offset:{(u&1)*2048}")
        if u & 1 and u < 7:
            a("s_add_u32 s51, s51, 4096")
    a("s_endpgm")
    a.label("K1_zero")
    a("s_lshl_b32 s50, s42, 2")
    a("s_add_u32 s50, s50, s44")
    a(f"s_cmp_lt_u32 s50, {NREP * 2 + 56}")
    a("s_cbranch_scc0 K1_exit")
    for i in range(4):
        a(f"v_mov_b32 v{64+i}, 0")
    a("s_lshl_b32 s50, s50, 10")
    a(f"s_add_u32 s51, s50, {WS_YACC}")
    a(f"buffer_store_dwordx4 v[64:67], v4, s[{WS}:{WS+3}], s51 offen sc1")
    a.label("K1_exit")
    a("s_endpgm")
    a.label("K1_prodkv")
    produce(True)
    a("s_endpgm")

    a.label("K1_main")
    a.c("main waves: a = v&1 (row half), u = v>>1 (column half)")
    a("s_and_b32 s50, s44, 1")
    a("s_lshr_b32 s51, s44, 1")
    a("v_and_b32 v12, 31, v0")
    a("v_lshrrev_b32 v13, 5, v0")
    a("s_lshl_b32 s52, s50, 13")
    a("v_lshl_add_u32 v14, v12, 8, s52")
    a("v_xor_b32 v15, v13, v3")
    for s in range(8):
        a(f"v_xor_b32 v{16+s}, {2*s}, v15")
        a(f"v_lshl_add_u32 v{16+s}, v{16+s}, 4, v14")
    a("v_bfe_u32 v28, v0, 2, 2")
    a("v_lshl_add_u32 v25, v13, 3, v28")
    a("v_and_b32 v29, 3, v0")
    a("v_lshlrev_b32 v29, 3, v29")
    a("v_and_b32 v27, 1, v2")
    a("v_lshl_add_u32 v26, v27, 5, v29")
    a("s_lshl_b32 s52, s51, 6")
    a("v_add_u32 v26, s52, v26")
    a("v_lshrrev_b32 v27, 1, v28")
    a("v_lshlrev_b32 v27, 6, v27")
    a("v_xor_b32 v26, v26, v27")
    a("v_lshl_add_u32 v24, v25, 7, v26")
    a(f"v_add_u32 v24, {LW}, v24")
    a("v_lshrrev_b32 v25, 3, v12")
    a("v_lshlrev_b32 v25, 13, v25")
    a("v_lshl_add_u32 v25, v13, 9, v25")
    a("v_lshl_add_u32 v25, v7, 4, v25")
    a("s_lshl_b32 s52, s42, 16")
    a("s_lshl_b32 s53, s50, 15")
    a("s_add_u32 s52, s52, s53")
    a("s_lshl_b32 s53, s43, 10")
    a("s_add_u32 s52, s52, s53")
    a("s_lshl_b32 s53, s51, 8")
    a("s_add_u32 s52, s52, s53")
    a("s_lshl_b32 s53, s44, 12")
    a("v_lshl_add_u32 v14, v3, 8, s53")
    a("v_xor_b32 v15, v2, v3")
    for s in range(4):
        a(f"v_xor_b32 v{8+s}, {4*s}, v15")
        a(f"v_lshl_add_u32 v{8+s}, v{8+s}, 4, v14")
    a("v_lshl_add_u32 v26, v2, 3, v28")
    a("v_lshl_add_u32 v26, v26, 5, v29")
    a(f"v_add_u32 v26, {LE}, v26")
    a("s_lshl_b32 s54, s42, 1")
    a("s_add_u32 s54, s54, s51")
    a("s_lshl_b32 s54, s54, 11")
    a(f"s_add_u32 s54, s54, {WS_KV}")
    a("s_lshl_b32 s50, s50, 8")
    a("s_add_u32 s54, s54, s50")
    a("v_and_b32 v12, 1, v2")
    a("v_lshrrev_b32 v13, 1, v2")
    a("v_lshlrev_b32 v14, 4, v3")
    a("s_setprio 1")
    a("s_waitcnt lgkmcnt(0)")
    a(f"s_mov_b64 s[{WS}:{WS+1}], s[34:35]")
    a(f"s_mov_b32 s{WS+2}, {0x400000 if (STAMP[0] or PROBE[0]) else WS_END}")
    a(f"s_mov_b32 s{WS+3}, 0x20000")
    ACC, FB, FA, D1, XB, XA = 32, 48, 80, 4, 112, 128

    def main_loop(role):
        groups = [[0], [1], [2], [3]] if opt.get("k1m", 0) == 0 else [[0, 1], [2], [3]]
        ne = {"q": 0, "k": 3, "v": 3, "r": 2}[role]
        for gi, cs in enumerate(groups):
            stamp(a, 3 + 2*gi)
            a("s_barrier")
            stamp(a, 4 + 2*gi)
            if gi == 0 and PROBE[0] == "k1b0":
                probe(a, "k1b0")
                a("s_waitcnt lgkmcnt(0)")
            items = []
            for c in cs:
                items += [("m", c, s) for s in range(8)]
                if ne:
                    items += [("x", c, s) for s in range(4)]

            def rd(it):
                k, c, s = it
                if k == "m":
                    a(f"ds_read_b128 {vr(FB+4*s,4)}, v{16+s} offset:{c*16384}")
                    a(f"ds_read_b64_tr_b16 {vr(FA+4*s,2)}, v24 offset:{c*16384 + s*2048}")
                    a(f"ds_read_b64_tr_b16 {vr(FA+4*s+2,2)}, v24 offset:{c*16384 + s*2048 + 512}")
                    return 3
                a(f"ds_read_b128 {vr(XB+4*s,4)}, v{8+s} offset:{c*16384}")
                if role == "r":
                    a(f"ds_read_b128 {vr(XA+4*s,4)}, v26 offset:{c*256 + s*64}")
                else:
                    a(f"ds_read_b64_tr_b16 {vr(XA+4*s,2)}, v26 offset:{c*4096 + s*1024}")
                    a(f"ds_read_b64_tr_b16 {vr(XA+4*s+2,2)}, v26 offset:{c*4096 + s*1024 + 128}")
                return ne

            cnt = [rd(it) for it in items[:4]]
            for n, (k, c, s) in enumerate(items):
                a(f"s_waitcnt lgkmcnt({sum(cnt[n+1:])})")
                if k == "m":
                    cc = "0" if (c == 0 and s == 0) else vr(ACC, 16)
                    a(f"v_mfma_f32_32x32x16_bf16 {vr(ACC,16)}, {vr(FA+4*s,4)}, {vr(FB+4*s,4)}, {cc}")
                else:
                    cc = "0" if (c == 0 and s == 0) else vr(D1, 4)
                    A, B = vr(XA+4*s, 4), vr(XB+4*s, 4)
                    if role == "v":
                        A, B = B, A
                    a(f"v_mfma_f32_16x16x32_bf16 {vr(D1,4)}, {A}, {B}, {cc}")
                if n + 4 < len(items):
                    cnt.append(rd(items[n + 4]))
        a(f"s_nop {11 if role == 'q' else 3}")
        for i in range(8):
            a(f"v_cvt_pk_bf16_f32 v{48+i}, v{ACC+2*i}, v{ACC+2*i+1}")
            if i == 3:
                a(f"buffer_store_dwordx4 v[48:51], v25, s[{WS}:{WS+3}], s52 offen")
        a(f"buffer_store_dwordx4 v[52:55], v25, s[{WS}:{WS+3}], s52 offen offset:128")

    def finish():
        probe(a, "k1end")
        probe_flush(a, WS, ("k1start", "k1b0", "k1end"))
        stamp(a, 11)
        if STAMP[0] == 1:
            a("s_waitcnt vmcnt(0)")
        stamp(a, 12)
        stamp_flush(a, WS, 44, WS_STAMP)
        a("s_endpgm")

    a("s_cmp_eq_u32 s43, 0")
    a("s_cbranch_scc1 K1_k")
    a("s_cmp_eq_u32 s43, 1")
    a("s_cbranch_scc1 K1_v")
    a("s_cmp_eq_u32 s43, 2")
    a("s_cbranch_scc1 K1_rg")
    main_loop("q")
    finish()
    a.label("K1_k")
    a("v_lshl_add_u32 v14, v12, 9, v14")
    a("v_lshl_add_u32 v14, v13, 3, v14")
    main_loop("k")
    a(f"v_cvt_pk_bf16_f32 v60, v{D1}, v{D1+1}")
    a(f"v_cvt_pk_bf16_f32 v61, v{D1+2}, v{D1+3}")
    for i in range(2):
        a(f"v_lshlrev_b32 v{D1+2*i}, 16, v{60+i}")
        a(f"v_and_b32 v{D1+2*i+1}, 0xffff0000, v{60+i}")
    for i in range(4):
        a(f"v_mul_f32 v{D1+i}, {fbits(0.25 * math.log2(math.e)):#x}, v{D1+i}")
    a(f"v_cvt_pk_bf16_f32 v60, v{D1}, v{D1+1}")
    a(f"v_cvt_pk_bf16_f32 v61, v{D1+2}, v{D1+3}")
    a(f"buffer_store_dwordx2 v[60:61], v14, s[{WS}:{WS+3}], s54 offen")
    finish()
    a.label("K1_v")
    a("v_lshl_add_u32 v14, v13, 9, v14")
    a("v_lshl_add_u32 v14, v12, 3, v14")
    main_loop("v")
    a(f"v_cvt_pk_bf16_f32 v60, v{D1}, v{D1+1}")
    a(f"v_cvt_pk_bf16_f32 v61, v{D1+2}, v{D1+3}")
    a(f"buffer_store_dwordx2 v[60:61], v14, s[{WS}:{WS+3}], s54 offen offset:1024")
    finish()
    a.label("K1_rg")
    a.c("router / gate: operand row 1 = gate_w, every other row = w_r")
    a("v_cmp_eq_u32 vcc, 1, v3")
    a("v_lshlrev_b32 v26, 4, v2")
    a(f"v_add_u32 v26, {LE}, v26")
    a("v_add_u32 v27, 1024, v26")
    a("v_cndmask_b32 v26, v26, v27, vcc")
    a("s_lshl_b32 s50, s42, 6")
    a("s_lshl_b32 s51, s44, 4")
    a("s_add_u32 s50, s50, s51")
    a("s_sub_u32 s51, 2047, s50")
    a("v_sub_u32 v30, s51, v0")
    a("v_lshlrev_b32 v31, 2, v0")
    a("s_lshl_b32 s51, s50, 2")
    a(f"s_add_u32 s51, s51, {WS_G}")
    a("s_lshr_b32 s50, s50, 2")
    a(f"s_add_u32 s50, s50, {WS_CAND - 60}")
    main_loop("r")
    a.c("lanes 0..15: D1[0] = router score, D1[1] = gate logit of token rb*64+16v+lane")
    a(f"v_cvt_pk_bf16_f32 v60, v{D1+1}, v{D1+1}")
    a("v_and_b32 v61, 0xffff0000, v60")
    a(f"v_mul_f32 v61, {fbits(-math.log2(math.e)):#x}, v61")
    a("v_exp_f32 v61, v61")
    a(f"v_ashrrev_i32 v63, 31, v{D1}")
    a("v_add_f32 v61, 1.0, v61")
    a("v_rcp_f32 v61, v61")
    a("v_or_b32 v63, 0x80000000, v63")
    a(f"v_xor_b32 v62, v{D1}, v63")
    a("v_and_b32 v62, 0xfffff800, v62")
    a("v_or_b32 v62, v62, v30")
    a("v_cvt_pk_bf16_f32 v61, v61, v61")
    a("v_and_b32 v61, 0xffff0000, v61")
    for sh in (1, 2, 4, 8):
        a(f"v_max_u32_dpp v62, v62, v62 row_shr:{sh} row_mask:0xf bank_mask:0xf")
        a("s_nop 1")
    a("s_mov_b64 exec, 0xffff")
    a(f"buffer_store_dword v61, v31, s[{WS}:{WS+3}], s51 offen")
    a("s_mov_b64 exec, 0x8000")
    a(f"buffer_store_dword v62, v31, s[{WS}:{WS+3}], s50 offen")
    finish()


PREC = 2560
WREC = 8 * PREC
L_Q = 0
L_PART = 8192
L_AFR = L_PART + 4 * WREC
L_FLG = L_AFR + 8192
L_MAX = L_FLG + 256
L_MOEW = L_MAX + 1024
MREC = 13 * 1024
L_HP = L_MOEW + 4 * MREC
L_HB = L_HP + 256
L_Y = L_HB + 128
K2_LDS = L_Y + 2048
NMOE_WAVES = 112 * 4
LOG2E = math.log2(math.e)


def gen_k2(a, opt):
    LOOP = 0
    NUP = opt.get("nup", 6)
    X, WS, OUT, DBG, MW, WD = 8, 12, 16, 20, 24, 28
    sW, sBROW, sIDX, sSLOW, sMOE, sV, sSL, sKEY, sROT, sQB, sKV, sBAD = 40, 41, 42, 44, 45, 46, 47, 48, 49, 43, 61, 62
    vL16, vPIDX, Z = 1, 5, 6
    Q, O, S0, S1, K, V = 8, 16, 32, 48, 64, 128
    vQA = vL16
    a.label("attn_kernel")
    a("s_cmp_ge_u32 s2, 256")
    a("s_cbranch_scc1 K2_exit")
    probe(a, "k2start")
    stamp_init(a)
    a(f"s_load_dwordx2 s[{WS}:{WS+1}], s[0:1], {KA['ws']}")
    a(f"s_load_dwordx2 s[{X}:{X+1}], s[0:1], {KA['x']}")
    a(f"s_load_dwordx2 s[{OUT}:{OUT+1}], s[0:1], {KA['out']}")
    a("v_lshrrev_b32 v12, 6, v0")
    a("v_and_b32 v0, 63, v0")
    a(f"v_readfirstlane_b32 s{sW}, v12")
    a(f"s_mov_b32 s{WS+2}, {0x400000 if (STAMP[0] or PROBE[0]) else WS_END}")
    a(f"s_mov_b32 s{WS+3}, 0x20000")
    a(f"v_lshlrev_b32 v{vL16}, 4, v0")
    a("s_and_b32 s50, s2, 7")
    a("s_lshr_b32 s51, s2, 3")
    a(f"s_lshl_b32 s{sBROW}, s50, 5")
    a(f"s_add_u32 s{sBROW}, s{sBROW}, s51")
    a(f"s_and_b32 s{sROT}, s51, {opt.get('rotm', 7)}")
    a(f"s_and_b32 s{sV}, s{sW}, 3")
    a(f"s_lshl_b32 s{sQB}, s{sBROW}, 13")
    a(f"s_mov_b32 s{sSLOW}, 0")
    a(f"s_cmp_ge_u32 s{sW}, 4")
    a("s_cbranch_scc1 K2_service")

    def late_srds():
        for r, n in ((X, 2097152), (OUT, 2097152)):
            a(f"s_mov_b32 s{r+2}, {n}")
            a(f"s_mov_b32 s{r+3}, 0x20000")

    LOC = 1
    a(f"s_lshl2_add_u32 s{sKV}, s50, s{sV}")
    a(f"s_lshl_b32 s{sKV}, s{sKV}, 12")
    a(f"s_lshl_b32 s52, s{sROT}, 10")
    a(f"s_add_u32 s52, s52, s{sQB}")
    a(f"s_add_u32 s53, s{sKV}, {WS_KV}")

    def csetup():
        a(f"s_mul_i32 s54, s{sV}, {WREC}")
        a("s_mov_b32 m0, s54")
        a("v_mov_b32 v3, 0")
        a(f"v_mov_b32 v{vPIDX}, 0xdddd")
        if opt.get("lowp", 0):
            a("s_setprio 1")
        a("v_and_b32 v14, 11, v0")
        a("v_cmp_eq_u32 vcc, 0, v14")
        a("v_mov_b32 v13, 0x3f803f80")
        a(f"v_mov_b64 {vr(Z,2)}, 0")
        a("v_cndmask_b32 v14, 0, v13, vcc")
        a("v_cndmask_b32 v15, 0, v13, vcc")
        a(f"v_mfma_f32_32x32x8_bf16 {vr(O,16)}, {vr(Z,2)}, {vr(Z,2)}, 0")
        for j in range(16):
            for i in range(2):
                a(f"v_mov_b64 {vr(V+8*j+4+2*i,2)}, v[14:15]")

    if opt.get("early", 1):
        csetup()
    a("s_waitcnt lgkmcnt(0)")
    stamp(a, 1)
    a(f"buffer_load_dwordx4 {vr(Q,4)}, v{vL16}, s[{WS}:{WS+3}], s52 offen")

    def kvload(j):
        L = []
        so = 53 if j < 2 else 32 + j // 2
        L += [f"buffer_load_dwordx4 {vr(K+4*j,4)}, v{vL16}, s[{WS}:{WS+3}], s{so} offen offset:{(j&1)*2048}",
              f"buffer_load_dwordx4 {vr(V+8*j,4)}, v{vL16}, s[{WS}:{WS+3}], s{so} offen offset:{(j&1)*2048+1024}"]
        return L

    def pair_off(m):
        a("s_add_u32 s55, s55, 1")
        a(f"s_lshl_b32 s56, s55, 14")
        a(f"s_add_u32 s56, s56, s{sKV}")
        a("s_and_b32 s56, s56, 0x1ffff")
        a(f"s_add_u32 s{32+m}, s56, {WS_KV}")
        a("s_cmp_eq_u32 s55, 7")
        a("s_cselect_b32 s55, 0, s55")

    for j in range(NUP):
        if j == 2:
            a("s_mul_i32 s55, s51, 37")
            a("s_lshr_b32 s55, s55, 8")
            a("s_mul_i32 s55, s55, 7")
            a("s_sub_u32 s55, s51, s55")
        if j >= 2 and j % 2 == 0:
            pair_off(j // 2)
        for x in kvload(j):
            a(x)
    for m in range((NUP + 1) // 2, 8):
        pair_off(m)
    late_srds()
    if not opt.get("early", 1):
        csetup()
    stamp(a, 2)
    a(f"s_waitcnt vmcnt({2*NUP - 1})")
    stamp(a, 3)
    probe(a, "k2go")
    a(f"v_mfma_f32_32x32x16_bf16 {vr(S0,16)}, {vr(K,4)}, {vr(Q,4)}, 0")
    a("s_nop 11")

    def pv(j, half, buf):
        return f"v_smfmac_f32_32x32x32_bf16 {vr(O,16)}, {vr(V+8*j+4*half,4)}, {vr(buf+8*half,8)}, v{vPIDX}"

    def publish(t):
        if opt.get("nopub"):
            return []
        return [f"ds_write_addtid_b32 v{O+r} offset:{L_PART + t*PREC + r*256}" for r in range(9)]

    def flag(t):
        if opt.get("noflag"):
            return "s_nop 0"
        return f"ds_write_addtid_b32 v{vPIDX} offset:{L_PART + t*PREC + 2304}"

    def coltile(t, first=False, last=False, rel=False):
        tp = 0 if rel else t - 1
        for j in range(16):
            cur, oth = (S0, S1) if j % 2 == 0 else (S1, S0)
            e = [f"v_exp_f32 v{cur+i}, v{cur+i}" for i in range(16)]
            qk = [f"v_mfma_f32_32x32x16_bf16 {vr(oth,16)}, {vr(K+4*((j+1)&15),4)}, {vr(Q,4)}, 0"]
            if last and j == 15:
                qk = []
            pv1 = [pv((j - 1) & 15, 1, oth)]
            pv0 = [pv(j, 0, cur)]
            pre, post, late = [], [], []
            if first:
                if j == 0:
                    pv1 = []
                issued = min(16, NUP + j)
                need = 2 * (j + 1) + 1 if j < 15 else 32
                pre = [f"s_waitcnt vmcnt({2*issued - need})"]
                post = [f"v_permlane16_swap_b32 v{V+8*j+i}, v{V+8*j+4+i}" for i in range(4)]
                if NUP + j < 16:
                    late = kvload(NUP + j)
                if not opt.get("skew"):
                    if NUP + j == 16:
                        late = ["s_barrier"]
                elif NUP + j in (16, 17):
                    k = NUP + j - 16
                    late = [f"s_bitcmp{k}_b32 s{sW}, 1", f"s_cbranch_scc0 K2_nb{k}", "s_barrier", f"K2_nb{k}:"]
            if j == 14 and not last and not opt.get("noq"):
                post = post + [f"ds_read_b128 {vr(Q,4)}, v{vQA} offset:{(1 if rel else t + 1)*1024}"]
            if j == 15 and not last:
                pre = pre + ["s_waitcnt lgkmcnt(0)"]
            zero = [f"v_mfma_f32_32x32x8_bf16 {vr(O,16)}, {vr(Z,2)}, {vr(Z,2)}, 0"]
            ILV = opt.get("ilv", 1)
            P = publish(tp)
            if not first and j == 0:
                if ILV == 0:
                    seq = e[0:2] + pv1 + e[2:5] + qk + e[5:14] + P + zero + e[14:16]
                elif ILV == 1:
                    seq = e[0:2] + pv1 + e[2:5] + qk + e[5:13] + P[0:3] + e[13:14] + P[3:6] + e[14:15] + P[6:9] + zero + e[15:16]
                elif ILV == 2:
                    seq = e[0:2] + pv1 + e[2:5] + qk + e[5:13] + P[0:2] + e[13:14] + P[2:4] + e[14:15] + P[4:6] + e[15:16] + P[6:8]
                elif ILV == 3:
                    cp = [f"v_mov_b64 v[12:13], {vr(O+4,2)}", f"v_mov_b64 v[14:15], {vr(O+6,2)}", f"v_mov_b32 v4, v{O+8}"]
                    seq = e[0:2] + pv1 + e[2:5] + qk + e[5:13] + P[0:1] + cp[0:1] + P[1:2] + cp[1:2] + e[13:14] + P[2:3] + cp[2:3] + e[14:15] + P[3:4] + zero + e[15:16]
            elif not first and j == 1:
                if ILV == 2:
                    seq = e[0:1] + P[8:9] + zero + e[1:4] + [pv(0, 0, oth)] + e[4:7] + pv1 + e[7:10] + qk + \
                        [flag(tp)] + e[10:13] + pv0 + e[13:16] + ["s_nop 3"]
                elif ILV == 3:
                    late5 = [x.replace(f"v{O+4+i} ", f"v{[12,13,14,15,4][i]} ") for i, x in enumerate(P[4:9])]
                    seq = e[0:3] + [pv(0, 0, oth)] + e[3:6] + pv1 + e[6:9] + qk + late5[0:1] + e[9:10] + late5[1:2] + e[10:11] + late5[2:3] + \
                        e[11:12] + pv0 + e[12:13] + late5[3:4] + e[13:14] + late5[4:5] + e[14:15] + [flag(tp)] + e[15:16]
                elif ILV == 1:
                    seq = e[0:3] + [pv(0, 0, oth)] + e[3:6] + pv1 + e[6:9] + qk + \
                        [flag(tp)] + e[9:12] + pv0 + e[12:16] + ["s_nop 2"]
                else:
                    seq = e[0:2] + [pv(0, 0, oth)] + e[2:5] + pv1 + e[5:8] + qk + \
                        [flag(tp)] + e[8:11] + pv0 + e[11:16] + ["s_nop 1"]
            else:
                seq = e[0:2] + pv1 + e[2:5] + pre + qk + post + e[5:10] + pv0 + e[10:13] + late + e[13:16]
            if opt.get("fine") and t == 3 and j in (0, 2, 4, 8, 14):
                stamp(a, {0: 6, 2: 7, 4: 8, 8: 9, 14: 10}[j])
            if opt.get("fine") and t == 4 and j == 0:
                stamp(a, 11)
            for x in seq:
                a(x)

    coltile(0, first=True)
    probe(a, "k2fp")
    stamp(a, 4)
    if LOOP:
        a("s_mov_b32 s55, 1")
        a(f"v_add_u32 v{vQA}, 1024, v{vQA}")
        a(".p2align 6")
        a.label("K2_cloop")
        coltile(1, rel=True)
        a(f"s_add_u32 m0, m0, {PREC}")
        a(f"v_add_u32 v{vQA}, 1024, v{vQA}")
        a("s_add_u32 s55, s55, 1")
        a("s_cmp_lt_u32 s55, 8")
        a("s_cbranch_scc1 K2_cloop")
        a(pv(15, 1, S1))
        a("s_nop 11")
        for x in publish(0) + [flag(0)]:
            a(x)
    else:
        for t in range(1, 8):
            coltile(t, last=(t == 7))
        a("s_nop 1")
        a(pv(15, 1, S1))
        a("s_nop 11")
        for x in publish(7):
            a(x)
    a.label("K2_ctail")
    a("s_waitcnt lgkmcnt(0)")
    stamp(a, 5)
    probe(a, "k2cend")
    a("s_barrier")
    a("s_barrier")
    a.label("K2_final")
    a(f"v_mov_b32 v13, {L_FLG}")
    a("s_waitcnt lgkmcnt(0)")
    a("s_barrier")
    a("ds_read_b32 v14, v13 offset:48")
    a("s_waitcnt lgkmcnt(0)")
    a("v_readfirstlane_b32 s53, v14")
    a("s_nop 0")
    a(f"s_cmp_gt_u32 s53, s{sSLOW}")
    a("s_cbranch_scc1 K2_unsafe")
    probe(a, "k2end")
    if PROBE[0]:
        a(f"s_cmp_ge_u32 s{sW}, 4")
        a("s_cbranch_scc1 K2_exit")
    probe_flush(a, WS, ("k2start", "k2go", "k2fp", "k2cend", "k2end"))
    stamp(a, 12)
    if STAMP[0] == 1:
        a("s_waitcnt vmcnt(0)")
    stamp(a, 13)
    stamp_flush(a, WS, sW, WS_STAMP + 0x20000)
    a.label("K2_exit")
    a("s_endpgm")

    vOIDX, vEPO, vAW, vONE, vFA, vF1, vRS, vFE, vRS2 = 2, 3, 4, 5, 6, 7, 8, 111, 110
    G, TT = 10, 12
    ACC, PR, RAW, AF, XR, YR = 16, 48, 64, 104, 112, 120
    BUF = [128, 192]
    LG, LXS, LD, D1, TM, MA = 16, 48, 80, 96, 100, 112
    ABL = opt.get("abl", 0)
    a.label("K2_service")
    late_srds()
    a(f"s_load_dwordx4 s[32:35], s[0:1], {KA['wg']}")
    a(f"s_load_dwordx2 s[{WD}:{WD+1}], s[0:1], {KA['wd']}")
    for r in (WD, MW):
        a(f"s_mov_b32 s{r+2}, 1835008")
        a(f"s_mov_b32 s{r+3}, 0x20000")
    if opt.get("moeeven", 1):
        a(f"s_mul_i32 s{sSL}, s50, 14")
        a(f"s_add_u32 s{sSL}, s{sSL}, s51")
        a("s_cmp_lt_u32 s51, 28")
        a(f"s_cselect_b32 s{sMOE}, {0 if ABL & 4 else 1}, 0")
        a(f"s_andn2_b32 s{sMOE}, s{sMOE}, s50")
    else:
        a(f"s_mul_i32 s{sSL}, s50, 14")
        a(f"s_add_u32 s{sSL}, s{sSL}, s51")
        a("s_cmp_lt_u32 s51, 14")
        a(f"s_cselect_b32 s{sMOE}, {0 if ABL & 4 else 1}, 0")

    def code_prefetch():
        a("s_getpc_b64 s[56:57]")
        a.label("K2_pc")
        a("s_sub_u32 s56, s56, K2_pc - attn_kernel")
        a("s_subb_u32 s57, s57, 0")
        a(f"s_lshl_b32 s52, s{sV}, 13")
        a("v_lshl_add_u32 v126, v0, 7, s52")
        a("v_min_u32 v126, K2_unsafe - attn_kernel, v126")
        a("global_load_dword v127, v126, s[56:57]")

    if opt.get("cpf", 0) == 1:
        code_prefetch()
    clear_flags(a)
    a("v_and_b32 v16, 2, v0")
    a("v_cmp_ne_u32 vcc, 0, v16")
    a("v_mov_b32 v16, 0x4444")
    a("v_mov_b32 v17, 0xeeee")
    a(f"v_mov_b32 v{vONE}, 1")
    a(f"v_cndmask_b32 v{vOIDX}, v16, v17, vcc")
    a("v_lshrrev_b32 v18, 4, v0")
    a("v_and_b32 v19, 15, v0")
    a("v_lshlrev_b32 v16, 4, v19")
    a(f"v_lshl_add_u32 v{vEPO}, v18, 11, v16")
    a("v_and_b32 v20, 3, v0")
    a(f"v_mul_u32_u24 v{vFA}, {WREC}, v20")
    a(f"v_add_u32 v{vFA}, {L_PART + 2304}, v{vFA}")
    a("v_lshlrev_b32 v16, 2, v20")
    a(f"v_add_u32 v{vFE}, {L_FLG}, v16")
    a(f"v_mov_b32 v{vF1}, {L_FLG}")
    a("v_bfe_u32 v16, v0, 1, 1")
    a("v_lshl_add_u32 v16, v16, 2, v18")
    a("v_bfe_u32 v21, v0, 2, 2")
    a("v_lshl_add_u32 v16, v16, 2, v21")
    a("v_and_b32 v17, 1, v0")
    a("v_lshl_add_u32 v16, v16, 1, v17")
    a("v_lshlrev_b32 v16, 2, v16")
    a(f"v_add_u32 v{vRS}, {L_PART}, v16")
    a(f"v_add_u32 v{vRS2}, {L_PART + 2*WREC}, v16")
    a("v_bfe_u32 v16, v0, 1, 4")
    a("v_lshrrev_b32 v22, 5, v0")
    a("v_lshl_add_u32 v16, v16, 1, v22")
    a("v_lshl_add_u32 v16, v16, 1, v17")
    a(f"s_lshl_b32 s52, s{sV}, 2")
    a(f"s_add_u32 s52, s52, {L_AFR + 7*1024}")
    a(f"v_lshl_add_u32 v{vAW}, v16, 4, s52")
    a(f"v_add_u32 v9, {L_AFR}, v{vL16}")
    a(f"v_lshrrev_b32 v{MA}, 1, v0")
    a(f"v_mul_u32_u24 v{MA}, 3584, v{MA}")
    a(f"v_lshl_add_u32 v{MA}, v17, 4, v{MA}")
    a(f"v_lshrrev_b32 v{MA+1}, 2, v0")
    a(f"v_lshlrev_b32 v{MA+1}, 10, v{MA+1}")
    a(f"v_lshl_add_u32 v{MA+1}, v20, 4, v{MA+1}")
    a(f"v_lshlrev_b32 v{MA+3}, 2, v0")
    a(f"s_mul_i32 s58, s{sV}, {MREC}")
    a(f"s_add_u32 s58, s58, {L_MOEW}")
    a(f"s_and_b32 s52, s{sV}, 1")
    a("s_lshl_b32 s52, s52, 9")
    a("s_add_u32 s52, s52, s58")
    a(f"v_lshl_add_u32 v{TM}, v18, 4, s52")
    a("s_mov_b32 s52, s58")
    a("v_lshlrev_b32 v20, 3, v20")
    a(f"v_lshl_add_u32 v{TM+1}, v18, 3, v21")
    a(f"v_lshl_add_u32 v{TM+1}, v{TM+1}, 5, v20")
    a(f"v_add_u32 v{TM+1}, s52, v{TM+1}")
    a(f"v_lshl_add_u32 v{TM+2}, v22, 3, v21")
    a(f"v_lshl_add_u32 v{TM+2}, v{TM+2}, 6, v20")
    a("v_and_b32 v16, 1, v18")
    a(f"v_lshl_add_u32 v{TM+2}, v16, 5, v{TM+2}")
    a(f"v_add_u32 v{TM+2}, s52, v{TM+2}")
    a(f"s_lshl_b32 s52, s{sV}, 6")
    a(f"s_add_u32 s52, s52, {L_HP}")
    a(f"v_lshl_add_u32 v{TM+3}, v18, 4, s52")
    a(f"s_lshl_b32 s52, s{sV}, 2")
    a(f"v_add_u32 v{TM+4}, s52, v{vF1}")
    a(f"v_lshlrev_b32 v{TM+5}, 2, v19")
    a(f"v_add_u32 v{TM+5}, {L_HP}, v{TM+5}")
    a(f"s_lshl_b32 s52, s{sV}, 5")
    a(f"s_add_u32 s52, s52, {L_HB}")
    a(f"v_lshl_add_u32 v{TM+6}, v19, 1, s52")
    a(f"v_lshl_add_u32 v{TM+7}, v22, 4, s52")
    a(f"v_mov_b32 v{TM+8}, 0")
    if opt.get("mtouch", 0):
        a("v_lshrrev_b32 v118, 2, v0")
        a("v_mul_u32_u24 v118, 3584, v118")
        a("v_lshl_add_u32 v118, v20, 4, v118")
        a("s_mul_i32 s36, s50, 448")
        a("s_andn2_b32 s36, s36, 127")
        a("s_lshl_b32 s39, s51, 1")
        a(f"s_and_b32 s38, s{sV}, 1")
        a("s_add_u32 s39, s39, s38")
        a("s_and_b32 s39, s39, 31")
        a(f"s_mul_i32 s37, s39, {16*3584}")
        a("s_add_u32 s36, s36, s37")
        a("v_min_u32 v117, 55, v0")
        a("v_lshlrev_b32 v117, 7, v117")
        a(f"s_mul_i32 s37, s50, {224*1024}")
        a(f"s_mul_i32 s38, s39, {56*128}")
        a("s_add_u32 s37, s37, s38")
    a("v_lshlrev_b32 v12, 3, v0")
    a(f"s_mov_b32 s52, {WS_CAND}")
    a(f"s_lshl_b32 s53, s{sV}, 1")
    a(f"s_add_u32 s54, s53, s{sROT}")
    a(f"s_lshl_b32 s53, s53, 10")
    a("s_waitcnt lgkmcnt(0)")
    stamp(a, 1)
    a(f"buffer_load_dwordx2 v[14:15], v12, s[{WS}:{WS+3}], s52 offen")
    for e in range(2):
        a(f"s_add_u32 s55, s54, {e}")
        a("s_and_b32 s55, s55, 7")
        a("s_lshl_b32 s55, s55, 10")
        a(f"s_add_u32 m0, s53, {L_Q + e*1024}")
        a(f"s_add_u32 s55, s55, s{sQB}")
        a(f"buffer_load_dwordx4 v{vL16}, s[{WS}:{WS+3}], s55 offen lds")
    a(f"s_bitcmp1_b32 s{sW}, 1")
    a(f"s_cselect_b64 s[{MW}:{MW+1}], s[34:35], s[32:33]")
    a(f"s_setprio {opt.get('sprio', 2)}")
    a("s_waitcnt vmcnt(2)")
    argmax(a, 14, sKEY, sIDX)
    a(f"s_lshr_b32 s52, s{sIDX}, 3")
    a(f"s_cmp_eq_u32 s52, s{sBROW}")
    a(f"s_cselect_b32 s{sMOE}, 0, s{sMOE}")
    a("s_cmp_eq_u32 s2, 248")
    a("s_cbranch_scc0 K2_nospare")
    a("s_lshr_b32 s53, s52, 5")
    a("s_and_b32 s52, s52, 31")
    a(f"s_mul_i32 s{sSL}, s53, 14")
    a(f"s_add_u32 s{sSL}, s{sSL}, s52")
    a(f"s_cmp_lt_u32 s52, {28 if opt.get('moeeven', 1) else 14}")
    a(f"s_cselect_b32 s{sMOE}, {0 if ABL & 4 else 1}, 0")
    if opt.get("moeeven", 1):
        a(f"s_andn2_b32 s{sMOE}, s{sMOE}, s53")
    a.label("K2_nospare")
    a("s_waitcnt vmcnt(0)")
    stamp(a, 2)
    a("s_barrier")
    stamp(a, 3)
    if opt.get("mtouch", 0):
        a("s_cmp_lt_u32 s51, 16")
        a("s_cbranch_scc1 K2_t2")
        a(f"buffer_load_dword v119, v118, s[{MW}:{MW+3}], s36 offen")
        a(f"s_cmp_ge_u32 s{sV}, 2")
        a("s_cbranch_scc1 K2_t2")
        a(f"buffer_load_dword v116, v117, s[{WD}:{WD+3}], s37 offen")
        a.label("K2_t2")
    if opt.get("cpf", 0) == 2:
        code_prefetch()

    def spin(addr, off, tag, vt, sleep):
        a("s_mov_b32 s60, 0")
        a.label(f"K2_spin_{tag}")
        a(f"ds_read_b32 v{vt}, v{addr} offset:{off}")
        a("s_waitcnt lgkmcnt(0)")
        a(f"v_cmp_eq_u32 vcc, 0, v{vt}")
        a(f"s_cbranch_vccz K2_spun_{tag}")
        a(f"s_sleep {sleep}")
        a("s_add_u32 s60, s60, 1")
        a("s_cmp_lt_u32 s60, 0x400000")
        a(f"s_cbranch_scc1 K2_spin_{tag}")
        a.label(f"K2_spun_{tag}")

    WP = opt.get("wpace", 12)

    def wo_loads(t):
        if ABL & 1:
            return
        a(f"s_add_u32 s52, s{sROT}, {t}")
        a("s_and_b32 s52, s52, 7")
        a("s_lshl_b32 s52, s52, 16")
        a("s_add_u32 s52, s52, s54")
        for h in range(4):
            a(f"s_waitcnt vmcnt({WP})")
            for i in range(4):
                a(f"buffer_load_dwordx4 {vr(BUF[t%2]+h*16+i*4,4)}, v{vL16}, s[{WS}:{WS+3}], s52 offen offset:{i*1024}")
            if h < 3:
                a("s_add_u32 s52, s52, 4096")

    a(f"s_cmp_eq_u32 s{sMOE}, 0")
    a("s_cbranch_scc1 K2_project")
    a(f"s_lshl_b32 s54, s{sV}, 14")
    a(f"s_add_u32 s54, s54, {WS_WOF}")
    if opt.get("wfirst", 1):
        wo_loads(0)
        wo_loads(1)
        a("s_waitcnt vmcnt(4)")
    a(f"s_and_b32 s55, s{sV}, 1")
    a(f"s_mul_i32 s53, s55, {256*3584}")
    a(f"s_lshl_b32 s52, s{sSL}, 5")
    a("s_add_u32 s53, s53, s52")
    a(f"s_lshl_b32 s56, s{sSL}, 1")
    MP = opt.get("mpace", 3)
    a(f"s_lshl_b32 s57, s{sIDX}, 10")
    a("s_add_u32 m0, s58, 12288")
    a("s_nop 0")
    a(f"buffer_load_dwordx4 v{vL16}, s[{X}:{X+3}], s57 offen lds")
    for i in range(8):
        a(f"s_add_u32 s57, s56, {i}")
        a("s_and_b32 s57, s57, 7")
        a("s_lshl_b32 s59, s57, 10")
        a("s_add_u32 m0, s59, s58")
        a(f"s_mul_i32 s57, s57, {32*3584}")
        a("s_add_u32 s57, s57, s53")
        if i >= MP:
            a(f"s_waitcnt vmcnt({MP - 1})")
        a(f"buffer_load_dwordx4 v{MA}, s[{MW}:{MW+3}], s57 offen lds")
    a(f"s_lshl_b32 s53, s{sSL}, 14")
    a(f"s_lshl_b32 s52, s{sV}, 8")
    a("s_add_u32 s53, s53, s52")
    a(f"s_waitcnt vmcnt({MP - 1})")
    for i in range(4):
        a(f"s_add_u32 m0, s58, {8192 + i*1024}")
        a("s_nop 0" if i == 0 else "s_add_u32 s53, s53, 64")
        a(f"buffer_load_dwordx4 v{MA+1}, s[{WD}:{WD+3}], s53 offen lds")
    stamp(a, 9)
    a("s_waitcnt vmcnt(4)")
    for i in range(8):
        a(f"ds_read_b64_tr_b16 {vr(LG+4*i,2)}, v{TM+1} offset:{i*1024}")
        a(f"ds_read_b64_tr_b16 {vr(LG+4*i+2,2)}, v{TM+1} offset:{i*1024 + 128}")
        a(f"ds_read_b128 {vr(LXS+4*i,4)}, v{TM} offset:{12288 + i*64}")
        if i in (3, 7):
            a("s_waitcnt lgkmcnt(0)")
    stamp(a, 10)
    for i in range(8):
        cc = "0" if i == 0 else vr(D1, 4)
        a(f"v_mfma_f32_16x16x32_bf16 {vr(D1,4)}, {vr(LG+4*i,4)}, {vr(LXS+4*i,4)}, {cc}")
        if opt.get("gap", 0):
            a(f"s_nop {opt.get('gap', 6) - 1}")
    a("s_waitcnt vmcnt(0)")
    for i in range(4):
        a(f"ds_read_b64_tr_b16 {vr(LD+4*i,2)}, v{TM+2} offset:{8192 + i*1024}")
        a(f"ds_read_b64_tr_b16 {vr(LD+4*i+2,2)}, v{TM+2} offset:{8192 + i*1024 + 256}")
    a(f"ds_write_b128 v{TM+3}, {vr(D1,4)}")
    a(f"ds_write_b32 v{TM+4}, v{vONE} offset:32")
    spin(vFE, 32, "L", TM + 9, opt.get("sll", 1))
    a(f"ds_read2_b32 {vr(D1,2)}, v{TM+5} offset0:0 offset1:32")
    a(f"ds_read2_b32 {vr(D1+2,2)}, v{TM+5} offset0:16 offset1:48")
    a("s_waitcnt lgkmcnt(0)")
    a(f"v_pk_add_f32 {vr(D1,2)}, {vr(D1,2)}, {vr(D1+2,2)}")
    a(f"v_cvt_pk_bf16_f32 v{D1}, v{D1}, v{D1+1}")
    a(f"v_lshlrev_b32 v{D1+1}, 16, v{D1}")
    a(f"v_mul_f32 v{D1+2}, {fbits(-LOG2E):#x}, v{D1+1}")
    a(f"v_exp_f32 v{D1+2}, v{D1+2}")
    a(f"v_and_b32 v{D1}, 0xffff0000, v{D1}")
    a(f"v_add_f32 v{D1+2}, 1.0, v{D1+2}")
    a(f"v_rcp_f32 v{D1+2}, v{D1+2}")
    a("s_nop 0")
    a(f"v_mul_f32 v{D1+1}, v{D1+1}, v{D1+2}")
    a(f"v_cvt_pk_bf16_f32 v{D1+1}, v{D1+1}, v{D1+1}")
    a(f"v_and_b32 v{D1+1}, 0xffff0000, v{D1+1}")
    a(f"v_mul_f32 v{D1}, v{D1}, v{D1+1}")
    a(f"v_cvt_pk_bf16_f32 v{D1}, v{D1}, v{D1}")
    a(f"ds_write_b16 v{TM+6}, v{D1}")
    a(f"ds_read_b128 {vr(D1,4)}, v{TM+7}")
    a(f"s_lshl_b32 s53, s{sV}, 9")
    a(f"s_add_u32 s53, s53, {WS_YACC}")
    a(f"s_and_b32 s52, s{sSL}, {NREP-1}")
    a("s_lshl_b32 s52, s52, 11")
    a("s_add_u32 s53, s53, s52")
    a("s_waitcnt lgkmcnt(0)")
    DD = [16, 32, 48, 64]
    for i in range(4):
        a(f"v_mfma_f32_32x32x16_bf16 {vr(DD[i],16)}, {vr(D1,4)}, {vr(LD+4*i,4)}, 0")
        if i < 3 and opt.get("gap2", 0):
            a(f"s_nop {opt.get('gap2') - 1}")
    a("s_nop 15")
    a(f"v_permlane32_swap_b32 v{DD[0]}, v{DD[1]}")
    a(f"v_permlane32_swap_b32 v{DD[2]}, v{DD[3]}")
    a(f"buffer_atomic_add_f32 v{DD[0]}, v{MA+3}, s[{WS}:{WS+3}], s53 offen")
    a(f"buffer_atomic_add_f32 v{DD[2]}, v{MA+3}, s[{WS}:{WS+3}], s53 offen offset:256")
    a(f"s_lshl_b32 s52, s{sSL}, 2")
    a(f"s_add_u32 s52, s52, s{sV}")
    a("s_lshl_b32 s52, s52, 7")
    a(f"s_add_u32 s52, s52, {WS_YFLG}")
    stamp(a, 11)
    a("s_waitcnt vmcnt(0)")
    a("s_mov_b64 exec, 1")
    a(f"buffer_store_dword v{vONE}, v{TM+8}, s[{WS}:{WS+3}], s52 offen sc1")
    a("s_mov_b64 exec, -1")

    if opt.get("wfirst", 1):
        a("s_branch K2_loaded")

    lo, hi = fbits(2.0 ** -32), fbits(2.0 ** 120)

    def check(l):
        a(f"v_subrev_u32 v{l}, {lo:#x}, v{l}")
        a(f"v_cmp_lt_u32 vcc, {hi - lo:#x}, v{l}")

    def reduce_norm(t):
        u0 = t * PREC // 256
        for hw in range(2):
            a(f"ds_read2st64_b32 {vr(RAW+32+2*hw,2)}, v{[vRS, vRS2][hw]} offset0:{u0+8} offset1:{u0+8+WREC//256}")
        for w in range(4):
            if w == 3:
                a("s_waitcnt lgkmcnt(8)")
            for i in range(4):
                o = u0 + (w & 1) * (WREC // 256) + 2 * i
                a(f"ds_read2st64_b32 {vr(RAW+8*w+2*i,2)}, v{[vRS, vRS2][w >> 1]} offset0:{o} offset1:{o+1}")
        a("s_waitcnt lgkmcnt(0)")
        a(f"v_pk_add_f32 {vr(RAW+32,2)}, {vr(RAW+32,2)}, {vr(RAW+34,2)}")
        for i in range(4):
            a(f"v_pk_add_f32 {vr(RAW+2*i,2)}, {vr(RAW+2*i,2)}, {vr(RAW+8+2*i,2)}")
        a(f"v_add_f32 v{RAW+32}, v{RAW+32}, v{RAW+33}")
        for i in range(4):
            a(f"v_pk_add_f32 {vr(RAW+16+2*i,2)}, {vr(RAW+16+2*i,2)}, {vr(RAW+24+2*i,2)}")
        a(f"v_rcp_f32 v{RAW+34}, v{RAW+32}")
        check(RAW + 32)
        for i in range(4):
            a(f"v_pk_add_f32 {vr(RAW+2*i,2)}, {vr(RAW+2*i,2)}, {vr(RAW+16+2*i,2)}")
        a(f"s_or_b64 s[{sBAD}:{sBAD+1}], s[{sBAD}:{sBAD+1}], vcc")
        for i in range(4):
            a(f"v_pk_mul_f32 {vr(RAW+2*i,2)}, {vr(RAW+2*i,2)}, {vr(RAW+34,2)} op_sel_hi:[1,0]")
        for i in range(4):
            a(f"v_cvt_pk_bf16_f32 v{AF+i}, v{RAW+2*i}, v{RAW+2*i+1}")

    def duty(t):
        a(f"s_cmp_eq_u32 s{sV}, {t & 3}")
        a(f"s_cbranch_scc0 K2_nod{t}")
        spin(vFA, t * PREC, f"P{t}", RAW, opt.get("sl1", 4))
        reduce_norm(t)
        a(f"ds_write_b128 v9, {vr(AF,4)} offset:{t*1024}")
        a(f"ds_write_b32 v{vF1}, v{vONE} offset:{4*t}")
        a.label(f"K2_nod{t}")

    a.label("K2_project")
    stamp(a, 4)
    if ABL & 8:
        a("s_branch K2_ctail")
    a(f"s_lshl_b32 s54, s{sV}, 14")
    a(f"s_add_u32 s54, s54, {WS_WOF}")
    wo_loads(0)
    wo_loads(1)
    a.label("K2_loaded")
    if opt.get("lowp", 0):
        a(f"s_mul_i32 s52, s{sV}, {WREC}")
        a(f"s_add_u32 s52, s52, {L_PART + 2304}")
        a("v_mov_b32 v108, s52")
    a(f"v_mov_b64 {vr(TT,2)}, 0")
    a("s_nop 1")
    for i in range(2):
        a(f"v_mfma_f32_32x32x8_bf16 {vr(ACC+16*i,16)}, {vr(TT,2)}, {vr(TT,2)}, 0")
        a("s_nop 15")
    a(f"s_mov_b64 s[{sBAD}:{sBAD+1}], 0")
    for t in range(8):
        if t < 7:
            if t == 0:
                duty(0)
            spin(vF1, 4 * t, f"A{t}", RAW, opt.get("sl2", 4))
            a(f"ds_read_b128 {vr(AF,4)}, v9 offset:{t*1024}")
            LP = opt.get("lowp", 0)
            if t < LP:
                a(f"ds_read_b32 v{RAW}, v108 offset:{(t+1)*PREC}")
                a(f"s_waitcnt vmcnt(16) lgkmcnt(0)")
                a(f"v_cmp_eq_u32 vcc, 0, v{RAW}")
                a(f"s_cbranch_vccz K2_hp{t}")
                a("s_setprio 0")
                for i in range(opt.get("nv", 3)):
                    a("v_nop")
                for u in range(8):
                    a(f"v_smfmac_f32_16x16x64_bf16 {vr(ACC+4*u,4)}, {vr(AF,4)}, {vr(BUF[t%2]+u*8,8)}, v{vOIDX}")
                a("s_setprio 2")
                a(f"s_branch K2_pd{t}")
                a.label(f"K2_hp{t}")
            else:
                a(f"s_waitcnt vmcnt(16) lgkmcnt(0)")
        else:
            u0 = 7 * PREC // 256
            a(f"s_lshl_b32 s52, s{sV}, 9")
            a(f"v_lshlrev_b32 v{TT}, 2, v0")
            a(f"v_add_u32 v{TT}, {L_PART}, v{TT}")
            a(f"v_add_u32 v{TT+1}, {2*WREC}, v{TT}")
            a(f"v_add_u32 v{TT+2}, s52, v{TT}")
            a(f"v_add_u32 v{TT+3}, s52, v{TT+1}")
            a("s_waitcnt vmcnt(0)")
            stamp(a, 6)
            a("s_barrier")
            stamp(a, 7)
            for hw in range(2):
                a(f"ds_read2st64_b32 {vr(RAW+8+2*hw,2)}, v{TT+hw} offset0:{u0+8} offset1:{u0+8+WREC//256}")
            for w in range(4):
                o = u0 + (w & 1) * (WREC // 256)
                a(f"ds_read2st64_b32 {vr(RAW+2*w,2)}, v{TT+2+(w>>1)} offset0:{o} offset1:{o+1}")
            a("s_waitcnt lgkmcnt(4)")
            a(f"v_pk_add_f32 {vr(RAW+8,2)}, {vr(RAW+8,2)}, {vr(RAW+10,2)}")
            a(f"v_add_f32 v{RAW+8}, v{RAW+8}, v{RAW+9}")
            a(f"v_rcp_f32 v{RAW+10}, v{RAW+8}")
            a("s_waitcnt lgkmcnt(0)")
            a(f"v_pk_add_f32 {vr(RAW,2)}, {vr(RAW,2)}, {vr(RAW+2,2)}")
            a(f"v_pk_add_f32 {vr(RAW+4,2)}, {vr(RAW+4,2)}, {vr(RAW+6,2)}")
            a(f"v_pk_add_f32 {vr(RAW,2)}, {vr(RAW,2)}, {vr(RAW+4,2)}")
            a(f"v_pk_mul_f32 {vr(RAW,2)}, {vr(RAW,2)}, {vr(RAW+10,2)} op_sel_hi:[1,0]")
            a(f"v_cvt_pk_bf16_f32 v{RAW}, v{RAW}, v{RAW+1}")
            a(f"ds_write_b32 v{vAW}, v{RAW}")
            check(RAW + 8)
            a("s_waitcnt lgkmcnt(0)")
            a("s_barrier")
            a(f"ds_read_b128 {vr(AF,4)}, v9 offset:{7*1024}")
            a(f"s_or_b64 s[{sBAD}:{sBAD+1}], s[{sBAD}:{sBAD+1}], vcc")
            a("s_waitcnt lgkmcnt(0)")
        for u in range(8):
            if not (ABL & 2):
                a(f"v_smfmac_f32_16x16x64_bf16 {vr(ACC+4*u,4)}, {vr(AF,4)}, {vr(BUF[t%2]+u*8,8)}, v{vOIDX}")
                if t < 7 and u < 7 and opt.get("gap", 0):
                    a(f"s_nop {opt.get('gap', 6) - 1}")
        if t < opt.get("lowp", 0):
            a.label(f"K2_pd{t}")
        TR = opt.get("tres", 3)
        if t < 5:
            duty(t + 1)
        if t == TR:
            a(f"s_lshl_b32 s55, s{sBROW}, 13")
            a(f"s_lshl_b32 s53, s{sV}, 8")
            a("s_add_u32 s55, s55, s53")
            a(f"v_lshrrev_b32 v{TT+1}, 4, v0")
            a(f"v_lshlrev_b32 v{TT+1}, 3, v{TT+1}")
            a(f"s_lshl_b32 s52, s{sBROW}, 5")
            a(f"s_add_u32 s52, s52, {WS_G}")
            a(f"buffer_load_dwordx2 {vr(G,2)}, v{TT+1}, s[{WS}:{WS+3}], s52 offen")
            for rr in range(2):
                a(f"buffer_load_dwordx4 {vr(XR+4*rr,4)}, v{vEPO}, s[{X}:{X+3}], s55 offen offset:{rr*1024}")
        if t < 6:
            wo_loads(t + 2)
        if t == 5:
            duty(6)
        if t == TR:
            a("s_waitcnt vmcnt(16)")
            for rr in range(2):
                for h in range(4):
                    a(f"v_lshlrev_b32 v{PR+4*h+rr}, 16, v{XR+4*rr+h}")
                    a(f"v_and_b32 v{PR+4*h+2+rr}, 0xffff0000, v{XR+4*rr+h}")
            a(f"s_lshr_b32 s52, s{sIDX}, 3")
            a(f"s_cmp_eq_u32 s52, s{sBROW}")
            if not (ABL & 4):
                a("s_cbranch_scc1 K2_owner")
            a.label("K2_owned")
            a(f"v_pk_add_f32 {vr(TT,2)}, {vr(G,2)}, 1.0 op_sel_hi:[1,0] neg_lo:[1,0] neg_hi:[1,0]")
            for i in range(8):
                a(f"v_pk_mul_f32 {vr(PR+2*i,2)}, {vr(PR+2*i,2)}, {vr(TT,2)}")
    a("s_nop 0")
    for hp in range(2):
        for n in range(8):
            a(f"v_pk_fma_f32 {vr(PR+2*n,2)}, {vr(G,2)}, {vr(ACC+4*n+2*hp,2)}, {vr(PR+2*n,2)}")
    for rr in range(2):
        for h in range(4):
            a(f"v_cvt_pk_bf16_f32 v{XR+4*rr+h}, v{PR+4*h+rr}, v{PR+4*h+2+rr}")
        a(f"buffer_store_dwordx4 {vr(XR+4*rr,4)}, v{vEPO}, s[{OUT}:{OUT+3}], s55 offen offset:{rr*1024}")
    stamp(a, 8)
    a(f"v_pk_add_f32 {vr(TT,2)}, {vr(ACC,2)}, {vr(ACC+2,2)}")
    a(f"v_mul_f32 v{TT}, 0, v{TT}")
    a(f"v_fmac_f32 v{TT}, 0, v{TT+1}")
    a(f"v_cmp_u_f32 vcc, v{TT}, v{TT}")
    a(f"s_or_b64 s[{sBAD}:{sBAD+1}], s[{sBAD}:{sBAD+1}], vcc")
    a("s_cbranch_scc0 K2_final")
    if not ABL:
        a(f"ds_write_b32 v{vF1}, v{vONE} offset:48")
    a("s_branch K2_final")

    a.label("K2_owner")
    a(f"v_lshlrev_b32 v{TT}, 7, v0")
    a("s_mov_b32 s60, 0")
    a.label("K2_ypoll")
    a(f"s_mov_b32 s52, {WS_YFLG}")
    for i in range(7):
        a(f"buffer_load_dword v{RAW+i}, v{TT}, s[{WS}:{WS+3}], s52 offen sc1")
        if i < 6:
            a("s_add_u32 s52, s52, 8192")
    a("s_waitcnt vmcnt(0)")
    a(f"v_min3_u32 v{RAW}, v{RAW}, v{RAW+1}, v{RAW+2}")
    a(f"v_min3_u32 v{RAW+3}, v{RAW+3}, v{RAW+4}, v{RAW+5}")
    a(f"v_min3_u32 v{RAW}, v{RAW}, v{RAW+3}, v{RAW+6}")
    a(f"v_cmp_eq_u32 vcc, 0, v{RAW}")
    a("s_cbranch_vccz K2_yready")
    a("s_sleep 8")
    a("s_add_u32 s60, s60, 1")
    a("s_cmp_lt_u32 s60, 0x100000")
    a("s_cbranch_scc1 K2_ypoll")
    a.label("K2_yready")
    a(f"v_lshlrev_b32 v{TT}, 3, v0")
    a(f"s_lshl_b32 s52, s{sV}, 9")
    a(f"v_add_u32 v{TT+2}, s52, v{TT}")
    a(f"v_add_u32 v{TT+2}, {L_Y}, v{TT+2}")
    a(f"v_and_b32 v{TT+3}, 15, v0")
    a(f"v_lshl_add_u32 v{TT+3}, v{TT+3}, 5, s52")
    a(f"v_add_u32 v{TT+3}, {L_Y}, v{TT+3}")
    a(f"s_add_u32 s52, s52, {WS_YACC}")
    for i in range(NREP):
        a(f"buffer_load_dwordx2 {vr(RAW+2*i,2)}, v{TT}, s[{WS}:{WS+3}], s52 offen offset:{(i&1)*2048} sc1")
        if i & 1 and i < NREP - 1:
            a("s_add_u32 s52, s52, 4096")
    a(f"s_ashr_i32 s52, s{sKEY}, 31")
    a("s_not_b32 s52, s52")
    a("s_or_b32 s52, s52, 0x80000000")
    a(f"s_xor_b32 s53, s{sKEY}, s52")
    a("s_and_b32 s53, s53, 0xfffff800")
    a(f"v_cvt_pk_bf16_f32 v{TT+1}, s53, s53")
    a(f"v_and_b32 v{TT+1}, 0xffff0000, v{TT+1}")
    a(f"v_mul_f32 v{TT+1}, {fbits(-LOG2E):#x}, v{TT+1}")
    a(f"v_exp_f32 v{TT+1}, v{TT+1}")
    a(f"s_bfe_u32 s53, s{sIDX}, 0x20001")
    a(f"v_lshrrev_b32 v{YR}, 4, v0")
    a(f"v_add_f32 v{TT+1}, 1.0, v{TT+1}")
    a(f"v_rcp_f32 v{TT+1}, v{TT+1}")
    a(f"v_cmp_eq_u32 s[56:57], s53, v{YR}")
    a(f"v_cvt_pk_bf16_f32 v{TT+1}, v{TT+1}, v{TT+1}")
    a(f"v_and_b32 v{TT+1}, 0xffff0000, v{TT+1}")
    a("s_waitcnt vmcnt(0)")
    n = NREP
    while n > 1:
        n //= 2
        for i in range(n):
            a(f"v_pk_add_f32 {vr(RAW+2*i,2)}, {vr(RAW+2*i,2)}, {vr(RAW+2*(i+n),2)}")
    a(f"v_cvt_pk_bf16_f32 v{RAW}, v{RAW}, v{RAW+1}")
    a(f"v_and_b32 v{RAW+1}, 0xffff0000, v{RAW}")
    a(f"v_lshlrev_b32 v{RAW}, 16, v{RAW}")
    a(f"v_mul_f32 v{RAW}, v{RAW}, v{TT+1}")
    a(f"v_mul_f32 v{RAW+1}, v{RAW+1}, v{TT+1}")
    a(f"ds_write_b64 v{TT+2}, {vr(RAW,2)}")
    a(f"ds_read_b128 {vr(YR,4)}, v{TT+3}")
    a(f"ds_read_b128 {vr(YR+4,4)}, v{TT+3} offset:16")
    a("s_waitcnt lgkmcnt(0)")
    a("s_mov_b64 exec, s[56:57]")
    a(f"s_bitcmp1_b32 s{sIDX}, 0")
    a("s_cbranch_scc1 K2_yrow1")
    for rr in range(2):
        if rr == 1:
            a.label("K2_yrow1")
        for n in range(8):
            a(f"v_add_f32 v{PR+2*n+rr}, v{PR+2*n+rr}, v{YR+n}")
        a("s_mov_b64 exec, -1")
        if rr == 0:
            a("s_branch K2_owned")
    a("s_branch K2_owned")

    C = S1
    a.label("K2_unsafe")
    a(f"s_mov_b32 s{sSLOW}, 1")
    a("s_waitcnt vmcnt(0)")
    a("s_barrier")
    clear_flags(a)
    a("v_mov_b32 v15, 0xff800000")
    for i in range(4):
        a(f"ds_write_b32 v12, v15 offset:{256 + 256*i}")
    a("s_waitcnt lgkmcnt(0)")
    a("s_barrier")
    a(f"s_cmp_lt_u32 s{sW}, 4")
    a("s_cbranch_scc1 K2_maxpass")
    a("s_barrier")
    a("s_branch K2_project")
    a.label("K2_maxpass")
    a("v_and_b32 v13, 31, v0")
    a("v_lshlrev_b32 v13, 2, v13")
    a(f"v_add_u32 v13, {L_MAX}, v13")
    a(f"v_mov_b32 v15, v{vL16}")
    a("s_mov_b32 s55, 0")
    a.label("K2_maxloop")
    a(f"ds_read_b128 {vr(Q,4)}, v15")
    a("v_mov_b32 v14, 0xff800000")
    a("s_waitcnt lgkmcnt(0)")
    for j in range(16):
        a(f"v_mfma_f32_32x32x16_bf16 {vr(S0,16)}, {vr(K+4*j,4)}, {vr(Q,4)}, 0")
        a("s_nop 15")
        for i in range(8):
            a(f"v_max3_f32 v14, v{S0+2*i}, v{S0+2*i+1}, v14")
    a("ds_max_f32 v13, v14")
    a("v_add_u32 v13, 128, v13")
    a("v_add_u32 v15, 1024, v15")
    a("s_add_u32 s55, s55, 1")
    a("s_cmp_lt_u32 s55, 8")
    a("s_cbranch_scc1 K2_maxloop")
    a("s_waitcnt lgkmcnt(0)")
    a("s_barrier")
    a("v_subrev_u32 v13, 1024, v13")
    a(f"v_mov_b32 v15, v{vL16}")
    a("v_lshl_add_u32 v3, v0, 2, s54")
    a("s_mov_b32 s55, 0")
    a.label("K2_exactloop")
    a(f"ds_read_b128 {vr(Q,4)}, v15")
    a("ds_read_b32 v14, v13")
    for i in range(8):
        a(f"v_mov_b64 {vr(O+2*i,2)}, 0")
    a("s_waitcnt lgkmcnt(0)")
    for i in range(16):
        a(f"v_sub_f32 v{C+i}, 0, v14")
    a("s_nop 1")
    for j in range(16):
        a(f"v_mfma_f32_32x32x16_bf16 {vr(S0,16)}, {vr(K+4*j,4)}, {vr(Q,4)}, {vr(C,16)}")
        a("s_nop 15")
        for i in range(16):
            a(f"v_exp_f32 v{S0+i}, v{S0+i}")
        a("s_nop 1")
        a(pv(j, 0, S0))
        a(pv(j, 1, S0))
    a("s_nop 15")
    for r in range(9):
        a(f"ds_write_b32 v3, v{O+r} offset:{L_PART + r*256}")
    a(f"ds_write_b32 v3, v{vPIDX} offset:{L_PART + 2304}")
    a("s_waitcnt lgkmcnt(0)")
    a("v_add_u32 v13, 128, v13")
    a("v_add_u32 v15, 1024, v15")
    a(f"v_add_u32 v3, {PREC}, v3")
    a("s_add_u32 s55, s55, 1")
    a("s_cmp_lt_u32 s55, 8")
    a("s_cbranch_scc1 K2_exactloop")
    a("s_branch K2_ctail")
    a.label("K2_end")


def clear_flags(a):
    a("v_and_b32 v13, 31, v0")
    a(f"v_mul_u32_u24 v13, {PREC}, v13")
    a("v_lshlrev_b32 v12, 2, v0")
    a(f"v_add_u32 v12, {L_FLG}, v12")
    a("v_mov_b32 v14, 0")
    a(f"ds_write_b32 v13, v14 offset:{L_PART + 2304}")
    a("ds_write_b32 v12, v14")


def argmax(a, v, sKEY, sIDX):
    a(f"v_max_u32 v{v}, v{v}, v{v+1}")
    a("s_nop 1")
    for d in ("row_shr:1 row_mask:0xf", "row_shr:2 row_mask:0xf", "row_shr:4 row_mask:0xf", "row_shr:8 row_mask:0xf",
              "row_bcast:15 row_mask:0xa", "row_bcast:31 row_mask:0xc"):
        a(f"v_max_u32_dpp v{v}, v{v}, v{v} {d} bank_mask:0xf")
        a("s_nop 1")
    a(f"v_readlane_b32 s{sKEY}, v{v}, 63")
    a("s_nop 3")
    a(f"s_andn2_b32 s{sIDX}, 2047, s{sKEY}")


HEADER = """; Kernarg layout for this problem (112 bytes, ptrs only, base s[0:1]):
;   offset  80: gate_w (512)   offset  88: d_out (1,2048,512) bf16   offset  96: d_debug   offset 104: d_ws
; @launch kernel=prep_kernel grid=(256,1,1) block=(512,1,1) lds={k1lds}
; @launch kernel=attn_kernel grid=(256,1,1) block=(512,1,1) lds={k2lds}
;
; prep_kernel : Q/K/V projections, router scores, mix gate, fragment-order copies of K, V^T and wo.
;   waves 4-7: routed-expert slice, reduction of the four key-range partials, normalisation, output projection
;
; is range-checked at run time (2^-32 <= sum <= 2^120, results finite); a workgroup that sees any row outside that
.amdgcn_target "amdgcn-amd-amdhsa--gfx950"
.text
"""

KD = """.amdhsa_kernel {name}
  .amdhsa_next_free_vgpr {vgpr}
  .amdhsa_next_free_sgpr {sgpr}
  .amdhsa_accum_offset {vgpr}
  .amdhsa_group_segment_fixed_size 0
  .amdhsa_kernarg_size 112
  .amdhsa_user_sgpr_count 2
  .amdhsa_user_sgpr_kernarg_segment_ptr 1
  .amdhsa_system_sgpr_workgroup_id_x 1
.end_amdhsa_kernel
"""


def postprocess(text, opt):
    opt.setdefault("k1st", "")
    opt.setdefault("k2st", "sc1")
    out = []
    k1 = True
    for line in text.split("\n"):
        if line.startswith("attn_kernel:"):
            k1 = False
        if "s96" not in line:
            if k1 and "buffer_store" in line and "sc1" not in line and opt.get("k1st"):
                line += " " + opt["k1st"].replace("_", " ")
            if not k1 and "buffer_store_dwordx4" in line and opt.get("k2st"):
                line += " " + opt["k2st"].replace("_", " ")
            if not k1 and "buffer_load_dwordx4" in line and ", s52 offen offset" in line and "sc1" not in line and opt.get("wofl"):
                line += " " + opt["wofl"].replace("_", " ")
        out.append(line)
    return "\n".join(out)


def generate(opt):
    STAMP[0] = opt.get("stamp", 0)
    PROBE[0] = opt.get("probe")
    nsg = 100 if (STAMP[0] or PROBE[0]) else 64
    out = HEADER.format(k1lds=K1_LDS, k2lds=K2_LDS)
    for name, fn in (("prep_kernel", gen_k1), ("attn_kernel", gen_k2)):
        a = Asm()
        fn(a, opt)
        out += f".globl {name}\n.p2align 8\n.type {name},@function\n" + a.text()
    if STAMP[0] == 2:
        out += """.globl post_kernel
.p2align 8
.type post_kernel,@function
post_kernel:
    s_memrealtime s[8:9]
    s_load_dwordx2 s[4:5], s[0:1], 104
    s_mov_b32 s6, 0x400000
    s_mov_b32 s7, 0x20000
    s_mov_b32 s12, 0x33fff0
    v_mov_b32 v1, 0
    s_waitcnt lgkmcnt(0)
    v_mov_b32 v2, s8
    buffer_store_dword v2, v1, s[4:7], s12 offen ; s96
    s_endpgm
"""
        out = out.replace(";\n; prep_kernel :", "; @launch kernel=post_kernel grid=(1,1,1) block=(64,1,1) lds=0\n;\n; prep_kernel :")
    if PROBE[0]:
        op = "max" if opt.get("first") else "min"
        out += WAITK % ((WS_PROBE,) + (op,) * 9)
        out = out.replace(";\n; prep_kernel :", "; @launch kernel=wait_kernel grid=(1,1,1) block=(64,1,1) lds=0\n;\n; prep_kernel :")
    out += '.section .rodata,"a"\n.p2align 6\n'
    out += KD.format(name="prep_kernel", vgpr=144, sgpr=nsg)
    out += ".p2align 6\n"
    out += KD.format(name="attn_kernel", vgpr=256, sgpr=nsg)
    if STAMP[0] == 2:
        out += ".p2align 6\n" + KD.format(name="post_kernel", vgpr=8, sgpr=16)
    if PROBE[0]:
        out += ".p2align 6\n" + KD.format(name="wait_kernel", vgpr=8, sgpr=16)
    return postprocess(out, opt)


def fuse(text, opt):
    kn = NAME + "_kernel"
    head, rest = text.split(".globl prep_kernel\n")
    code, rod = rest.split('.section .rodata,"a"')
    k1, k2 = code.split(".globl attn_kernel\n.p2align 8\n.type attn_kernel,@function\n")
    head = "\n".join(l for l in head.split("\n") if "@launch" not in l)
    head = f"; @launch grid=(256,1,1) block=(512,1,1) lds={max(K1_LDS, K2_LDS)}\n" + head
    k1 = k1.replace("prep_kernel", kn)
    k1 = k1.replace("    s_cbranch_scc1 K1_exit\n", "    s_cbranch_scc1 K2_exit\n" + ("    s_memrealtime s[98:99]\n" if opt.get("fwait") else ""), 1)
    k1 = k1.replace("s_endpgm", "s_branch GRIDBAR")
    bar = """GRIDBAR:
    s_mov_b64 exec, -1
    s_setprio 0
    s_load_dwordx2 s[36:37], s[0:1], 96
    s_mov_b32 s38, 256
    s_mov_b32 s39, 0x20000
    v_mov_b32 v2, 1
    v_mov_b32 v3, 0
    s_waitcnt vmcnt(0) lgkmcnt(0)
    s_barrier
    s_cmp_lg_u32 s40, 0
    s_cbranch_scc1 GB_done
    s_mov_b64 exec, 1
    buffer_atomic_add v2, v3, s[36:39], 0 offen
    s_mov_b32 s60, 0
GB_poll:
    buffer_load_dword v4, v3, s[36:39], 0 offen sc1
    s_waitcnt vmcnt(0)
    v_readfirstlane_b32 s61, v4
    s_nop 0
    s_cmp_ge_u32 s61, 256
    s_cbranch_scc1 GB_ok
    s_sleep 4
    s_add_u32 s60, s60, 1
    s_cmp_lt_u32 s60, 0x100000
    s_cbranch_scc1 GB_poll
GB_ok:
    buffer_inv sc1
    s_waitcnt vmcnt(0)
    s_mov_b64 exec, -1
GB_done:
    s_barrier
    s_lshl_b32 s61, s40, 6
    v_add_u32 v0, s61, v0
"""
    if opt.get("fwait"):
        k2 = k2.replace("K2_exit:\n", """    s_cmp_lg_u32 s2, 0
    s_cbranch_scc1 K2_exit
    s_mov_b32 s60, 0
FW_loop:
    s_memrealtime s[96:97]
    s_waitcnt lgkmcnt(0)
    s_sub_u32 s96, s96, s98
    s_add_u32 s60, s60, 1
    s_cmp_gt_u32 s60, 100000
    s_cbranch_scc1 K2_exit
    s_cmp_lt_u32 s96, 5000
    s_cbranch_scc1 FW_loop
K2_exit:
""")
    return head + f".globl {kn}\n" + k1 + bar + k2 + '.section .rodata,"a"\n.p2align 6\n' + KD.format(name=kn, vgpr=256, sgpr=100)


if __name__ == "__main__":
    opt = {}
    path = f"cdna_kernels/{NAME}.s"
    for arg in sys.argv[1:]:
        k, v = arg.split("=")
        if k == "out":
            path = v
        else:
            opt[k] = int(v) if v.lstrip("-").isdigit() else v
    if opt.get("fuse"):
        opt["k1st"] = "sc1"
    text = generate(opt)
    if opt.get("fuse"):
        text = fuse(text, opt)
    open(path, "w").write(text)
    print("wrote", path)
```

```python
import sys, struct, math

NAME = "gated_mix__grouped_kv_mqa__moe_arch_mod__prompt"

WS_QF = 0x000000
WS_KV = 0x200000
WS_WOF = 0x220000
WS_G = 0x2A0000
WS_CAND = 0x2A2000
WS_YACC = 0x2A4000
NREP = 8
WS_YFLG = WS_YACC + NREP * 2048
WS_END = WS_YFLG + 448 * 128

KA = dict(x=0, wq=8, wk=16, wv=24, wo=32, bx=40, wr=48, wg=56, wu=64, wd=72, gw=80, out=88, dbg=96, ws=104)


def fbits(f):
    return struct.unpack("<I", struct.pack("<f", f))[0]


class Asm:
    def __init__(self):
        self.L = []

    def __call__(self, s):
        for line in s.strip("\n").split("\n"):
            line = line.strip()
            if not line:
                continue
            if line.endswith(":") or line.startswith("."):
                self.L.append(line)
            else:
                self.L.append("    " + line)

    def label(self, n):
        self.L.append(n + ":")

    def c(self, s):
        self.L.append("    ; " + s)

    def text(self):
        return "\n".join(self.L) + "\n"


STAMP = [False]
WS_STAMP = 0x300000


def stamp(a, i):
    if STAMP[0] == 1 or (STAMP[0] == 2 and i in (12, 13)):
        a(f"s_memtime s[{64+2*i}:{65+2*i}]")
        a("s_waitcnt lgkmcnt(0)")


def stamp_flush(a, ws, wave, base, n=16):
    if STAMP[0]:
        a(f"s_memrealtime s[{64+2*15}:{65+2*15}]")
        a("s_waitcnt lgkmcnt(0)")
        a("s_mov_b64 exec, 1")
        a(f"s_lshl_b32 s96, s2, 3")
        a(f"s_add_u32 s96, s96, s{wave}")
        a(f"s_lshl_b32 s96, s96, 6")
        a(f"s_add_u32 s96, s96, {base}")
        a("v_mov_b32 v1, 0")
        for i in (range(n) if STAMP[0] == 1 else (0, 13, 14, 15)):
            a(f"v_mov_b32 v2, s{64+2*i}")
            a(f"buffer_store_dword v2, v1, s[{ws}:{ws+3}], s96 offen offset:{4*i}")


def stamp_init(a):
    if STAMP[0]:
        for i in range(16):
            a(f"s_mov_b64 s[{64+2*i}:{65+2*i}], 0")
        a(f"s_memrealtime s[{64+2*14}:{65+2*14}]")
        a("s_memtime s[64:65]")


PROBE = [None]
WS_PROBE = 0x2F0000


def probe(a, name):
    if PROBE[0] == name:
        a("s_memrealtime s[98:99]")


def probe_flush(a, ws, names):
    if PROBE[0] in names:
        a("s_waitcnt lgkmcnt(0)")
        a("s_mov_b64 exec, 1")
        a("s_lshl_b32 s96, s2, 2")
        a(f"s_add_u32 s96, s96, {WS_PROBE}")
        a("v_mov_b32 v1, 0")
        a("v_mov_b32 v2, s98")
        a(f"buffer_store_dword v2, v1, s[{ws}:{ws+3}], s96 offen")


WAITK = """.globl wait_kernel
.p2align 8
.type wait_kernel,@function
wait_kernel:
    s_load_dwordx2 s[4:5], s[0:1], 104
    s_mov_b32 s6, 0x400000
    s_mov_b32 s7, 0x20000
    v_lshlrev_b32 v1, 4, v0
    s_mov_b32 s12, %d
    s_memrealtime s[8:9]
    s_waitcnt lgkmcnt(0)
    buffer_load_dwordx4 v[4:7], v1, s[4:7], s12 offen
    s_waitcnt vmcnt(0)
    v_sub_u32 v4, s8, v4
    v_sub_u32 v5, s8, v5
    v_sub_u32 v6, s8, v6
    v_sub_u32 v7, s8, v7
    v_%s_u32 v4, v4, v5
    v_%s_u32 v6, v6, v7
    v_%s_u32 v4, v4, v6
    s_nop 1
    v_%s_u32_dpp v4, v4, v4 row_shr:1 row_mask:0xf bank_mask:0xf
    s_nop 1
    v_%s_u32_dpp v4, v4, v4 row_shr:2 row_mask:0xf bank_mask:0xf
    s_nop 1
    v_%s_u32_dpp v4, v4, v4 row_shr:4 row_mask:0xf bank_mask:0xf
    s_nop 1
    v_%s_u32_dpp v4, v4, v4 row_shr:8 row_mask:0xf bank_mask:0xf
    s_nop 1
    v_%s_u32_dpp v4, v4, v4 row_bcast:15 row_mask:0xa bank_mask:0xf
    s_nop 1
    v_%s_u32_dpp v4, v4, v4 row_bcast:31 row_mask:0xc bank_mask:0xf
    s_nop 1
    v_readlane_b32 s13, v4, 63
    s_nop 3
    s_sub_u32 s13, s8, s13
    s_mov_b32 s10, 0
W_loop:
    s_memrealtime s[8:9]
    s_waitcnt lgkmcnt(0)
    s_sub_u32 s8, s8, s13
    s_add_u32 s10, s10, 1
    s_cmp_gt_u32 s10, 100000
    s_cbranch_scc1 W_done
    s_cmp_lt_u32 s8, 5000
    s_cbranch_scc1 W_loop
W_done:
    s_endpgm
"""


def vr(a, n):
    return f"v[{a}:{a+n-1}]" if n > 1 else f"v{a}"


def srd(a, base, key, nbytes):
    a(f"s_load_dwordx2 s[{base}:{base+1}], s[0:1], {KA[key]}")
    a(f"s_mov_b32 s{base+2}, {nbytes}")
    a(f"s_mov_b32 s{base+3}, 0x20000")


LX, LW, LE = 0, 65536, 131072
K1_LDS = 147456


def gen_k1(a, opt):
    X, WQ, EX, WO, WR, GW, WS = 8, 24, 12, 16, 20, 28, 32
    a.label("prep_kernel")
    a("s_cmp_ge_u32 s2, 256")
    a("s_cbranch_scc1 K1_exit")
    probe(a, "k1start")
    stamp_init(a)
    a("s_load_dwordx16 s[8:23], s[0:1], 0")
    a("s_load_dwordx8 s[28:35], s[0:1], 80")
    a("v_lshrrev_b32 v1, 6, v0")
    a("v_and_b32 v0, 63, v0")
    a("v_readfirstlane_b32 s40, v1")
    a("s_bfe_u32 s43, s2, 0x30003")
    a("s_and_b32 s41, s2, 7")
    a("s_lshr_b32 s42, s2, 6")
    a("s_lshl2_add_u32 s42, s41, s42")
    a("v_and_b32 v3, 15, v0")
    a("v_lshrrev_b32 v2, 4, v0")
    a("v_and_b32 v7, 7, v0")
    a("s_and_b32 s44, s40, 3")
    a("s_cmp_lt_u32 s40, 4")
    a("s_cbranch_scc1 K1_producer")
    if opt.get("k1cpf", 1):
        a("s_cmp_eq_u32 s43, 7")
        a("s_cbranch_scc0 K1_main")
        a("s_getpc_b64 s[56:57]")
        a.label("K1_pc")
        a("s_lshl_b32 s53, s44, 13")
        a("v_lshl_add_u32 v140, v0, 7, s53")
        a("v_min_u32 v140, K2_unsafe - K1_pc, v140")
        a("v_mov_b32 v141, s57")
        a("v_add_co_u32 v140, vcc, s56, v140")
        a("s_nop 1")
        a("v_addc_co_u32 v141, vcc, 0, v141, vcc")
        a("global_load_dword v143, v[140:141], off")
    a("s_branch K1_main")
    a.label("K1_producer")
    a(f"s_mov_b32 s{WQ+2}, 524288")
    a(f"s_mov_b32 s{WQ+3}, 0x20000")
    a("s_add_u32 s56, s42, s43")
    a("v_lshl_add_u32 v5, s44, 2, v2")
    a("v_xor_b32 v5, v5, v3")
    a("v_lshlrev_b32 v5, 4, v5")
    a("v_lshl_add_u32 v5, v2, 10, v5")
    a("v_lshlrev_b32 v6, 2, v2")
    a("v_and_b32 v6, 4, v6")
    a("v_xor_b32 v6, v6, v7")
    a("v_lshlrev_b32 v6, 4, v6")
    a("v_lshrrev_b32 v8, 3, v0")
    a("v_lshl_add_u32 v6, v8, 10, v6")
    a("s_lshl4_add_u32 s47, s42, s44")
    a("s_lshl_b32 s47, s47, 12")
    a("s_lshl_b32 s49, s44, 10")
    a("s_lshl_b32 s48, s43, 7")
    a("s_lshl3_add_u32 s48, s49, s48")

    def late_srds():
        a("s_cmp_eq_u32 s43, 0")
        a(f"s_cselect_b64 s[{EX}:{EX+1}], s[12:13], s[14:15]")
        a(f"s_mov_b64 s[{WS}:{WS+1}], s[34:35]")
        for r, n in ((WO, 524288), (WR, 1024), (GW, 1024), (EX, 16384), (WS, 0x400000 if (STAMP[0] or PROBE[0]) else WS_END)):
            a(f"s_mov_b32 s{r+2}, {n}")
            a(f"s_mov_b32 s{r+3}, 0x20000")

    def dma_chunk(c, ex):
        a(f"s_add_u32 s50, s56, {c}")
        a("s_and_b32 s50, s50, 3")
        a("s_lshl_b32 s51, s50, 8")
        a("s_add_u32 s51, s51, s47")
        a("s_lshl_b32 s52, s50, 17")
        a("s_add_u32 s52, s52, s48")
        for e in range(4):
            a(f"s_add_u32 m0, s49, {LX + c*16384 + e*4096}")
            a("s_lshl_b32 s50, s50, 12" if e == 0 else "s_add_u32 s52, s52, 32768")
            a(f"buffer_load_dwordx4 v5, s[{X}:{X+3}], s51 offen lds")
            a(f"s_add_u32 m0, s49, {LW + c*16384 + e*4096}")
            a("s_add_u32 s51, s51, 16384")
            a(f"buffer_load_dwordx4 v6, s[{WQ}:{WQ+3}], s52 offen lds")
        if ex:
            ex_load(c)

    def ex_load(c):
        a(f"s_add_u32 m0, s49, {LE + c*4096}")
        a("s_add_u32 s50, s50, s49")
        a(f"buffer_load_dwordx4 v4, s[{EX}:{EX+3}], s50 offen lds")

    XO = opt.get("xorder", 0)

    def x0(e):
        a(f"s_add_u32 m0, s{61 + (e >> 1)}, {LX + (e & 1)*4096}")
        a(f"s_add_u32 s53, s{54 + (e >> 1)}, {(e & 1)*16384}")
        a(f"buffer_load_dwordx4 v5, s[{X}:{X+3}], s53 offen lds")

    def w0(e):
        a(f"s_add_u32 m0, s49, {LW + e*4096}")
        a(f"s_add_u32 s53, s52, {e*32768}")
        a(f"buffer_load_dwordx4 v6, s[{WQ}:{WQ+3}], s53 offen lds")

    def chunk0_head():
        a("s_and_b32 s50, s56, 3")
        a("s_lshl_b32 s51, s50, 8")
        a("s_add_u32 s51, s51, s47")
        a("s_lshl_b32 s52, s50, 17")
        a("s_add_u32 s52, s52, s48")
        a(f"s_and_b32 s53, s43, {4 if XO else 0}")
        a("s_lshl_b32 s62, s53, 11")
        a("s_add_u32 s61, s62, s49")
        a("s_xor_b32 s62, s61, 8192")
        a("s_lshl_b32 s53, s53, 13")
        a("s_add_u32 s54, s51, s53")
        a("s_xor_b32 s55, s54, 32768")
        a("s_lshl_b32 s50, s50, 12")
        a("s_waitcnt lgkmcnt(0)")
        a(f"s_mov_b64 s[{WQ}:{WQ+1}], s[10:11]")
        a(f"s_mov_b32 s{X+2}, 2097152")
        a(f"s_mov_b32 s{X+3}, 0x20000")
        stamp(a, 1)
        x0(0); w0(0); x0(1); w0(1)

    def rest_of_chunk0(ex):
        if XO:
            w0(2); w0(3)
            if ex:
                ex_load(0)
            x0(2); x0(3)
        else:
            x0(2); w0(2); x0(3); w0(3)
            if ex:
                ex_load(0)

    def produce(ex):
        n = 9 if ex else 8
        rest_of_chunk0(ex)
        stamp(a, 2)
        dma_chunk(1, ex)
        stamp(a, 3)
        if opt.get("k1m", 0) == 0:
            a(f"s_waitcnt vmcnt({n})")
            stamp(a, 4)
            a("s_barrier")
        dma_chunk(2, ex)
        a(f"s_waitcnt vmcnt({n})")
        a("s_barrier")
        dma_chunk(3, ex)
        a(f"s_waitcnt vmcnt({n})")
        a("s_barrier")
        a("s_waitcnt vmcnt(0)")
        stamp(a, 5)
        a("s_barrier")
        if STAMP[0] == 1:
            a("s_add_u32 s97, s44, 4")
            stamp_flush(a, WS, 97, WS_STAMP)
            a("s_mov_b64 exec, -1")

    chunk0_head()
    late_srds()
    a.c("wo job = (cb-3)*32 + rb = (t, v, hh, gh): 32 lanes, 8x8 block per lane -> 8 half fragments")
    a("v_lshlrev_b32 v4, 4, v0")
    a("s_sub_u32 s58, s43, 3")
    a("s_lshl_b32 s58, s58, 5")
    a("s_add_u32 s58, s58, s42")
    a("s_lshr_b32 s59, s58, 4")
    a("s_lshl_b32 s59, s59, 16")
    a("s_and_b32 s53, s58, 3")
    a("s_lshl_b32 s53, s53, 14")
    a("s_add_u32 s59, s59, s53")
    a("s_bfe_u32 s53, s58, 0x20002")
    a("s_lshl_b32 s53, s53, 8")
    a("s_add_u32 s59, s59, s53")
    a("v_lshlrev_b32 v9, 4, v3")
    a("v_lshl_add_u32 v9, v2, 13, v9")
    a("v_add_u32 v10, 4096, v9")
    a("s_lshl_b32 s53, s56, 8")
    a("v_add_u32 v11, s53, v4")
    a("v_and_b32 v11, 1023, v11")
    a(f"s_mov_b32 m0, {LE}")
    a("s_cmp_lt_u32 s43, 2")
    a("s_cbranch_scc1 K1_prodkv")
    a("s_cmp_lg_u32 s44, 0")
    a("s_cbranch_scc1 K1_prod")
    a("s_cmp_eq_u32 s43, 7")
    a("s_cbranch_scc1 K1_prod")
    a("s_cmp_eq_u32 s43, 2")
    a("s_cbranch_scc1 K1_exrg")
    a("s_mov_b32 exec_hi, 0")
    for dd in range(8):
        a(f"buffer_load_dwordx4 {vr(64+4*dd,4)}, v{9+(dd>>2)}, s[{WO}:{WO+3}], s59 offen offset:{(dd&3)*1024}")
    a("s_mov_b64 exec, -1")
    a("s_branch K1_prod")
    a.label("K1_exrg")
    a(f"buffer_load_dwordx4 v11, s[{WR}:{WR+3}], 0 offen lds")
    a(f"s_mov_b32 m0, {LE + 1024}")
    a("s_nop 0")
    a(f"buffer_load_dwordx4 v11, s[{GW}:{GW+3}], 0 offen lds")
    a.label("K1_prod")
    produce(False)
    a("s_cmp_eq_u32 s43, 7")
    a("s_cbranch_scc1 K1_zero")
    a("s_cmp_lg_u32 s44, 0")
    a("s_cbranch_scc1 K1_exit")
    a("s_cmp_eq_u32 s43, 2")
    a("s_cbranch_scc1 K1_exit")
    a("s_mov_b32 s54, 0x05040100")
    a("s_mov_b32 s55, 0x07060302")
    a("s_lshr_b32 s51, s58, 2")
    a("s_lshl_b32 s51, s51, 14")
    a("s_and_b32 s52, s58, 3")
    a("s_lshl_b32 s52, s52, 9")
    a("s_add_u32 s51, s51, s52")
    a(f"s_add_u32 s51, s51, {WS_WOF}")
    a("s_mov_b32 exec_hi, 0")
    pairs = [(0, 1), (4, 5), (2, 3), (6, 7)]
    for u in range(8):
        for i, (d0, d1) in enumerate(pairs):
            a(f"v_perm_b32 v{96+4*u+i}, v{64+4*d1+(u>>1)}, v{64+4*d0+(u>>1)}, s{54+(u&1)}")
        a(f"buffer_store_dwordx4 {vr(96+4*u,4)}, v4, s[{WS}:{WS+3}], s51 offen offset:{(u&1)*2048}")
        if u & 1 and u < 7:
            a("s_add_u32 s51, s51, 4096")
    a("s_endpgm")
    a.label("K1_zero")
    a("s_lshl_b32 s50, s42, 2")
    a("s_add_u32 s50, s50, s44")
    a(f"s_cmp_lt_u32 s50, {NREP * 2 + 56}")
    a("s_cbranch_scc0 K1_exit")
    for i in range(4):
        a(f"v_mov_b32 v{64+i}, 0")
    a("s_lshl_b32 s50, s50, 10")
    a(f"s_add_u32 s51, s50, {WS_YACC}")
    a(f"buffer_store_dwordx4 v[64:67], v4, s[{WS}:{WS+3}], s51 offen sc1")
    a.label("K1_exit")
    a("s_endpgm")
    a.label("K1_prodkv")
    produce(True)
    a("s_endpgm")

    a.label("K1_main")
    a.c("main waves: a = v&1 (row half), u = v>>1 (column half)")
    a("s_and_b32 s50, s44, 1")
    a("s_lshr_b32 s51, s44, 1")
    a("v_and_b32 v12, 31, v0")
    a("v_lshrrev_b32 v13, 5, v0")
    a("s_lshl_b32 s52, s50, 13")
    a("v_lshl_add_u32 v14, v12, 8, s52")
    a("v_xor_b32 v15, v13, v3")
    for s in range(8):
        a(f"v_xor_b32 v{16+s}, {2*s}, v15")
        a(f"v_lshl_add_u32 v{16+s}, v{16+s}, 4, v14")
    a("v_bfe_u32 v28, v0, 2, 2")
    a("v_lshl_add_u32 v25, v13, 3, v28")
    a("v_and_b32 v29, 3, v0")
    a("v_lshlrev_b32 v29, 3, v29")
    a("v_and_b32 v27, 1, v2")
    a("v_lshl_add_u32 v26, v27, 5, v29")
    a("s_lshl_b32 s52, s51, 6")
    a("v_add_u32 v26, s52, v26")
    a("v_lshrrev_b32 v27, 1, v28")
    a("v_lshlrev_b32 v27, 6, v27")
    a("v_xor_b32 v26, v26, v27")
    a("v_lshl_add_u32 v24, v25, 7, v26")
    a(f"v_add_u32 v24, {LW}, v24")
    a("v_lshrrev_b32 v25, 3, v12")
    a("v_lshlrev_b32 v25, 13, v25")
    a("v_lshl_add_u32 v25, v13, 9, v25")
    a("v_lshl_add_u32 v25, v7, 4, v25")
    a("s_lshl_b32 s52, s42, 16")
    a("s_lshl_b32 s53, s50, 15")
    a("s_add_u32 s52, s52, s53")
    a("s_lshl_b32 s53, s43, 10")
    a("s_add_u32 s52, s52, s53")
    a("s_lshl_b32 s53, s51, 8")
    a("s_add_u32 s52, s52, s53")
    a("s_lshl_b32 s53, s44, 12")
    a("v_lshl_add_u32 v14, v3, 8, s53")
    a("v_xor_b32 v15, v2, v3")
    for s in range(4):
        a(f"v_xor_b32 v{8+s}, {4*s}, v15")
        a(f"v_lshl_add_u32 v{8+s}, v{8+s}, 4, v14")
    a("v_lshl_add_u32 v26, v2, 3, v28")
    a("v_lshl_add_u32 v26, v26, 5, v29")
    a(f"v_add_u32 v26, {LE}, v26")
    a("s_lshl_b32 s54, s42, 1")
    a("s_add_u32 s54, s54, s51")
    a("s_lshl_b32 s54, s54, 11")
    a(f"s_add_u32 s54, s54, {WS_KV}")
    a("s_lshl_b32 s50, s50, 8")
    a("s_add_u32 s54, s54, s50")
    a("v_and_b32 v12, 1, v2")
    a("v_lshrrev_b32 v13, 1, v2")
    a("v_lshlrev_b32 v14, 4, v3")
    a("s_setprio 1")
    a("s_waitcnt lgkmcnt(0)")
    a(f"s_mov_b64 s[{WS}:{WS+1}], s[34:35]")
    a(f"s_mov_b32 s{WS+2}, {0x400000 if (STAMP[0] or PROBE[0]) else WS_END}")
    a(f"s_mov_b32 s{WS+3}, 0x20000")
    if opt.get("tlbw", 0):
        a("s_mov_b64 exec, 1")
        a(f"buffer_load_dword v1, v25, s[{WS}:{WS+3}], s52 offen sc1")
        a(f"buffer_load_dword v1, v25, s[{WS}:{WS+3}], s54 offen sc1")
        a("s_mov_b64 exec, -1")
    ACC, FB, FA, D1, XB, XA = 32, 48, 80, 4, 112, 128

    def main_loop(role, epi=None):
        XF = opt.get("xfirst", 0)
        groups = [[0], [1], [2], [3]] if opt.get("k1m", 0) == 0 else [[0, 1], [2], [3]]
        ne = {"q": 0, "k": 3, "v": 3, "r": 2}[role]
        for gi, cs in enumerate(groups):
            stamp(a, 3 + 2*gi)
            a("s_barrier")
            stamp(a, 4 + 2*gi)
            if gi == 0 and PROBE[0] == "k1b0":
                probe(a, "k1b0")
                a("s_waitcnt lgkmcnt(0)")
            items = []
            for c in cs:
                ms = [("m", c, s) for s in range(8)]
                xs = [("x", c, s) for s in range(4)] if ne else []
                items += xs + ms if (XF and c == 3) else ms + xs

            def rd(it):
                k, c, s = it
                if k == "m":
                    a(f"ds_read_b128 {vr(FB+4*s,4)}, v{16+s} offset:{c*16384}")
                    a(f"ds_read_b64_tr_b16 {vr(FA+4*s,2)}, v24 offset:{c*16384 + s*2048}")
                    a(f"ds_read_b64_tr_b16 {vr(FA+4*s+2,2)}, v24 offset:{c*16384 + s*2048 + 512}")
                    return 3
                a(f"ds_read_b128 {vr(XB+4*s,4)}, v{8+s} offset:{c*16384}")
                if role == "r":
                    a(f"ds_read_b128 {vr(XA+4*s,4)}, v26 offset:{c*256 + s*64}")
                else:
                    a(f"ds_read_b64_tr_b16 {vr(XA+4*s,2)}, v26 offset:{c*4096 + s*1024}")
                    a(f"ds_read_b64_tr_b16 {vr(XA+4*s+2,2)}, v26 offset:{c*4096 + s*1024 + 128}")
                return ne

            cnt = [rd(it) for it in items[:4]]
            for n, (k, c, s) in enumerate(items):
                a(f"s_waitcnt lgkmcnt({sum(cnt[n+1:])})")
                if k == "m":
                    cc = "0" if (c == 0 and s == 0) else vr(ACC, 16)
                    a(f"v_mfma_f32_32x32x16_bf16 {vr(ACC,16)}, {vr(FA+4*s,4)}, {vr(FB+4*s,4)}, {cc}")
                else:
                    cc = "0" if (c == 0 and s == 0) else vr(D1, 4)
                    A, B = vr(XA+4*s, 4), vr(XB+4*s, 4)
                    if role == "v":
                        A, B = B, A
                    a(f"v_mfma_f32_16x16x32_bf16 {vr(D1,4)}, {A}, {B}, {cc}")
                if n + 4 < len(items):
                    cnt.append(rd(items[n + 4]))
                if XF and epi and (k, c, s) == ("m", 3, 3):
                    epi()
        a(f"s_nop {11 if (role == 'q' or XF) else 3}")
        for i in range(8):
            a(f"v_cvt_pk_bf16_f32 v{48+i}, v{ACC+2*i}, v{ACC+2*i+1}")
            if i == 3:
                a(f"buffer_store_dwordx4 v[48:51], v25, s[{WS}:{WS+3}], s52 offen")
        a(f"buffer_store_dwordx4 v[52:55], v25, s[{WS}:{WS+3}], s52 offen offset:128")
        if epi and not XF:
            epi()

    def finish():
        probe(a, "k1end")
        probe_flush(a, WS, ("k1start", "k1b0", "k1end"))
        stamp(a, 11)
        if STAMP[0] == 1:
            a("s_waitcnt vmcnt(0)")
        stamp(a, 12)
        stamp_flush(a, WS, 44, WS_STAMP)
        a("s_endpgm")

    a("s_cmp_eq_u32 s43, 0")
    a("s_cbranch_scc1 K1_k")
    a("s_cmp_eq_u32 s43, 1")
    a("s_cbranch_scc1 K1_v")
    a("s_cmp_eq_u32 s43, 2")
    a("s_cbranch_scc1 K1_rg")
    main_loop("q")
    finish()
    a.label("K1_k")
    a("v_lshl_add_u32 v14, v12, 9, v14")
    a("v_lshl_add_u32 v14, v13, 3, v14")

    def epi_k():
        a(f"v_cvt_pk_bf16_f32 v112, v{D1}, v{D1+1}")
        a(f"v_cvt_pk_bf16_f32 v113, v{D1+2}, v{D1+3}")
        for i in range(2):
            a(f"v_lshlrev_b32 v{D1+2*i}, 16, v{112+i}")
            a(f"v_and_b32 v{D1+2*i+1}, 0xffff0000, v{112+i}")
        for i in range(4):
            a(f"v_mul_f32 v{D1+i}, {fbits(0.25 * math.log2(math.e)):#x}, v{D1+i}")
        a(f"v_cvt_pk_bf16_f32 v112, v{D1}, v{D1+1}")
        a(f"v_cvt_pk_bf16_f32 v113, v{D1+2}, v{D1+3}")
        a(f"buffer_store_dwordx2 v[112:113], v14, s[{WS}:{WS+3}], s54 offen")

    main_loop("k", epi_k)
    finish()
    a.label("K1_v")
    a("v_lshl_add_u32 v14, v13, 9, v14")
    a("v_lshl_add_u32 v14, v12, 3, v14")

    def epi_v():
        a(f"v_cvt_pk_bf16_f32 v112, v{D1}, v{D1+1}")
        a(f"v_cvt_pk_bf16_f32 v113, v{D1+2}, v{D1+3}")
        a(f"buffer_store_dwordx2 v[112:113], v14, s[{WS}:{WS+3}], s54 offen offset:1024")

    main_loop("v", epi_v)
    finish()
    a.label("K1_rg")
    a.c("router / gate: operand row 1 = gate_w, every other row = w_r")
    a("v_cmp_eq_u32 vcc, 1, v3")
    a("v_lshlrev_b32 v26, 4, v2")
    a(f"v_add_u32 v26, {LE}, v26")
    a("v_add_u32 v27, 1024, v26")
    a("v_cndmask_b32 v26, v26, v27, vcc")
    a("s_lshl_b32 s50, s42, 6")
    a("s_lshl_b32 s51, s44, 4")
    a("s_add_u32 s50, s50, s51")
    a("s_sub_u32 s51, 2047, s50")
    a("v_sub_u32 v30, s51, v0")
    a("v_lshlrev_b32 v31, 2, v0")
    a("s_lshl_b32 s51, s50, 2")
    a(f"s_add_u32 s51, s51, {WS_G}")
    a("s_lshr_b32 s50, s50, 2")
    a(f"s_add_u32 s50, s50, {WS_CAND - 60}")

    def epi_r():
        a.c("lanes 0..15: D1[0] = router score, D1[1] = gate logit of token rb*64+16v+lane")
        a(f"v_cvt_pk_bf16_f32 v112, v{D1+1}, v{D1+1}")
        a("v_and_b32 v113, 0xffff0000, v112")
        a(f"v_mul_f32 v113, {fbits(-math.log2(math.e)):#x}, v113")
        a("v_exp_f32 v113, v113")
        a(f"v_ashrrev_i32 v115, 31, v{D1}")
        a("v_add_f32 v113, 1.0, v113")
        a("v_rcp_f32 v113, v113")
        a("v_or_b32 v115, 0x80000000, v115")
        a(f"v_xor_b32 v114, v{D1}, v115")
        a("v_and_b32 v114, 0xfffff800, v114")
        a("v_or_b32 v114, v114, v30")
        a("v_cvt_pk_bf16_f32 v113, v113, v113")
        a("v_and_b32 v113, 0xffff0000, v113")
        for sh in (1, 2, 4, 8):
            a(f"v_max_u32_dpp v114, v114, v114 row_shr:{sh} row_mask:0xf bank_mask:0xf")
            a("s_nop 1")
        a("s_mov_b64 exec, 0xffff")
        a(f"buffer_store_dword v113, v31, s[{WS}:{WS+3}], s51 offen")
        a("s_mov_b64 exec, 0x8000")
        a(f"buffer_store_dword v114, v31, s[{WS}:{WS+3}], s50 offen")
        a("s_mov_b64 exec, -1")

    main_loop("r", epi_r)
    finish()


PREC = 2560
WREC = 8 * PREC
L_Q = 0
L_PART = 8192
L_AFR = L_PART + 4 * WREC
L_FLG = L_AFR + 8192
L_MAX = L_FLG + 256
L_MOEW = L_MAX + 1024
MREC = 13 * 1024
L_HP = L_MOEW + 4 * MREC
L_HB = L_HP + 256
L_Y = L_HB + 128
K2_LDS = L_Y + 2048
NMOE_WAVES = 112 * 4
LOG2E = math.log2(math.e)


def gen_k2(a, opt):
    LOOP = 0
    NUP = opt.get("nup", 6)
    X, WS, OUT, DBG, MW, WD = 8, 12, 16, 20, 24, 28
    sW, sBROW, sIDX, sSLOW, sMOE, sV, sSL, sKEY, sROT, sQB, sKV, sBAD = 40, 41, 42, 44, 45, 46, 47, 48, 49, 43, 61, 62
    vL16, vPIDX, Z = 1, 5, 6
    Q, O, S0, S1, K, V = 8, 16, 32, 48, 64, 128
    vQA = vL16
    a.label("attn_kernel")
    a("s_cmp_ge_u32 s2, 256")
    a("s_cbranch_scc1 K2_exit")
    probe(a, "k2start")
    stamp_init(a)
    a(f"s_load_dwordx2 s[{WS}:{WS+1}], s[0:1], {KA['ws']}")
    a(f"s_load_dwordx2 s[{X}:{X+1}], s[0:1], {KA['x']}")
    a(f"s_load_dwordx2 s[{OUT}:{OUT+1}], s[0:1], {KA['out']}")
    a("v_lshrrev_b32 v12, 6, v0")
    a("v_and_b32 v0, 63, v0")
    a(f"v_readfirstlane_b32 s{sW}, v12")
    a(f"s_mov_b32 s{WS+2}, {0x400000 if (STAMP[0] or PROBE[0]) else WS_END}")
    a(f"s_mov_b32 s{WS+3}, 0x20000")
    a(f"v_lshlrev_b32 v{vL16}, 4, v0")
    a("s_and_b32 s50, s2, 7")
    a("s_lshr_b32 s51, s2, 3")
    a(f"s_lshl_b32 s{sBROW}, s50, 5")
    a(f"s_add_u32 s{sBROW}, s{sBROW}, s51")
    a(f"s_and_b32 s{sROT}, s51, {opt.get('rotm', 7)}")
    a(f"s_and_b32 s{sV}, s{sW}, 3")
    a(f"s_lshl_b32 s{sQB}, s{sBROW}, 13")
    a(f"s_mov_b32 s{sSLOW}, 0")
    a(f"s_cmp_ge_u32 s{sW}, 4")
    a("s_cbranch_scc1 K2_service")

    def late_srds():
        for r, n in ((X, 2097152), (OUT, 2097152)):
            a(f"s_mov_b32 s{r+2}, {n}")
            a(f"s_mov_b32 s{r+3}, 0x20000")

    LOC = 1
    a(f"s_lshl2_add_u32 s{sKV}, s50, s{sV}")
    a(f"s_lshl_b32 s{sKV}, s{sKV}, 12")
    a(f"s_lshl_b32 s52, s{sROT}, 10")
    a(f"s_add_u32 s52, s52, s{sQB}")
    a(f"s_add_u32 s53, s{sKV}, {WS_KV}")

    def csetup():
        a(f"s_mul_i32 s54, s{sV}, {WREC}")
        a("s_mov_b32 m0, s54")
        a("v_mov_b32 v3, 0")
        a(f"v_mov_b32 v{vPIDX}, 0xdddd")
        if opt.get("lowp", 0) or opt.get("mprio", 1):
            a("s_setprio 1")
        a("v_and_b32 v14, 11, v0")
        a("v_cmp_eq_u32 vcc, 0, v14")
        a("v_mov_b32 v13, 0x3f803f80")
        a(f"v_mov_b64 {vr(Z,2)}, 0")
        a("v_cndmask_b32 v14, 0, v13, vcc")
        a("v_cndmask_b32 v15, 0, v13, vcc")
        a(f"v_mfma_f32_32x32x8_bf16 {vr(O,16)}, {vr(Z,2)}, {vr(Z,2)}, 0")
        for j in range(16):
            for i in range(2):
                a(f"v_mov_b64 {vr(V+8*j+4+2*i,2)}, v[14:15]")

    if opt.get("early", 1):
        csetup()
    a("s_waitcnt lgkmcnt(0)")
    stamp(a, 1)
    a(f"buffer_load_dwordx4 {vr(Q,4)}, v{vL16}, s[{WS}:{WS+3}], s52 offen")

    def kvload(j):
        L = []
        so = 53 if j < 2 else 32 + j // 2
        L += [f"buffer_load_dwordx4 {vr(K+4*j,4)}, v{vL16}, s[{WS}:{WS+3}], s{so} offen offset:{(j&1)*2048}",
              f"buffer_load_dwordx4 {vr(V+8*j,4)}, v{vL16}, s[{WS}:{WS+3}], s{so} offen offset:{(j&1)*2048+1024}"]
        return L

    def pair_off(m):
        a("s_add_u32 s55, s55, 1")
        a(f"s_lshl_b32 s56, s55, 14")
        a(f"s_add_u32 s56, s56, s{sKV}")
        a("s_and_b32 s56, s56, 0x1ffff")
        a(f"s_add_u32 s{32+m}, s56, {WS_KV}")
        a("s_cmp_eq_u32 s55, 7")
        a("s_cselect_b32 s55, 0, s55")

    for j in range(NUP):
        if j == 2:
            a("s_mul_i32 s55, s51, 37")
            a("s_lshr_b32 s55, s55, 8")
            a("s_mul_i32 s55, s55, 7")
            a("s_sub_u32 s55, s51, s55")
        if j >= 2 and j % 2 == 0:
            pair_off(j // 2)
        for x in kvload(j):
            a(x)
    for m in range((NUP + 1) // 2, 8):
        pair_off(m)
    late_srds()
    if not opt.get("early", 1):
        csetup()
    stamp(a, 2)
    a(f"s_waitcnt vmcnt({2*NUP - 1})")
    stamp(a, 3)
    probe(a, "k2go")
    a(f"v_mfma_f32_32x32x16_bf16 {vr(S0,16)}, {vr(K,4)}, {vr(Q,4)}, 0")
    a("s_nop 11")

    def pv(j, half, buf):
        return f"v_smfmac_f32_32x32x32_bf16 {vr(O,16)}, {vr(V+8*j+4*half,4)}, {vr(buf+8*half,8)}, v{vPIDX}"

    def publish(t):
        if opt.get("nopub"):
            return []
        return [f"ds_write_addtid_b32 v{O+r} offset:{L_PART + t*PREC + r*256}" for r in range(9)]

    def flag(t):
        if opt.get("noflag"):
            return "s_nop 0"
        return f"ds_write_addtid_b32 v{vPIDX} offset:{L_PART + t*PREC + 2304}"

    def coltile(t, first=False, last=False, rel=False):
        tp = 0 if rel else t - 1
        for j in range(16):
            cur, oth = (S0, S1) if j % 2 == 0 else (S1, S0)
            e = [f"v_exp_f32 v{cur+i}, v{cur+i}" for i in range(16)]
            qk = [f"v_mfma_f32_32x32x16_bf16 {vr(oth,16)}, {vr(K+4*((j+1)&15),4)}, {vr(Q,4)}, 0"]
            if last and j == 15:
                qk = []
            pv1 = [pv((j - 1) & 15, 1, oth)]
            pv0 = [pv(j, 0, cur)]
            pre, post, late = [], [], []
            if first:
                if j == 0:
                    pv1 = []
                issued = min(16, NUP + j)
                need = 2 * (j + 1) + 1 if j < 15 else 32
                pre = [f"s_waitcnt vmcnt({2*issued - need})"]
                post = [f"v_permlane16_swap_b32 v{V+8*j+i}, v{V+8*j+4+i}" for i in range(4)]
                if NUP + j < 16:
                    late = kvload(NUP + j)
                if not opt.get("skew"):
                    if NUP + j == 16:
                        late = ["s_barrier"]
                elif NUP + j in (16, 17):
                    k = NUP + j - 16
                    late = [f"s_bitcmp{k}_b32 s{sW}, 1", f"s_cbranch_scc0 K2_nb{k}", "s_barrier", f"K2_nb{k}:"]
            if j == 14 and not last and not opt.get("noq"):
                post = post + [f"ds_read_b128 {vr(Q,4)}, v{vQA} offset:{(1 if rel else t + 1)*1024}"]
            if j == 15 and not last:
                pre = pre + ["s_waitcnt lgkmcnt(0)"]
            zero = [f"v_mfma_f32_32x32x8_bf16 {vr(O,16)}, {vr(Z,2)}, {vr(Z,2)}, 0"]
            ILV = opt.get("ilv", 1)
            P = publish(tp)
            if not first and j == 0:
                if ILV == 0:
                    seq = e[0:2] + pv1 + e[2:5] + qk + e[5:14] + P + zero + e[14:16]
                elif ILV == 1:
                    seq = e[0:2] + pv1 + e[2:5] + qk + e[5:13] + P[0:3] + e[13:14] + P[3:6] + e[14:15] + P[6:9] + zero + e[15:16]
                elif ILV == 2:
                    seq = e[0:2] + pv1 + e[2:5] + qk + e[5:13] + P[0:2] + e[13:14] + P[2:4] + e[14:15] + P[4:6] + e[15:16] + P[6:8]
                elif ILV == 3:
                    cp = [f"v_mov_b64 v[12:13], {vr(O+4,2)}", f"v_mov_b64 v[14:15], {vr(O+6,2)}", f"v_mov_b32 v4, v{O+8}"]
                    seq = e[0:2] + pv1 + e[2:5] + qk + e[5:13] + P[0:1] + cp[0:1] + P[1:2] + cp[1:2] + e[13:14] + P[2:3] + cp[2:3] + e[14:15] + P[3:4] + zero + e[15:16]
            elif not first and j == 1:
                if ILV == 2:
                    seq = e[0:1] + P[8:9] + zero + e[1:4] + [pv(0, 0, oth)] + e[4:7] + pv1 + e[7:10] + qk + \
                        [flag(tp)] + e[10:13] + pv0 + e[13:16] + ["s_nop 3"]
                elif ILV == 3:
                    late5 = [x.replace(f"v{O+4+i} ", f"v{[12,13,14,15,4][i]} ") for i, x in enumerate(P[4:9])]
                    seq = e[0:3] + [pv(0, 0, oth)] + e[3:6] + pv1 + e[6:9] + qk + late5[0:1] + e[9:10] + late5[1:2] + e[10:11] + late5[2:3] + \
                        e[11:12] + pv0 + e[12:13] + late5[3:4] + e[13:14] + late5[4:5] + e[14:15] + [flag(tp)] + e[15:16]
                elif ILV == 1:
                    seq = e[0:3] + [pv(0, 0, oth)] + e[3:6] + pv1 + e[6:9] + qk + \
                        [flag(tp)] + e[9:12] + pv0 + e[12:16] + ["s_nop 2"]
                else:
                    seq = e[0:2] + [pv(0, 0, oth)] + e[2:5] + pv1 + e[5:8] + qk + \
                        [flag(tp)] + e[8:11] + pv0 + e[11:16] + ["s_nop 1"]
            else:
                seq = e[0:2] + pv1 + e[2:5] + pre + qk + post + e[5:10] + pv0 + e[10:13] + late + e[13:16]
            if opt.get("fine") and t == 3 and j in (0, 2, 4, 8, 14):
                stamp(a, {0: 6, 2: 7, 4: 8, 8: 9, 14: 10}[j])
            if opt.get("fine") and t == 4 and j == 0:
                stamp(a, 11)
            for x in seq:
                a(x)

    coltile(0, first=True)
    probe(a, "k2fp")
    stamp(a, 4)
    if LOOP:
        a("s_mov_b32 s55, 1")
        a(f"v_add_u32 v{vQA}, 1024, v{vQA}")
        a(".p2align 6")
        a.label("K2_cloop")
        coltile(1, rel=True)
        a(f"s_add_u32 m0, m0, {PREC}")
        a(f"v_add_u32 v{vQA}, 1024, v{vQA}")
        a("s_add_u32 s55, s55, 1")
        a("s_cmp_lt_u32 s55, 8")
        a("s_cbranch_scc1 K2_cloop")
        a(pv(15, 1, S1))
        a("s_nop 11")
        for x in publish(0) + [flag(0)]:
            a(x)
    else:
        for t in range(1, 8):
            coltile(t, last=(t == 7))
        a("s_nop 1")
        a(pv(15, 1, S1))
        a("s_nop 11")
        for x in publish(7):
            a(x)
    a.label("K2_ctail")
    a("s_waitcnt lgkmcnt(0)")
    stamp(a, 5)
    probe(a, "k2cend")
    a("s_barrier")
    a("s_barrier")
    a.label("K2_final")
    a(f"v_mov_b32 v13, {L_FLG}")
    a("s_waitcnt lgkmcnt(0)")
    a("s_barrier")
    a("ds_read_b32 v14, v13 offset:48")
    a("s_waitcnt lgkmcnt(0)")
    a("v_readfirstlane_b32 s53, v14")
    a("s_nop 0")
    a(f"s_cmp_gt_u32 s53, s{sSLOW}")
    a("s_cbranch_scc1 K2_unsafe")
    probe(a, "k2end")
    if PROBE[0]:
        a(f"s_cmp_ge_u32 s{sW}, 4")
        a("s_cbranch_scc1 K2_exit")
    probe_flush(a, WS, ("k2start", "k2go", "k2fp", "k2cend", "k2end"))
    stamp(a, 12)
    if STAMP[0] == 1:
        a("s_waitcnt vmcnt(0)")
    stamp(a, 13)
    stamp_flush(a, WS, sW, WS_STAMP + 0x20000)
    a.label("K2_exit")
    a("s_endpgm")

    vOIDX, vEPO, vAW, vONE, vFA, vF1, vRS, vFE, vRS2 = 2, 3, 4, 5, 6, 7, 8, 111, 110
    G, TT = 10, 12
    ACC, PR, RAW, AF, XR, YR = 16, 48, 64, 104, 112, 120
    BUF = [128, 192]
    LG, LXS, LD, D1, TM, MA = 16, 48, 80, 96, 100, 112
    ABL = opt.get("abl", 0)
    a.label("K2_service")
    late_srds()
    a(f"s_load_dwordx4 s[32:35], s[0:1], {KA['wg']}")
    a(f"s_load_dwordx2 s[{WD}:{WD+1}], s[0:1], {KA['wd']}")
    for r in (WD, MW):
        a(f"s_mov_b32 s{r+2}, 1835008")
        a(f"s_mov_b32 s{r+3}, 0x20000")
    if opt.get("moeeven", 1):
        a(f"s_mul_i32 s{sSL}, s50, 14")
        a(f"s_add_u32 s{sSL}, s{sSL}, s51")
        a("s_cmp_lt_u32 s51, 28")
        a(f"s_cselect_b32 s{sMOE}, {0 if ABL & 4 else 1}, 0")
        a(f"s_andn2_b32 s{sMOE}, s{sMOE}, s50")
    else:
        a(f"s_mul_i32 s{sSL}, s50, 14")
        a(f"s_add_u32 s{sSL}, s{sSL}, s51")
        a("s_cmp_lt_u32 s51, 14")
        a(f"s_cselect_b32 s{sMOE}, {0 if ABL & 4 else 1}, 0")

    def code_prefetch():
        a("s_getpc_b64 s[56:57]")
        a.label("K2_pc")
        a("s_sub_u32 s56, s56, K2_pc - attn_kernel")
        a("s_subb_u32 s57, s57, 0")
        a(f"s_lshl_b32 s52, s{sV}, 13")
        a("v_lshl_add_u32 v126, v0, 7, s52")
        a("v_min_u32 v126, K2_unsafe - attn_kernel, v126")
        a("global_load_dword v127, v126, s[56:57]")

    if opt.get("cpf", 0) == 1:
        code_prefetch()
    clear_flags(a)
    a("v_and_b32 v16, 2, v0")
    a("v_cmp_ne_u32 vcc, 0, v16")
    a("v_mov_b32 v16, 0x4444")
    a("v_mov_b32 v17, 0xeeee")
    a(f"v_mov_b32 v{vONE}, 1")
    a(f"v_cndmask_b32 v{vOIDX}, v16, v17, vcc")
    a("v_lshrrev_b32 v18, 4, v0")
    a("v_and_b32 v19, 15, v0")
    a("v_lshlrev_b32 v16, 4, v19")
    a(f"v_lshl_add_u32 v{vEPO}, v18, 11, v16")
    a("v_and_b32 v20, 3, v0")
    a(f"v_mul_u32_u24 v{vFA}, {WREC}, v20")
    a(f"v_add_u32 v{vFA}, {L_PART + 2304}, v{vFA}")
    a("v_lshlrev_b32 v16, 2, v20")
    a(f"v_add_u32 v{vFE}, {L_FLG}, v16")
    a(f"v_mov_b32 v{vF1}, {L_FLG}")
    a("v_bfe_u32 v16, v0, 1, 1")
    a("v_lshl_add_u32 v16, v16, 2, v18")
    a("v_bfe_u32 v21, v0, 2, 2")
    a("v_lshl_add_u32 v16, v16, 2, v21")
    a("v_and_b32 v17, 1, v0")
    a("v_lshl_add_u32 v16, v16, 1, v17")
    a("v_lshlrev_b32 v16, 2, v16")
    a(f"v_add_u32 v{vRS}, {L_PART}, v16")
    a(f"v_add_u32 v{vRS2}, {L_PART + 2*WREC}, v16")
    a("v_bfe_u32 v16, v0, 1, 4")
    a("v_lshrrev_b32 v22, 5, v0")
    a("v_lshl_add_u32 v16, v16, 1, v22")
    a("v_lshl_add_u32 v16, v16, 1, v17")
    a(f"s_lshl_b32 s52, s{sV}, 2")
    a(f"s_add_u32 s52, s52, {L_AFR + 7*1024}")
    a(f"v_lshl_add_u32 v{vAW}, v16, 4, s52")
    a(f"v_add_u32 v9, {L_AFR}, v{vL16}")
    a(f"v_lshrrev_b32 v{MA}, 1, v0")
    a(f"v_mul_u32_u24 v{MA}, 3584, v{MA}")
    a(f"v_lshl_add_u32 v{MA}, v17, 4, v{MA}")
    a(f"v_lshrrev_b32 v{MA+1}, 2, v0")
    a(f"v_lshlrev_b32 v{MA+1}, 10, v{MA+1}")
    a(f"v_lshl_add_u32 v{MA+1}, v20, 4, v{MA+1}")
    a(f"v_lshlrev_b32 v{MA+3}, 2, v0")
    a(f"s_mul_i32 s58, s{sV}, {MREC}")
    a(f"s_add_u32 s58, s58, {L_MOEW}")
    a(f"s_and_b32 s52, s{sV}, 1")
    a("s_lshl_b32 s52, s52, 9")
    a("s_add_u32 s52, s52, s58")
    a(f"v_lshl_add_u32 v{TM}, v18, 4, s52")
    a("s_mov_b32 s52, s58")
    a("v_lshlrev_b32 v20, 3, v20")
    a(f"v_lshl_add_u32 v{TM+1}, v18, 3, v21")
    a(f"v_lshl_add_u32 v{TM+1}, v{TM+1}, 5, v20")
    a(f"v_add_u32 v{TM+1}, s52, v{TM+1}")
    a(f"v_lshl_add_u32 v{TM+2}, v22, 3, v21")
    a(f"v_lshl_add_u32 v{TM+2}, v{TM+2}, 6, v20")
    a("v_and_b32 v16, 1, v18")
    a(f"v_lshl_add_u32 v{TM+2}, v16, 5, v{TM+2}")
    a(f"v_add_u32 v{TM+2}, s52, v{TM+2}")
    a(f"s_lshl_b32 s52, s{sV}, 6")
    a(f"s_add_u32 s52, s52, {L_HP}")
    a(f"v_lshl_add_u32 v{TM+3}, v18, 4, s52")
    a(f"s_lshl_b32 s52, s{sV}, 2")
    a(f"v_add_u32 v{TM+4}, s52, v{vF1}")
    a(f"v_lshlrev_b32 v{TM+5}, 2, v19")
    a(f"v_add_u32 v{TM+5}, {L_HP}, v{TM+5}")
    a(f"s_lshl_b32 s52, s{sV}, 5")
    a(f"s_add_u32 s52, s52, {L_HB}")
    a(f"v_lshl_add_u32 v{TM+6}, v19, 1, s52")
    a(f"v_lshl_add_u32 v{TM+7}, v22, 4, s52")
    a(f"v_mov_b32 v{TM+8}, 0")
    if opt.get("mtouch", 0):
        a("v_lshrrev_b32 v118, 2, v0")
        a("v_mul_u32_u24 v118, 3584, v118")
        a("v_lshl_add_u32 v118, v20, 4, v118")
        a("s_mul_i32 s36, s50, 448")
        a("s_andn2_b32 s36, s36, 127")
        a("s_lshl_b32 s39, s51, 1")
        a(f"s_and_b32 s38, s{sV}, 1")
        a("s_add_u32 s39, s39, s38")
        a("s_and_b32 s39, s39, 31")
        a(f"s_mul_i32 s37, s39, {16*3584}")
        a("s_add_u32 s36, s36, s37")
        a("v_min_u32 v117, 55, v0")
        a("v_lshlrev_b32 v117, 7, v117")
        a(f"s_mul_i32 s37, s50, {224*1024}")
        a(f"s_mul_i32 s38, s39, {56*128}")
        a("s_add_u32 s37, s37, s38")
    a("v_lshlrev_b32 v12, 3, v0")
    a(f"s_mov_b32 s52, {WS_CAND}")
    a(f"s_lshl_b32 s53, s{sV}, 1")
    a(f"s_add_u32 s54, s53, s{sROT}")
    a(f"s_lshl_b32 s53, s53, 10")
    a("s_waitcnt lgkmcnt(0)")
    stamp(a, 1)
    a(f"buffer_load_dwordx2 v[14:15], v12, s[{WS}:{WS+3}], s52 offen")
    for e in range(2):
        a(f"s_add_u32 s55, s54, {e}")
        a("s_and_b32 s55, s55, 7")
        a("s_lshl_b32 s55, s55, 10")
        a(f"s_add_u32 m0, s53, {L_Q + e*1024}")
        a(f"s_add_u32 s55, s55, s{sQB}")
        a(f"buffer_load_dwordx4 v{vL16}, s[{WS}:{WS+3}], s55 offen lds")
    a(f"s_bitcmp1_b32 s{sW}, 1")
    a(f"s_cselect_b64 s[{MW}:{MW+1}], s[34:35], s[32:33]")
    a(f"s_setprio {opt.get('sprio', 2)}")
    a("s_waitcnt vmcnt(2)")
    argmax(a, 14, sKEY, sIDX)
    a(f"s_lshr_b32 s52, s{sIDX}, 3")
    a(f"s_cmp_eq_u32 s52, s{sBROW}")
    a(f"s_cselect_b32 s{sMOE}, 0, s{sMOE}")
    a("s_cmp_eq_u32 s2, 248")
    a("s_cbranch_scc0 K2_nospare")
    a("s_lshr_b32 s53, s52, 5")
    a("s_and_b32 s52, s52, 31")
    a(f"s_mul_i32 s{sSL}, s53, 14")
    a(f"s_add_u32 s{sSL}, s{sSL}, s52")
    a(f"s_cmp_lt_u32 s52, {28 if opt.get('moeeven', 1) else 14}")
    a(f"s_cselect_b32 s{sMOE}, {0 if ABL & 4 else 1}, 0")
    if opt.get("moeeven", 1):
        a(f"s_andn2_b32 s{sMOE}, s{sMOE}, s53")
    a.label("K2_nospare")
    a("s_waitcnt vmcnt(0)")
    stamp(a, 2)
    a("s_barrier")
    stamp(a, 3)
    if opt.get("mtouch", 0):
        a("s_cmp_lt_u32 s51, 16")
        a("s_cbranch_scc1 K2_t2")
        a(f"buffer_load_dword v119, v118, s[{MW}:{MW+3}], s36 offen")
        a(f"s_cmp_ge_u32 s{sV}, 2")
        a("s_cbranch_scc1 K2_t2")
        a(f"buffer_load_dword v116, v117, s[{WD}:{WD+3}], s37 offen")
        a.label("K2_t2")
    if opt.get("cpf", 0) == 2:
        code_prefetch()

    def spin(addr, off, tag, vt, sleep):
        a("s_mov_b32 s60, 0")
        a.label(f"K2_spin_{tag}")
        a(f"ds_read_b32 v{vt}, v{addr} offset:{off}")
        a("s_waitcnt lgkmcnt(0)")
        a(f"v_cmp_eq_u32 vcc, 0, v{vt}")
        a(f"s_cbranch_vccz K2_spun_{tag}")
        a(f"s_sleep {sleep}")
        a("s_add_u32 s60, s60, 1")
        a("s_cmp_lt_u32 s60, 0x400000")
        a(f"s_cbranch_scc1 K2_spin_{tag}")
        a.label(f"K2_spun_{tag}")

    WP = opt.get("wpace", 12)

    def wo_loads(t):
        if ABL & 1:
            return
        a(f"s_add_u32 s52, s{sROT}, {t}")
        a("s_and_b32 s52, s52, 7")
        a("s_lshl_b32 s52, s52, 16")
        a("s_add_u32 s52, s52, s54")
        for h in range(4):
            a(f"s_waitcnt vmcnt({WP})")
            for i in range(4):
                a(f"buffer_load_dwordx4 {vr(BUF[t%2]+h*16+i*4,4)}, v{vL16}, s[{WS}:{WS+3}], s52 offen offset:{i*1024}")
            if h < 3:
                a("s_add_u32 s52, s52, 4096")

    a(f"s_cmp_eq_u32 s{sMOE}, 0")
    a("s_cbranch_scc1 K2_project")
    a(f"s_lshl_b32 s54, s{sV}, 14")
    a(f"s_add_u32 s54, s54, {WS_WOF}")
    if opt.get("wfirst", 1):
        wo_loads(0)
        wo_loads(1)
        a("s_waitcnt vmcnt(4)")
    a(f"s_and_b32 s55, s{sV}, 1")
    a(f"s_mul_i32 s53, s55, {256*3584}")
    a(f"s_lshl_b32 s52, s{sSL}, 5")
    a("s_add_u32 s53, s53, s52")
    a(f"s_lshl_b32 s56, s{sSL}, 1")
    MP = opt.get("mpace", 3)
    a(f"s_lshl_b32 s57, s{sIDX}, 10")
    a("s_add_u32 m0, s58, 12288")
    a("s_nop 0")
    a(f"buffer_load_dwordx4 v{vL16}, s[{X}:{X+3}], s57 offen lds")
    for i in range(8):
        a(f"s_add_u32 s57, s56, {i}")
        a("s_and_b32 s57, s57, 7")
        a("s_lshl_b32 s59, s57, 10")
        a("s_add_u32 m0, s59, s58")
        a(f"s_mul_i32 s57, s57, {32*3584}")
        a("s_add_u32 s57, s57, s53")
        if i >= MP:
            a(f"s_waitcnt vmcnt({MP - 1})")
        a(f"buffer_load_dwordx4 v{MA}, s[{MW}:{MW+3}], s57 offen lds")
    a(f"s_lshl_b32 s53, s{sSL}, 14")
    a(f"s_lshl_b32 s52, s{sV}, 8")
    a("s_add_u32 s53, s53, s52")
    a(f"s_waitcnt vmcnt({MP - 1})")
    for i in range(4):
        a(f"s_add_u32 m0, s58, {8192 + i*1024}")
        a("s_nop 0" if i == 0 else "s_add_u32 s53, s53, 64")
        a(f"buffer_load_dwordx4 v{MA+1}, s[{WD}:{WD+3}], s53 offen lds")
    stamp(a, 9)
    a("s_waitcnt vmcnt(4)")
    for i in range(8):
        a(f"ds_read_b64_tr_b16 {vr(LG+4*i,2)}, v{TM+1} offset:{i*1024}")
        a(f"ds_read_b64_tr_b16 {vr(LG+4*i+2,2)}, v{TM+1} offset:{i*1024 + 128}")
        a(f"ds_read_b128 {vr(LXS+4*i,4)}, v{TM} offset:{12288 + i*64}")
        if i in (3, 7):
            a("s_waitcnt lgkmcnt(0)")
    stamp(a, 10)
    if opt.get("mprio", 1):
        a("s_setprio 0")
    for i in range(8):
        cc = "0" if i == 0 else vr(D1, 4)
        a(f"v_mfma_f32_16x16x32_bf16 {vr(D1,4)}, {vr(LG+4*i,4)}, {vr(LXS+4*i,4)}, {cc}")
        if opt.get("gap", 0):
            a(f"s_nop {opt.get('gap', 6) - 1}")
    if opt.get("mprio", 1):
        a("s_setprio 2")
    a("s_waitcnt vmcnt(0)")
    for i in range(4):
        a(f"ds_read_b64_tr_b16 {vr(LD+4*i,2)}, v{TM+2} offset:{8192 + i*1024}")
        a(f"ds_read_b64_tr_b16 {vr(LD+4*i+2,2)}, v{TM+2} offset:{8192 + i*1024 + 256}")
    a(f"ds_write_b128 v{TM+3}, {vr(D1,4)}")
    a(f"ds_write_b32 v{TM+4}, v{vONE} offset:32")
    spin(vFE, 32, "L", TM + 9, opt.get("sll", 1))
    a(f"ds_read2_b32 {vr(D1,2)}, v{TM+5} offset0:0 offset1:32")
    a(f"ds_read2_b32 {vr(D1+2,2)}, v{TM+5} offset0:16 offset1:48")
    a("s_waitcnt lgkmcnt(0)")
    a(f"v_pk_add_f32 {vr(D1,2)}, {vr(D1,2)}, {vr(D1+2,2)}")
    a(f"v_cvt_pk_bf16_f32 v{D1}, v{D1}, v{D1+1}")
    a(f"v_lshlrev_b32 v{D1+1}, 16, v{D1}")
    a(f"v_mul_f32 v{D1+2}, {fbits(-LOG2E):#x}, v{D1+1}")
    a(f"v_exp_f32 v{D1+2}, v{D1+2}")
    a(f"v_and_b32 v{D1}, 0xffff0000, v{D1}")
    a(f"v_add_f32 v{D1+2}, 1.0, v{D1+2}")
    a(f"v_rcp_f32 v{D1+2}, v{D1+2}")
    a("s_nop 0")
    a(f"v_mul_f32 v{D1+1}, v{D1+1}, v{D1+2}")
    a(f"v_cvt_pk_bf16_f32 v{D1+1}, v{D1+1}, v{D1+1}")
    a(f"v_and_b32 v{D1+1}, 0xffff0000, v{D1+1}")
    a(f"v_mul_f32 v{D1}, v{D1}, v{D1+1}")
    a(f"v_cvt_pk_bf16_f32 v{D1}, v{D1}, v{D1}")
    a(f"ds_write_b16 v{TM+6}, v{D1}")
    a(f"ds_read_b128 {vr(D1,4)}, v{TM+7}")
    a(f"s_lshl_b32 s53, s{sV}, 9")
    a(f"s_add_u32 s53, s53, {WS_YACC}")
    a(f"s_and_b32 s52, s{sSL}, {NREP-1}")
    a("s_lshl_b32 s52, s52, 11")
    a("s_add_u32 s53, s53, s52")
    a("s_waitcnt lgkmcnt(0)")
    DD = [16, 32, 48, 64]
    if opt.get("mprio", 1):
        a("s_setprio 0")
    for i in range(4):
        a(f"v_mfma_f32_32x32x16_bf16 {vr(DD[i],16)}, {vr(D1,4)}, {vr(LD+4*i,4)}, 0")
        if i < 3 and opt.get("gap2", 0):
            a(f"s_nop {opt.get('gap2') - 1}")
    if opt.get("mprio", 1):
        a("s_setprio 2")
    a("s_nop 15")
    a(f"v_permlane32_swap_b32 v{DD[0]}, v{DD[1]}")
    a(f"v_permlane32_swap_b32 v{DD[2]}, v{DD[3]}")
    a(f"buffer_atomic_add_f32 v{DD[0]}, v{MA+3}, s[{WS}:{WS+3}], s53 offen")
    a(f"buffer_atomic_add_f32 v{DD[2]}, v{MA+3}, s[{WS}:{WS+3}], s53 offen offset:256")
    a(f"s_lshl_b32 s52, s{sSL}, 2")
    a(f"s_add_u32 s52, s52, s{sV}")
    a("s_lshl_b32 s52, s52, 7")
    a(f"s_add_u32 s52, s52, {WS_YFLG}")
    stamp(a, 11)
    a("s_waitcnt vmcnt(0)")
    a("s_mov_b64 exec, 1")
    a(f"buffer_store_dword v{vONE}, v{TM+8}, s[{WS}:{WS+3}], s52 offen sc1")
    a("s_mov_b64 exec, -1")

    if opt.get("wfirst", 1):
        a("s_branch K2_loaded")

    lo, hi = fbits(2.0 ** -32), fbits(2.0 ** 120)

    def check(l):
        a(f"v_subrev_u32 v{l}, {lo:#x}, v{l}")
        a(f"v_cmp_lt_u32 vcc, {hi - lo:#x}, v{l}")

    def reduce_norm(t):
        u0 = t * PREC // 256
        for hw in range(2):
            a(f"ds_read2st64_b32 {vr(RAW+32+2*hw,2)}, v{[vRS, vRS2][hw]} offset0:{u0+8} offset1:{u0+8+WREC//256}")
        for w in range(4):
            if w == 3:
                a("s_waitcnt lgkmcnt(8)")
            for i in range(4):
                o = u0 + (w & 1) * (WREC // 256) + 2 * i
                a(f"ds_read2st64_b32 {vr(RAW+8*w+2*i,2)}, v{[vRS, vRS2][w >> 1]} offset0:{o} offset1:{o+1}")
        a("s_waitcnt lgkmcnt(0)")
        a(f"v_pk_add_f32 {vr(RAW+32,2)}, {vr(RAW+32,2)}, {vr(RAW+34,2)}")
        for i in range(4):
            a(f"v_pk_add_f32 {vr(RAW+2*i,2)}, {vr(RAW+2*i,2)}, {vr(RAW+8+2*i,2)}")
        a(f"v_add_f32 v{RAW+32}, v{RAW+32}, v{RAW+33}")
        for i in range(4):
            a(f"v_pk_add_f32 {vr(RAW+16+2*i,2)}, {vr(RAW+16+2*i,2)}, {vr(RAW+24+2*i,2)}")
        a(f"v_rcp_f32 v{RAW+34}, v{RAW+32}")
        check(RAW + 32)
        for i in range(4):
            a(f"v_pk_add_f32 {vr(RAW+2*i,2)}, {vr(RAW+2*i,2)}, {vr(RAW+16+2*i,2)}")
        a(f"s_or_b64 s[{sBAD}:{sBAD+1}], s[{sBAD}:{sBAD+1}], vcc")
        for i in range(4):
            a(f"v_pk_mul_f32 {vr(RAW+2*i,2)}, {vr(RAW+2*i,2)}, {vr(RAW+34,2)} op_sel_hi:[1,0]")
        for i in range(4):
            a(f"v_cvt_pk_bf16_f32 v{AF+i}, v{RAW+2*i}, v{RAW+2*i+1}")

    def duty(t):
        a(f"s_cmp_eq_u32 s{sV}, {t & 3}")
        a(f"s_cbranch_scc0 K2_nod{t}")
        spin(vFA, t * PREC, f"P{t}", RAW, opt.get("sl1", 4))
        reduce_norm(t)
        a(f"ds_write_b128 v9, {vr(AF,4)} offset:{t*1024}")
        a(f"ds_write_b32 v{vF1}, v{vONE} offset:{4*t}")
        a.label(f"K2_nod{t}")

    a.label("K2_project")
    stamp(a, 4)
    if ABL & 8:
        a("s_branch K2_ctail")
    a(f"s_lshl_b32 s54, s{sV}, 14")
    a(f"s_add_u32 s54, s54, {WS_WOF}")
    wo_loads(0)
    wo_loads(1)
    a.label("K2_loaded")
    if opt.get("lowp", 0):
        a(f"s_mul_i32 s52, s{sV}, {WREC}")
        a(f"s_add_u32 s52, s52, {L_PART + 2304}")
        a("v_mov_b32 v108, s52")
    a(f"v_mov_b64 {vr(TT,2)}, 0")
    a("s_nop 1")
    for i in range(2):
        a(f"v_mfma_f32_32x32x8_bf16 {vr(ACC+16*i,16)}, {vr(TT,2)}, {vr(TT,2)}, 0")
        a("s_nop 15")
    a(f"s_mov_b64 s[{sBAD}:{sBAD+1}], 0")
    for t in range(8):
        if t < 7:
            if t == 0:
                duty(0)
            spin(vF1, 4 * t, f"A{t}", RAW, opt.get("sl2", 4))
            a(f"ds_read_b128 {vr(AF,4)}, v9 offset:{t*1024}")
            LP = opt.get("lowp", 0)
            if t < LP:
                a(f"ds_read_b32 v{RAW}, v108 offset:{(t+1)*PREC}")
                a(f"s_waitcnt vmcnt(16) lgkmcnt(0)")
                a(f"v_cmp_eq_u32 vcc, 0, v{RAW}")
                a(f"s_cbranch_vccz K2_hp{t}")
                a("s_setprio 0")
                for i in range(opt.get("nv", 3)):
                    a("v_nop")
                for u in range(8):
                    a(f"v_smfmac_f32_16x16x64_bf16 {vr(ACC+4*u,4)}, {vr(AF,4)}, {vr(BUF[t%2]+u*8,8)}, v{vOIDX}")
                a("s_setprio 2")
                a(f"s_branch K2_pd{t}")
                a.label(f"K2_hp{t}")
            else:
                a(f"s_waitcnt vmcnt(16) lgkmcnt(0)")
        else:
            u0 = 7 * PREC // 256
            a.label("K2_lasttile")
            a(f"s_lshl_b32 s52, s{sV}, 9")
            a(f"v_lshlrev_b32 v{TT}, 2, v0")
            a(f"v_add_u32 v{TT}, {L_PART}, v{TT}")
            a(f"v_add_u32 v{TT+1}, {2*WREC}, v{TT}")
            a(f"v_add_u32 v{TT+2}, s52, v{TT}")
            a(f"v_add_u32 v{TT+3}, s52, v{TT+1}")
            a("s_waitcnt vmcnt(0)")
            stamp(a, 6)
            a("s_barrier")
            stamp(a, 7)
            for hw in range(2):
                a(f"ds_read2st64_b32 {vr(RAW+8+2*hw,2)}, v{TT+hw} offset0:{u0+8} offset1:{u0+8+WREC//256}")
            for w in range(4):
                o = u0 + (w & 1) * (WREC // 256)
                a(f"ds_read2st64_b32 {vr(RAW+2*w,2)}, v{TT+2+(w>>1)} offset0:{o} offset1:{o+1}")
            a("s_waitcnt lgkmcnt(4)")
            a(f"v_pk_add_f32 {vr(RAW+8,2)}, {vr(RAW+8,2)}, {vr(RAW+10,2)}")
            a(f"v_add_f32 v{RAW+8}, v{RAW+8}, v{RAW+9}")
            a(f"v_rcp_f32 v{RAW+10}, v{RAW+8}")
            a("s_waitcnt lgkmcnt(0)")
            a(f"v_pk_add_f32 {vr(RAW,2)}, {vr(RAW,2)}, {vr(RAW+2,2)}")
            a(f"v_pk_add_f32 {vr(RAW+4,2)}, {vr(RAW+4,2)}, {vr(RAW+6,2)}")
            a(f"v_pk_add_f32 {vr(RAW,2)}, {vr(RAW,2)}, {vr(RAW+4,2)}")
            a(f"v_pk_mul_f32 {vr(RAW,2)}, {vr(RAW,2)}, {vr(RAW+10,2)} op_sel_hi:[1,0]")
            a(f"v_cvt_pk_bf16_f32 v{RAW}, v{RAW}, v{RAW+1}")
            a(f"ds_write_b32 v{vAW}, v{RAW}")
            check(RAW + 8)
            a("s_waitcnt lgkmcnt(0)")
            a("s_barrier")
            a(f"ds_read_b128 {vr(AF,4)}, v9 offset:{7*1024}")
            a(f"s_or_b64 s[{sBAD}:{sBAD+1}], s[{sBAD}:{sBAD+1}], vcc")
            a("s_waitcnt lgkmcnt(0)")
        if t < 7 and opt.get("mprio", 1):
            a("s_setprio 0")
        for u in range(8):
            if not (ABL & 2):
                a(f"v_smfmac_f32_16x16x64_bf16 {vr(ACC+4*u,4)}, {vr(AF,4)}, {vr(BUF[t%2]+u*8,8)}, v{vOIDX}")
                if t < 7 and u < 7 and opt.get("gap", 0):
                    a(f"s_nop {opt.get('gap', 6) - 1}")
        if t < 7 and opt.get("mprio", 1):
            a("s_setprio 2")
        if t < opt.get("lowp", 0):
            a.label(f"K2_pd{t}")
        TR = opt.get("tres", 3)
        if t < 5:
            duty(t + 1)
        if t == TR:
            a(f"s_lshl_b32 s55, s{sBROW}, 13")
            a(f"s_lshl_b32 s53, s{sV}, 8")
            a("s_add_u32 s55, s55, s53")
            a(f"v_lshrrev_b32 v{TT+1}, 4, v0")
            a(f"v_lshlrev_b32 v{TT+1}, 3, v{TT+1}")
            a(f"s_lshl_b32 s52, s{sBROW}, 5")
            a(f"s_add_u32 s52, s52, {WS_G}")
            a(f"buffer_load_dwordx2 {vr(G,2)}, v{TT+1}, s[{WS}:{WS+3}], s52 offen")
            if opt.get("tlbo", 0):
                a(f"buffer_load_dword v109, v{TT+1}, s[{OUT}:{OUT+3}], s55 offen sc1")
            for rr in range(2):
                a(f"buffer_load_dwordx4 {vr(XR+4*rr,4)}, v{vEPO}, s[{X}:{X+3}], s55 offen offset:{rr*1024}")
        if t < 6:
            wo_loads(t + 2)
        if t == 5:
            duty(6)
        if t == TR:
            a("s_waitcnt vmcnt(16)")
            for rr in range(2):
                for h in range(4):
                    a(f"v_lshlrev_b32 v{PR+4*h+rr}, 16, v{XR+4*rr+h}")
                    a(f"v_and_b32 v{PR+4*h+2+rr}, 0xffff0000, v{XR+4*rr+h}")
            a(f"s_lshr_b32 s52, s{sIDX}, 3")
            a(f"s_cmp_eq_u32 s52, s{sBROW}")
            if not (ABL & 4):
                a("s_cbranch_scc1 K2_owner")
            a.label("K2_owned")
            a(f"v_pk_add_f32 {vr(TT,2)}, {vr(G,2)}, 1.0 op_sel_hi:[1,0] neg_lo:[1,0] neg_hi:[1,0]")
            for i in range(8):
                a(f"v_pk_mul_f32 {vr(PR+2*i,2)}, {vr(PR+2*i,2)}, {vr(TT,2)}")
    a("s_nop 0")
    for hp in range(2):
        for n in range(8):
            a(f"v_pk_fma_f32 {vr(PR+2*n,2)}, {vr(G,2)}, {vr(ACC+4*n+2*hp,2)}, {vr(PR+2*n,2)}")
    for rr in range(2):
        for h in range(4):
            a(f"v_cvt_pk_bf16_f32 v{XR+4*rr+h}, v{PR+4*h+rr}, v{PR+4*h+2+rr}")
        a(f"buffer_store_dwordx4 {vr(XR+4*rr,4)}, v{vEPO}, s[{OUT}:{OUT+3}], s55 offen offset:{rr*1024}")
    stamp(a, 8)
    a(f"v_pk_add_f32 {vr(TT,2)}, {vr(ACC,2)}, {vr(ACC+2,2)}")
    a(f"v_mul_f32 v{TT}, 0, v{TT}")
    a(f"v_fmac_f32 v{TT}, 0, v{TT+1}")
    a(f"v_cmp_u_f32 vcc, v{TT}, v{TT}")
    a(f"s_or_b64 s[{sBAD}:{sBAD+1}], s[{sBAD}:{sBAD+1}], vcc")
    a("s_cbranch_scc0 K2_final")
    if not ABL:
        a(f"ds_write_b32 v{vF1}, v{vONE} offset:48")
    a("s_branch K2_final")

    a.label("K2_owner")
    a(f"v_lshlrev_b32 v{TT}, 7, v0")
    a("s_mov_b32 s60, 0")
    a.label("K2_ypoll")
    a(f"s_mov_b32 s52, {WS_YFLG}")
    for i in range(7):
        a(f"buffer_load_dword v{RAW+i}, v{TT}, s[{WS}:{WS+3}], s52 offen sc1")
        if i < 6:
            a("s_add_u32 s52, s52, 8192")
    a("s_waitcnt vmcnt(0)")
    a(f"v_min3_u32 v{RAW}, v{RAW}, v{RAW+1}, v{RAW+2}")
    a(f"v_min3_u32 v{RAW+3}, v{RAW+3}, v{RAW+4}, v{RAW+5}")
    a(f"v_min3_u32 v{RAW}, v{RAW}, v{RAW+3}, v{RAW+6}")
    a(f"v_cmp_eq_u32 vcc, 0, v{RAW}")
    a("s_cbranch_vccz K2_yready")
    a("s_sleep 8")
    a("s_add_u32 s60, s60, 1")
    a("s_cmp_lt_u32 s60, 0x100000")
    a("s_cbranch_scc1 K2_ypoll")
    a.label("K2_yready")
    a(f"v_lshlrev_b32 v{TT}, 3, v0")
    a(f"s_lshl_b32 s52, s{sV}, 9")
    a(f"v_add_u32 v{TT+2}, s52, v{TT}")
    a(f"v_add_u32 v{TT+2}, {L_Y}, v{TT+2}")
    a(f"v_and_b32 v{TT+3}, 15, v0")
    a(f"v_lshl_add_u32 v{TT+3}, v{TT+3}, 5, s52")
    a(f"v_add_u32 v{TT+3}, {L_Y}, v{TT+3}")
    a(f"s_add_u32 s52, s52, {WS_YACC}")
    for i in range(NREP):
        a(f"buffer_load_dwordx2 {vr(RAW+2*i,2)}, v{TT}, s[{WS}:{WS+3}], s52 offen offset:{(i&1)*2048} sc1")
        if i & 1 and i < NREP - 1:
            a("s_add_u32 s52, s52, 4096")
    a(f"s_ashr_i32 s52, s{sKEY}, 31")
    a("s_not_b32 s52, s52")
    a("s_or_b32 s52, s52, 0x80000000")
    a(f"s_xor_b32 s53, s{sKEY}, s52")
    a("s_and_b32 s53, s53, 0xfffff800")
    a(f"v_cvt_pk_bf16_f32 v{TT+1}, s53, s53")
    a(f"v_and_b32 v{TT+1}, 0xffff0000, v{TT+1}")
    a(f"v_mul_f32 v{TT+1}, {fbits(-LOG2E):#x}, v{TT+1}")
    a(f"v_exp_f32 v{TT+1}, v{TT+1}")
    a(f"s_bfe_u32 s53, s{sIDX}, 0x20001")
    a(f"v_lshrrev_b32 v{YR}, 4, v0")
    a(f"v_add_f32 v{TT+1}, 1.0, v{TT+1}")
    a(f"v_rcp_f32 v{TT+1}, v{TT+1}")
    a(f"v_cmp_eq_u32 s[56:57], s53, v{YR}")
    a(f"v_cvt_pk_bf16_f32 v{TT+1}, v{TT+1}, v{TT+1}")
    a(f"v_and_b32 v{TT+1}, 0xffff0000, v{TT+1}")
    a("s_waitcnt vmcnt(0)")
    n = NREP
    while n > 1:
        n //= 2
        for i in range(n):
            a(f"v_pk_add_f32 {vr(RAW+2*i,2)}, {vr(RAW+2*i,2)}, {vr(RAW+2*(i+n),2)}")
    a(f"v_cvt_pk_bf16_f32 v{RAW}, v{RAW}, v{RAW+1}")
    a(f"v_and_b32 v{RAW+1}, 0xffff0000, v{RAW}")
    a(f"v_lshlrev_b32 v{RAW}, 16, v{RAW}")
    a(f"v_mul_f32 v{RAW}, v{RAW}, v{TT+1}")
    a(f"v_mul_f32 v{RAW+1}, v{RAW+1}, v{TT+1}")
    a(f"ds_write_b64 v{TT+2}, {vr(RAW,2)}")
    a(f"ds_read_b128 {vr(YR,4)}, v{TT+3}")
    a(f"ds_read_b128 {vr(YR+4,4)}, v{TT+3} offset:16")
    a("s_waitcnt lgkmcnt(0)")
    a("s_mov_b64 exec, s[56:57]")
    a(f"s_bitcmp1_b32 s{sIDX}, 0")
    a("s_cbranch_scc1 K2_yrow1")
    for rr in range(2):
        if rr == 1:
            a.label("K2_yrow1")
        for n in range(8):
            a(f"v_add_f32 v{PR+2*n+rr}, v{PR+2*n+rr}, v{YR+n}")
        a("s_mov_b64 exec, -1")
        if rr == 0:
            a("s_branch K2_owned")
    a("s_branch K2_owned")

    C = S1
    a.label("K2_unsafe")
    a(f"s_mov_b32 s{sSLOW}, 1")
    a("s_waitcnt vmcnt(0)")
    a("s_barrier")
    clear_flags(a)
    a("v_mov_b32 v15, 0xff800000")
    for i in range(4):
        a(f"ds_write_b32 v12, v15 offset:{256 + 256*i}")
    a("s_waitcnt lgkmcnt(0)")
    a("s_barrier")
    a(f"s_cmp_lt_u32 s{sW}, 4")
    a("s_cbranch_scc1 K2_maxpass")
    a("s_barrier")
    a("s_branch K2_project")
    a.label("K2_maxpass")
    a("v_and_b32 v13, 31, v0")
    a("v_lshlrev_b32 v13, 2, v13")
    a(f"v_add_u32 v13, {L_MAX}, v13")
    a(f"v_mov_b32 v15, v{vL16}")
    a("s_mov_b32 s55, 0")
    a.label("K2_maxloop")
    a(f"ds_read_b128 {vr(Q,4)}, v15")
    a("v_mov_b32 v14, 0xff800000")
    a("s_waitcnt lgkmcnt(0)")
    for j in range(16):
        a(f"v_mfma_f32_32x32x16_bf16 {vr(S0,16)}, {vr(K+4*j,4)}, {vr(Q,4)}, 0")
        a("s_nop 15")
        for i in range(8):
            a(f"v_max3_f32 v14, v{S0+2*i}, v{S0+2*i+1}, v14")
    a("ds_max_f32 v13, v14")
    a("v_add_u32 v13, 128, v13")
    a("v_add_u32 v15, 1024, v15")
    a("s_add_u32 s55, s55, 1")
    a("s_cmp_lt_u32 s55, 8")
    a("s_cbranch_scc1 K2_maxloop")
    a("s_waitcnt lgkmcnt(0)")
    a("s_barrier")
    a("v_subrev_u32 v13, 1024, v13")
    a(f"v_mov_b32 v15, v{vL16}")
    a("v_lshl_add_u32 v3, v0, 2, s54")
    a("s_mov_b32 s55, 0")
    a.label("K2_exactloop")
    a(f"ds_read_b128 {vr(Q,4)}, v15")
    a("ds_read_b32 v14, v13")
    for i in range(8):
        a(f"v_mov_b64 {vr(O+2*i,2)}, 0")
    a("s_waitcnt lgkmcnt(0)")
    for i in range(16):
        a(f"v_sub_f32 v{C+i}, 0, v14")
    a("s_nop 1")
    for j in range(16):
        a(f"v_mfma_f32_32x32x16_bf16 {vr(S0,16)}, {vr(K+4*j,4)}, {vr(Q,4)}, {vr(C,16)}")
        a("s_nop 15")
        for i in range(16):
            a(f"v_exp_f32 v{S0+i}, v{S0+i}")
        a("s_nop 1")
        a(pv(j, 0, S0))
        a(pv(j, 1, S0))
    a("s_nop 15")
    for r in range(9):
        a(f"ds_write_b32 v3, v{O+r} offset:{L_PART + r*256}")
    a(f"ds_write_b32 v3, v{vPIDX} offset:{L_PART + 2304}")
    a("s_waitcnt lgkmcnt(0)")
    a("v_add_u32 v13, 128, v13")
    a("v_add_u32 v15, 1024, v15")
    a(f"v_add_u32 v3, {PREC}, v3")
    a("s_add_u32 s55, s55, 1")
    a("s_cmp_lt_u32 s55, 8")
    a("s_cbranch_scc1 K2_exactloop")
    a("s_branch K2_ctail")
    a.label("K2_end")


def clear_flags(a):
    a("v_and_b32 v13, 31, v0")
    a(f"v_mul_u32_u24 v13, {PREC}, v13")
    a("v_lshlrev_b32 v12, 2, v0")
    a(f"v_add_u32 v12, {L_FLG}, v12")
    a("v_mov_b32 v14, 0")
    a(f"ds_write_b32 v13, v14 offset:{L_PART + 2304}")
    a("ds_write_b32 v12, v14")


def argmax(a, v, sKEY, sIDX):
    a(f"v_max_u32 v{v}, v{v}, v{v+1}")
    a("s_nop 1")
    for d in ("row_shr:1 row_mask:0xf", "row_shr:2 row_mask:0xf", "row_shr:4 row_mask:0xf", "row_shr:8 row_mask:0xf",
              "row_bcast:15 row_mask:0xa", "row_bcast:31 row_mask:0xc"):
        a(f"v_max_u32_dpp v{v}, v{v}, v{v} {d} bank_mask:0xf")
        a("s_nop 1")
    a(f"v_readlane_b32 s{sKEY}, v{v}, 63")
    a("s_nop 3")
    a(f"s_andn2_b32 s{sIDX}, 2047, s{sKEY}")


HEADER = """; Kernarg layout for this problem (112 bytes, ptrs only, base s[0:1]):
;   offset  80: gate_w (512)   offset  88: d_out (1,2048,512) bf16   offset  96: d_debug   offset 104: d_ws
; @launch kernel=prep_kernel grid=(256,1,1) block=(512,1,1) lds={k1lds}
; @launch kernel=attn_kernel grid=(256,1,1) block=(512,1,1) lds={k2lds}
;
; prep_kernel : Q/K/V projections, router scores, mix gate, fragment-order copies of K, V^T and wo.
;   waves 4-7: routed-expert slice, reduction of the four key-range partials, normalisation, output projection
;
; is range-checked at run time (2^-32 <= sum <= 2^120, results finite); a workgroup that sees any row outside that
.amdgcn_target "amdgcn-amd-amdhsa--gfx950"
.text
"""

KD = """.amdhsa_kernel {name}
  .amdhsa_next_free_vgpr {vgpr}
  .amdhsa_next_free_sgpr {sgpr}
  .amdhsa_accum_offset {vgpr}
  .amdhsa_group_segment_fixed_size 0
  .amdhsa_kernarg_size 112
  .amdhsa_user_sgpr_count 2
  .amdhsa_user_sgpr_kernarg_segment_ptr 1
  .amdhsa_system_sgpr_workgroup_id_x 1
.end_amdhsa_kernel
"""


def unpack_pk(text):
    import re
    res, tail = [], False
    for line in text.split("\n"):
        if line.startswith("K2_lasttile:"):
            tail = True
        if line.startswith("K2_owner:"):
            tail = False
        m = re.match(r"\s+v_pk_(add|mul)_f32 v\[(\d+):\d+\], v\[(\d+):\d+\], v\[(\d+):\d+\]( op_sel_hi:\[1,0\])?$", line)
        if m and not tail:
            op, d, x, y, bc = m.group(1), int(m.group(2)), int(m.group(3)), int(m.group(4)), m.group(5)
            res.append(f"    v_{op}_f32 v{d}, v{x}, v{y}")
            res.append(f"    v_{op}_f32 v{d+1}, v{x+1}, v{y if bc else y+1}")
            continue
        m = re.match(r"\s+v_pk_add_f32 v\[(\d+):\d+\], v\[(\d+):\d+\], 1.0 op_sel_hi", line)
        if m and not tail:
            d, x = int(m.group(1)), int(m.group(2))
            res.append(f"    v_sub_f32 v{d}, 1.0, v{x}")
            res.append(f"    v_sub_f32 v{d+1}, 1.0, v{x+1}")
            continue
        res.append(line)
    return "\n".join(res)


def postprocess(text, opt):
    opt.setdefault("k1st", "")
    opt.setdefault("k2st", "sc1")
    if opt.get("nopk", 0):
        text = unpack_pk(text)
    out = []
    k1 = True
    for line in text.split("\n"):
        if line.startswith("attn_kernel:"):
            k1 = False
        if "s96" not in line:
            if k1 and "buffer_store" in line and "sc1" not in line and opt.get("k1st"):
                line += " " + opt["k1st"].replace("_", " ")
            if not k1 and "buffer_store_dwordx4" in line and opt.get("k2st"):
                line += " " + opt["k2st"].replace("_", " ")
            if not k1 and "buffer_load_dwordx4" in line and ", s52 offen offset" in line and "sc1" not in line and opt.get("wofl"):
                line += " " + opt["wofl"].replace("_", " ")
        out.append(line)
    return "\n".join(out)


def generate(opt):
    STAMP[0] = opt.get("stamp", 0)
    PROBE[0] = opt.get("probe")
    nsg = 100 if (STAMP[0] or PROBE[0]) else 64
    out = HEADER.format(k1lds=K1_LDS, k2lds=K2_LDS)
    for name, fn in (("prep_kernel", gen_k1), ("attn_kernel", gen_k2)):
        a = Asm()
        fn(a, opt)
        out += f".globl {name}\n.p2align 8\n.type {name},@function\n" + a.text()
    if STAMP[0] == 2:
        out += """.globl post_kernel
.p2align 8
.type post_kernel,@function
post_kernel:
    s_memrealtime s[8:9]
    s_load_dwordx2 s[4:5], s[0:1], 104
    s_mov_b32 s6, 0x400000
    s_mov_b32 s7, 0x20000
    s_mov_b32 s12, 0x33fff0
    v_mov_b32 v1, 0
    s_waitcnt lgkmcnt(0)
    v_mov_b32 v2, s8
    buffer_store_dword v2, v1, s[4:7], s12 offen ; s96
    s_endpgm
"""
        out = out.replace(";\n; prep_kernel :", "; @launch kernel=post_kernel grid=(1,1,1) block=(64,1,1) lds=0\n;\n; prep_kernel :")
    if PROBE[0]:
        op = "max" if opt.get("first") else "min"
        out += WAITK % ((WS_PROBE,) + (op,) * 9)
        out = out.replace(";\n; prep_kernel :", "; @launch kernel=wait_kernel grid=(1,1,1) block=(64,1,1) lds=0\n;\n; prep_kernel :")
    out += '.section .rodata,"a"\n.p2align 6\n'
    out += KD.format(name="prep_kernel", vgpr=144, sgpr=nsg)
    out += ".p2align 6\n"
    out += KD.format(name="attn_kernel", vgpr=256, sgpr=nsg)
    if STAMP[0] == 2:
        out += ".p2align 6\n" + KD.format(name="post_kernel", vgpr=8, sgpr=16)
    if PROBE[0]:
        out += ".p2align 6\n" + KD.format(name="wait_kernel", vgpr=8, sgpr=16)
    return postprocess(out, opt)


def fuse(text, opt):
    kn = NAME + "_kernel"
    head, rest = text.split(".globl prep_kernel\n")
    code, rod = rest.split('.section .rodata,"a"')
    k1, k2 = code.split(".globl attn_kernel\n.p2align 8\n.type attn_kernel,@function\n")
    head = "\n".join(l for l in head.split("\n") if "@launch" not in l)
    head = f"; @launch grid=(256,1,1) block=(512,1,1) lds={max(K1_LDS, K2_LDS)}\n" + head
    k1 = k1.replace("prep_kernel", kn)
    k1 = k1.replace("    s_cbranch_scc1 K1_exit\n", "    s_cbranch_scc1 K2_exit\n" + ("    s_memrealtime s[98:99]\n" if opt.get("fwait") else ""), 1)
    k1 = k1.replace("s_endpgm", "s_branch GRIDBAR")
    bar = """GRIDBAR:
    s_mov_b64 exec, -1
    s_setprio 0
    s_load_dwordx2 s[36:37], s[0:1], 96
    s_mov_b32 s38, 256
    s_mov_b32 s39, 0x20000
    v_mov_b32 v2, 1
    v_mov_b32 v3, 0
    s_waitcnt vmcnt(0) lgkmcnt(0)
    s_barrier
    s_cmp_lg_u32 s40, 0
    s_cbranch_scc1 GB_done
    s_mov_b64 exec, 1
    buffer_atomic_add v2, v3, s[36:39], 0 offen
    s_mov_b32 s60, 0
GB_poll:
    buffer_load_dword v4, v3, s[36:39], 0 offen sc1
    s_waitcnt vmcnt(0)
    v_readfirstlane_b32 s61, v4
    s_nop 0
    s_cmp_ge_u32 s61, 256
    s_cbranch_scc1 GB_ok
    s_sleep 4
    s_add_u32 s60, s60, 1
    s_cmp_lt_u32 s60, 0x100000
    s_cbranch_scc1 GB_poll
GB_ok:
    buffer_inv sc1
    s_waitcnt vmcnt(0)
    s_mov_b64 exec, -1
GB_done:
    s_barrier
    s_lshl_b32 s61, s40, 6
    v_add_u32 v0, s61, v0
"""
    if opt.get("fwait"):
        k2 = k2.replace("K2_exit:\n", """    s_cmp_lg_u32 s2, 0
    s_cbranch_scc1 K2_exit
    s_mov_b32 s60, 0
FW_loop:
    s_memrealtime s[96:97]
    s_waitcnt lgkmcnt(0)
    s_sub_u32 s96, s96, s98
    s_add_u32 s60, s60, 1
    s_cmp_gt_u32 s60, 100000
    s_cbranch_scc1 K2_exit
    s_cmp_lt_u32 s96, 5000
    s_cbranch_scc1 FW_loop
K2_exit:
""")
    return head + f".globl {kn}\n" + k1 + bar + k2 + '.section .rodata,"a"\n.p2align 6\n' + KD.format(name=kn, vgpr=256, sgpr=100)


if __name__ == "__main__":
    opt = {}
    path = f"cdna_kernels/{NAME}.s"
    for arg in sys.argv[1:]:
        k, v = arg.split("=")
        if k == "out":
            path = v
        else:
            opt[k] = int(v) if v.lstrip("-").isdigit() else v
    if opt.get("fuse"):
        opt["k1st"] = "sc1"
    text = generate(opt)
    if opt.get("fuse"):
        text = fuse(text, opt)
    open(path, "w").write(text)
    print("wrote", path)
```

```python
import sys, struct, math

NAME = "gated_mix__grouped_kv_mqa__moe_arch_mod__prompt"

WS_QF = 0x000000
WS_KV = 0x200000
WS_WOF = 0x220000
WS_G = 0x2A0000
WS_CAND = 0x2A2000
WS_YACC = 0x2A4000
NREP = 8
WS_YFLG = WS_YACC + NREP * 2048
WS_END = WS_YFLG + 448 * 128

KA = dict(x=0, wq=8, wk=16, wv=24, wo=32, bx=40, wr=48, wg=56, wu=64, wd=72, gw=80, out=88, dbg=96, ws=104)


def fbits(f):
    return struct.unpack("<I", struct.pack("<f", f))[0]


class Asm:
    def __init__(self):
        self.L = []

    def __call__(self, s):
        for line in s.strip("\n").split("\n"):
            line = line.strip()
            if not line:
                continue
            if line.endswith(":") or line.startswith("."):
                self.L.append(line)
            else:
                self.L.append("    " + line)

    def label(self, n):
        self.L.append(n + ":")

    def c(self, s):
        self.L.append("    ; " + s)

    def text(self):
        return "\n".join(self.L) + "\n"


STAMP = [False]
WS_STAMP = 0x300000


def stamp(a, i):
    if STAMP[0] == 1 or (STAMP[0] == 2 and i in (12, 13)):
        a(f"s_memtime s[{64+2*i}:{65+2*i}]")
        a("s_waitcnt lgkmcnt(0)")


def stamp_flush(a, ws, wave, base, n=16):
    if STAMP[0]:
        a(f"s_memrealtime s[{64+2*15}:{65+2*15}]")
        a("s_waitcnt lgkmcnt(0)")
        a("s_mov_b64 exec, 1")
        a(f"s_lshl_b32 s96, s2, 3")
        a(f"s_add_u32 s96, s96, s{wave}")
        a(f"s_lshl_b32 s96, s96, 6")
        a(f"s_add_u32 s96, s96, {base}")
        a("v_mov_b32 v1, 0")
        for i in (range(n) if STAMP[0] == 1 else (0, 13, 14, 15)):
            a(f"v_mov_b32 v2, s{64+2*i}")
            a(f"buffer_store_dword v2, v1, s[{ws}:{ws+3}], s96 offen offset:{4*i}")


def stamp_init(a):
    if STAMP[0]:
        for i in range(16):
            a(f"s_mov_b64 s[{64+2*i}:{65+2*i}], 0")
        a(f"s_memrealtime s[{64+2*14}:{65+2*14}]")
        a("s_memtime s[64:65]")


PROBE = [None]
WS_PROBE = 0x2F0000


def probe(a, name):
    if PROBE[0] == name:
        a("s_memrealtime s[98:99]")


def probe_flush(a, ws, names):
    if PROBE[0] in names:
        a("s_waitcnt lgkmcnt(0)")
        a("s_mov_b64 exec, 1")
        a("s_lshl_b32 s96, s2, 2")
        a(f"s_add_u32 s96, s96, {WS_PROBE}")
        a("v_mov_b32 v1, 0")
        a("v_mov_b32 v2, s98")
        a(f"buffer_store_dword v2, v1, s[{ws}:{ws+3}], s96 offen")


WAITK = """.globl wait_kernel
.p2align 8
.type wait_kernel,@function
wait_kernel:
    s_load_dwordx2 s[4:5], s[0:1], 104
    s_mov_b32 s6, 0x400000
    s_mov_b32 s7, 0x20000
    v_lshlrev_b32 v1, 4, v0
    s_mov_b32 s12, %d
    s_memrealtime s[8:9]
    s_waitcnt lgkmcnt(0)
    buffer_load_dwordx4 v[4:7], v1, s[4:7], s12 offen
    s_waitcnt vmcnt(0)
    v_sub_u32 v4, s8, v4
    v_sub_u32 v5, s8, v5
    v_sub_u32 v6, s8, v6
    v_sub_u32 v7, s8, v7
    v_%s_u32 v4, v4, v5
    v_%s_u32 v6, v6, v7
    v_%s_u32 v4, v4, v6
    s_nop 1
    v_%s_u32_dpp v4, v4, v4 row_shr:1 row_mask:0xf bank_mask:0xf
    s_nop 1
    v_%s_u32_dpp v4, v4, v4 row_shr:2 row_mask:0xf bank_mask:0xf
    s_nop 1
    v_%s_u32_dpp v4, v4, v4 row_shr:4 row_mask:0xf bank_mask:0xf
    s_nop 1
    v_%s_u32_dpp v4, v4, v4 row_shr:8 row_mask:0xf bank_mask:0xf
    s_nop 1
    v_%s_u32_dpp v4, v4, v4 row_bcast:15 row_mask:0xa bank_mask:0xf
    s_nop 1
    v_%s_u32_dpp v4, v4, v4 row_bcast:31 row_mask:0xc bank_mask:0xf
    s_nop 1
    v_readlane_b32 s13, v4, 63
    s_nop 3
    s_sub_u32 s13, s8, s13
    s_mov_b32 s10, 0
W_loop:
    s_memrealtime s[8:9]
    s_waitcnt lgkmcnt(0)
    s_sub_u32 s8, s8, s13
    s_add_u32 s10, s10, 1
    s_cmp_gt_u32 s10, 100000
    s_cbranch_scc1 W_done
    s_cmp_lt_u32 s8, 5000
    s_cbranch_scc1 W_loop
W_done:
    s_endpgm
"""


def vr(a, n):
    return f"v[{a}:{a+n-1}]" if n > 1 else f"v{a}"


def srd(a, base, key, nbytes):
    a(f"s_load_dwordx2 s[{base}:{base+1}], s[0:1], {KA[key]}")
    a(f"s_mov_b32 s{base+2}, {nbytes}")
    a(f"s_mov_b32 s{base+3}, 0x20000")


LX, LW, LE = 0, 65536, 131072
K1_LDS = 147456


def gen_k1(a, opt):
    X, WQ, EX, WO, WR, GW, WS = 8, 24, 12, 16, 20, 28, 32
    a.label("prep_kernel")
    a("s_cmp_ge_u32 s2, 256")
    a("s_cbranch_scc1 K1_exit")
    probe(a, "k1start")
    stamp_init(a)
    a("s_load_dwordx16 s[8:23], s[0:1], 0")
    a("s_load_dwordx8 s[28:35], s[0:1], 80")
    a("v_lshrrev_b32 v1, 6, v0")
    a("v_and_b32 v0, 63, v0")
    a("v_readfirstlane_b32 s40, v1")
    a("s_bfe_u32 s43, s2, 0x30003")
    a("s_and_b32 s41, s2, 7")
    a("s_lshr_b32 s42, s2, 6")
    a("s_lshl2_add_u32 s42, s41, s42")
    a("v_and_b32 v3, 15, v0")
    a("v_lshrrev_b32 v2, 4, v0")
    a("v_and_b32 v7, 7, v0")
    a("s_and_b32 s44, s40, 3")
    a("s_cmp_lt_u32 s40, 4")
    a("s_cbranch_scc1 K1_producer")
    if opt.get("k1cpf", 1):
        a("s_cmp_eq_u32 s43, 7")
        a("s_cbranch_scc0 K1_main")
        a("s_getpc_b64 s[56:57]")
        a.label("K1_pc")
        a("s_lshl_b32 s53, s44, 13")
        a("v_lshl_add_u32 v140, v0, 7, s53")
        a("v_min_u32 v140, K2_unsafe - K1_pc, v140")
        a("v_mov_b32 v141, s57")
        a("v_add_co_u32 v140, vcc, s56, v140")
        a("s_nop 1")
        a("v_addc_co_u32 v141, vcc, 0, v141, vcc")
        a("global_load_dword v143, v[140:141], off")
    a("s_branch K1_main")
    a.label("K1_producer")
    a(f"s_mov_b32 s{WQ+2}, 524288")
    a(f"s_mov_b32 s{WQ+3}, 0x20000")
    a("s_add_u32 s56, s42, s43")
    a("v_lshl_add_u32 v5, s44, 2, v2")
    a("v_xor_b32 v5, v5, v3")
    a("v_lshlrev_b32 v5, 4, v5")
    a("v_lshl_add_u32 v5, v2, 10, v5")
    a("v_lshlrev_b32 v6, 2, v2")
    a("v_and_b32 v6, 4, v6")
    a("v_xor_b32 v6, v6, v7")
    a("v_lshlrev_b32 v6, 4, v6")
    a("v_lshrrev_b32 v8, 3, v0")
    a("v_lshl_add_u32 v6, v8, 10, v6")
    a("s_lshl4_add_u32 s47, s42, s44")
    a("s_lshl_b32 s47, s47, 12")
    a("s_lshl_b32 s49, s44, 10")
    a("s_lshl_b32 s48, s43, 7")
    a("s_lshl3_add_u32 s48, s49, s48")

    def late_srds():
        a("s_cmp_eq_u32 s43, 0")
        a(f"s_cselect_b64 s[{EX}:{EX+1}], s[12:13], s[14:15]")
        a(f"s_mov_b64 s[{WS}:{WS+1}], s[34:35]")
        for r, n in ((WO, 524288), (WR, 1024), (GW, 1024), (EX, 16384), (WS, 0x400000 if (STAMP[0] or PROBE[0]) else WS_END)):
            a(f"s_mov_b32 s{r+2}, {n}")
            a(f"s_mov_b32 s{r+3}, 0x20000")

    def dma_chunk(c, ex):
        a(f"s_add_u32 s50, s56, {c}")
        a("s_and_b32 s50, s50, 3")
        a("s_lshl_b32 s51, s50, 8")
        a("s_add_u32 s51, s51, s47")
        a("s_lshl_b32 s52, s50, 17")
        a("s_add_u32 s52, s52, s48")
        for e in range(4):
            a(f"s_add_u32 m0, s49, {LX + c*16384 + e*4096}")
            a("s_lshl_b32 s50, s50, 12" if e == 0 else "s_add_u32 s52, s52, 32768")
            a(f"buffer_load_dwordx4 v5, s[{X}:{X+3}], s51 offen lds")
            a(f"s_add_u32 m0, s49, {LW + c*16384 + e*4096}")
            a("s_add_u32 s51, s51, 16384")
            a(f"buffer_load_dwordx4 v6, s[{WQ}:{WQ+3}], s52 offen lds")
        if ex:
            ex_load(c)

    def ex_load(c):
        a(f"s_add_u32 m0, s49, {LE + c*4096}")
        a("s_add_u32 s50, s50, s49")
        a(f"buffer_load_dwordx4 v4, s[{EX}:{EX+3}], s50 offen lds")

    XO = opt.get("xorder", 0)

    def x0(e):
        a(f"s_add_u32 m0, s{61 + (e >> 1)}, {LX + (e & 1)*4096}")
        a(f"s_add_u32 s53, s{54 + (e >> 1)}, {(e & 1)*16384}")
        a(f"buffer_load_dwordx4 v5, s[{X}:{X+3}], s53 offen lds")

    def w0(e):
        a(f"s_add_u32 m0, s49, {LW + e*4096}")
        a(f"s_add_u32 s53, s52, {e*32768}")
        a(f"buffer_load_dwordx4 v6, s[{WQ}:{WQ+3}], s53 offen lds")

    def chunk0_head():
        a("s_and_b32 s50, s56, 3")
        a("s_lshl_b32 s51, s50, 8")
        a("s_add_u32 s51, s51, s47")
        a("s_lshl_b32 s52, s50, 17")
        a("s_add_u32 s52, s52, s48")
        a(f"s_and_b32 s53, s43, {4 if XO else 0}")
        a("s_lshl_b32 s62, s53, 11")
        a("s_add_u32 s61, s62, s49")
        a("s_xor_b32 s62, s61, 8192")
        a("s_lshl_b32 s53, s53, 13")
        a("s_add_u32 s54, s51, s53")
        a("s_xor_b32 s55, s54, 32768")
        a("s_lshl_b32 s50, s50, 12")
        a("s_waitcnt lgkmcnt(0)")
        a(f"s_mov_b64 s[{WQ}:{WQ+1}], s[10:11]")
        a(f"s_mov_b32 s{X+2}, 2097152")
        a(f"s_mov_b32 s{X+3}, 0x20000")
        stamp(a, 1)
        x0(0); w0(0); x0(1); w0(1)

    def rest_of_chunk0(ex):
        if XO:
            w0(2); w0(3)
            if ex:
                ex_load(0)
            x0(2); x0(3)
        else:
            x0(2); w0(2); x0(3); w0(3)
            if ex:
                ex_load(0)

    def produce(ex):
        n = 9 if ex else 8
        rest_of_chunk0(ex)
        stamp(a, 2)
        dma_chunk(1, ex)
        stamp(a, 3)
        if opt.get("k1m", 0) == 0:
            a(f"s_waitcnt vmcnt({n})")
            stamp(a, 4)
            a("s_barrier")
        dma_chunk(2, ex)
        a(f"s_waitcnt vmcnt({n})")
        a("s_barrier")
        dma_chunk(3, ex)
        a(f"s_waitcnt vmcnt({n})")
        a("s_barrier")
        a("s_waitcnt vmcnt(0)")
        stamp(a, 5)
        a("s_barrier")
        if STAMP[0] == 1:
            a("s_add_u32 s97, s44, 4")
            stamp_flush(a, WS, 97, WS_STAMP)
            a("s_mov_b64 exec, -1")

    chunk0_head()
    late_srds()
    a.c("wo job = (cb-3)*32 + rb = (t, v, hh, gh): 32 lanes, 8x8 block per lane -> 8 half fragments")
    a("v_lshlrev_b32 v4, 4, v0")
    a("s_sub_u32 s58, s43, 3")
    a("s_lshl_b32 s58, s58, 5")
    a("s_add_u32 s58, s58, s42")
    a("s_lshr_b32 s59, s58, 4")
    a("s_lshl_b32 s59, s59, 16")
    a("s_and_b32 s53, s58, 3")
    a("s_lshl_b32 s53, s53, 14")
    a("s_add_u32 s59, s59, s53")
    a("s_bfe_u32 s53, s58, 0x20002")
    a("s_lshl_b32 s53, s53, 8")
    a("s_add_u32 s59, s59, s53")
    a("v_lshlrev_b32 v9, 4, v3")
    a("v_lshl_add_u32 v9, v2, 13, v9")
    a("v_add_u32 v10, 4096, v9")
    a("s_lshl_b32 s53, s56, 8")
    a("v_add_u32 v11, s53, v4")
    a("v_and_b32 v11, 1023, v11")
    a(f"s_mov_b32 m0, {LE}")
    a("s_cmp_lt_u32 s43, 2")
    a("s_cbranch_scc1 K1_prodkv")
    a("s_cmp_lg_u32 s44, 0")
    a("s_cbranch_scc1 K1_prod")
    a("s_cmp_eq_u32 s43, 7")
    a("s_cbranch_scc1 K1_prod")
    a("s_cmp_eq_u32 s43, 2")
    a("s_cbranch_scc1 K1_exrg")
    a("s_mov_b32 exec_hi, 0")
    for dd in range(8):
        a(f"buffer_load_dwordx4 {vr(64+4*dd,4)}, v{9+(dd>>2)}, s[{WO}:{WO+3}], s59 offen offset:{(dd&3)*1024}")
    a("s_mov_b64 exec, -1")
    a("s_branch K1_prod")
    a.label("K1_exrg")
    a(f"buffer_load_dwordx4 v11, s[{WR}:{WR+3}], 0 offen lds")
    a(f"s_mov_b32 m0, {LE + 1024}")
    a("s_nop 0")
    a(f"buffer_load_dwordx4 v11, s[{GW}:{GW+3}], 0 offen lds")
    a.label("K1_prod")
    produce(False)
    a("s_cmp_eq_u32 s43, 7")
    a("s_cbranch_scc1 K1_zero")
    a("s_cmp_lg_u32 s44, 0")
    a("s_cbranch_scc1 K1_exit")
    a("s_cmp_eq_u32 s43, 2")
    a("s_cbranch_scc1 K1_exit")
    a("s_mov_b32 s54, 0x05040100")
    a("s_mov_b32 s55, 0x07060302")
    a("s_lshr_b32 s51, s58, 2")
    a("s_lshl_b32 s51, s51, 14")
    a("s_and_b32 s52, s58, 3")
    a("s_lshl_b32 s52, s52, 9")
    a("s_add_u32 s51, s51, s52")
    a(f"s_add_u32 s51, s51, {WS_WOF}")
    a("s_mov_b32 exec_hi, 0")
    pairs = [(0, 1), (4, 5), (2, 3), (6, 7)]
    for u in range(8):
        for i, (d0, d1) in enumerate(pairs):
            a(f"v_perm_b32 v{96+4*u+i}, v{64+4*d1+(u>>1)}, v{64+4*d0+(u>>1)}, s{54+(u&1)}")
        a(f"buffer_store_dwordx4 {vr(96+4*u,4)}, v4, s[{WS}:{WS+3}], s51 offen offset:{(u&1)*2048}")
        if u & 1 and u < 7:
            a("s_add_u32 s51, s51, 4096")
    a("s_endpgm")
    a.label("K1_zero")
    a("s_lshl_b32 s50, s42, 2")
    a("s_add_u32 s50, s50, s44")
    a(f"s_cmp_lt_u32 s50, {NREP * 2 + 56}")
    a("s_cbranch_scc0 K1_exit")
    for i in range(4):
        a(f"v_mov_b32 v{64+i}, 0")
    a("s_lshl_b32 s50, s50, 10")
    a(f"s_add_u32 s51, s50, {WS_YACC}")
    a(f"buffer_store_dwordx4 v[64:67], v4, s[{WS}:{WS+3}], s51 offen sc1")
    a.label("K1_exit")
    a("s_endpgm")
    a.label("K1_prodkv")
    produce(True)
    a("s_endpgm")

    a.label("K1_main")
    a.c("main waves: a = v&1 (row half), u = v>>1 (column half)")
    a("s_and_b32 s50, s44, 1")
    a("s_lshr_b32 s51, s44, 1")
    a("v_and_b32 v12, 31, v0")
    a("v_lshrrev_b32 v13, 5, v0")
    a("s_lshl_b32 s52, s50, 13")
    a("v_lshl_add_u32 v14, v12, 8, s52")
    a("v_xor_b32 v15, v13, v3")
    for s in range(8):
        a(f"v_xor_b32 v{16+s}, {2*s}, v15")
        a(f"v_lshl_add_u32 v{16+s}, v{16+s}, 4, v14")
    a("v_bfe_u32 v28, v0, 2, 2")
    a("v_lshl_add_u32 v25, v13, 3, v28")
    a("v_and_b32 v29, 3, v0")
    a("v_lshlrev_b32 v29, 3, v29")
    a("v_and_b32 v27, 1, v2")
    a("v_lshl_add_u32 v26, v27, 5, v29")
    a("s_lshl_b32 s52, s51, 6")
    a("v_add_u32 v26, s52, v26")
    a("v_lshrrev_b32 v27, 1, v28")
    a("v_lshlrev_b32 v27, 6, v27")
    a("v_xor_b32 v26, v26, v27")
    a("v_lshl_add_u32 v24, v25, 7, v26")
    a(f"v_add_u32 v24, {LW}, v24")
    a("v_lshrrev_b32 v25, 3, v12")
    a("v_lshlrev_b32 v25, 13, v25")
    a("v_lshl_add_u32 v25, v13, 9, v25")
    a("v_lshl_add_u32 v25, v7, 4, v25")
    a("s_lshl_b32 s52, s42, 16")
    a("s_lshl_b32 s53, s50, 15")
    a("s_add_u32 s52, s52, s53")
    a("s_lshl_b32 s53, s43, 10")
    a("s_add_u32 s52, s52, s53")
    a("s_lshl_b32 s53, s51, 8")
    a("s_add_u32 s52, s52, s53")
    a("s_lshl_b32 s53, s44, 12")
    a("v_lshl_add_u32 v14, v3, 8, s53")
    a("v_xor_b32 v15, v2, v3")
    for s in range(4):
        a(f"v_xor_b32 v{8+s}, {4*s}, v15")
        a(f"v_lshl_add_u32 v{8+s}, v{8+s}, 4, v14")
    a("v_lshl_add_u32 v26, v2, 3, v28")
    a("v_lshl_add_u32 v26, v26, 5, v29")
    a(f"v_add_u32 v26, {LE}, v26")
    a("s_lshl_b32 s54, s42, 1")
    a("s_add_u32 s54, s54, s51")
    a("s_lshl_b32 s54, s54, 11")
    a(f"s_add_u32 s54, s54, {WS_KV}")
    a("s_lshl_b32 s50, s50, 8")
    a("s_add_u32 s54, s54, s50")
    a("v_and_b32 v12, 1, v2")
    a("v_lshrrev_b32 v13, 1, v2")
    a("v_lshlrev_b32 v14, 4, v3")
    a("s_setprio 1")
    a("s_waitcnt lgkmcnt(0)")
    a(f"s_mov_b64 s[{WS}:{WS+1}], s[34:35]")
    a(f"s_mov_b32 s{WS+2}, {0x400000 if (STAMP[0] or PROBE[0]) else WS_END}")
    a(f"s_mov_b32 s{WS+3}, 0x20000")
    if opt.get("tlbw", 0):
        a("s_mov_b64 exec, 1")
        a(f"buffer_load_dword v1, v25, s[{WS}:{WS+3}], s52 offen sc1")
        a(f"buffer_load_dword v1, v25, s[{WS}:{WS+3}], s54 offen sc1")
        a("s_mov_b64 exec, -1")
    ACC, FB, FA, D1, XB, XA = 32, 48, 80, 4, 112, 128

    def main_loop(role, epi=None):
        XF = opt.get("xfirst", 0)
        groups = [[0], [1], [2], [3]] if opt.get("k1m", 0) == 0 else [[0, 1], [2], [3]]
        ne = {"q": 0, "k": 3, "v": 3, "r": 2}[role]
        for gi, cs in enumerate(groups):
            stamp(a, 3 + 2*gi)
            a("s_barrier")
            stamp(a, 4 + 2*gi)
            if gi == 0 and PROBE[0] == "k1b0":
                probe(a, "k1b0")
                a("s_waitcnt lgkmcnt(0)")
            items = []
            for c in cs:
                ms = [("m", c, s) for s in range(8)]
                xs = [("x", c, s) for s in range(4)] if ne else []
                items += xs + ms if (XF and c == 3) else ms + xs

            def rd(it):
                k, c, s = it
                if k == "m":
                    a(f"ds_read_b128 {vr(FB+4*s,4)}, v{16+s} offset:{c*16384}")
                    a(f"ds_read_b64_tr_b16 {vr(FA+4*s,2)}, v24 offset:{c*16384 + s*2048}")
                    a(f"ds_read_b64_tr_b16 {vr(FA+4*s+2,2)}, v24 offset:{c*16384 + s*2048 + 512}")
                    return 3
                a(f"ds_read_b128 {vr(XB+4*s,4)}, v{8+s} offset:{c*16384}")
                if role == "r":
                    a(f"ds_read_b128 {vr(XA+4*s,4)}, v26 offset:{c*256 + s*64}")
                else:
                    a(f"ds_read_b64_tr_b16 {vr(XA+4*s,2)}, v26 offset:{c*4096 + s*1024}")
                    a(f"ds_read_b64_tr_b16 {vr(XA+4*s+2,2)}, v26 offset:{c*4096 + s*1024 + 128}")
                return ne

            cnt = [rd(it) for it in items[:4]]
            for n, (k, c, s) in enumerate(items):
                a(f"s_waitcnt lgkmcnt({sum(cnt[n+1:])})")
                if k == "m":
                    cc = "0" if (c == 0 and s == 0) else vr(ACC, 16)
                    a(f"v_mfma_f32_32x32x16_bf16 {vr(ACC,16)}, {vr(FA+4*s,4)}, {vr(FB+4*s,4)}, {cc}")
                else:
                    cc = "0" if (c == 0 and s == 0) else vr(D1, 4)
                    A, B = vr(XA+4*s, 4), vr(XB+4*s, 4)
                    if role == "v":
                        A, B = B, A
                    a(f"v_mfma_f32_16x16x32_bf16 {vr(D1,4)}, {A}, {B}, {cc}")
                if n + 4 < len(items):
                    cnt.append(rd(items[n + 4]))
                if XF and epi and k == "m" and c == 3 and s >= 2:
                    if s == 2:
                        keep, a.L = a.L, []
                        epi()
                        pend, a.L = [x for x in a.L if not x.strip().startswith(";")], keep
                        cut = next((i for i, x in enumerate(pend) if "exec" in x), len(pend))
                        per = -(-cut // 5)
                    take = min(per, cut) if s < 7 else len(pend)
                    a.L += pend[:take]
                    pend, cut = pend[take:], cut - take
        a(f"s_nop {11 if (role == 'q' or XF) else 3}")
        for i in range(8):
            a(f"v_cvt_pk_bf16_f32 v{48+i}, v{ACC+2*i}, v{ACC+2*i+1}")
            if i == 3:
                a(f"buffer_store_dwordx4 v[48:51], v25, s[{WS}:{WS+3}], s52 offen")
        a(f"buffer_store_dwordx4 v[52:55], v25, s[{WS}:{WS+3}], s52 offen offset:128")
        if epi and not XF:
            epi()

    def finish():
        probe(a, "k1end")
        probe_flush(a, WS, ("k1start", "k1b0", "k1end"))
        stamp(a, 11)
        if STAMP[0] == 1:
            a("s_waitcnt vmcnt(0)")
        stamp(a, 12)
        stamp_flush(a, WS, 44, WS_STAMP)
        a("s_endpgm")

    a("s_cmp_eq_u32 s43, 0")
    a("s_cbranch_scc1 K1_k")
    a("s_cmp_eq_u32 s43, 1")
    a("s_cbranch_scc1 K1_v")
    a("s_cmp_eq_u32 s43, 2")
    a("s_cbranch_scc1 K1_rg")
    main_loop("q")
    finish()
    a.label("K1_k")
    a("v_lshl_add_u32 v14, v12, 9, v14")
    a("v_lshl_add_u32 v14, v13, 3, v14")

    def epi_k():
        a(f"v_cvt_pk_bf16_f32 v112, v{D1}, v{D1+1}")
        a(f"v_cvt_pk_bf16_f32 v113, v{D1+2}, v{D1+3}")
        for i in range(2):
            a(f"v_lshlrev_b32 v{D1+2*i}, 16, v{112+i}")
            a(f"v_and_b32 v{D1+2*i+1}, 0xffff0000, v{112+i}")
        for i in range(4):
            a(f"v_mul_f32 v{D1+i}, {fbits(0.25 * math.log2(math.e)):#x}, v{D1+i}")
        a(f"v_cvt_pk_bf16_f32 v112, v{D1}, v{D1+1}")
        a(f"v_cvt_pk_bf16_f32 v113, v{D1+2}, v{D1+3}")
        a(f"buffer_store_dwordx2 v[112:113], v14, s[{WS}:{WS+3}], s54 offen")

    main_loop("k", epi_k)
    finish()
    a.label("K1_v")
    a("v_lshl_add_u32 v14, v13, 9, v14")
    a("v_lshl_add_u32 v14, v12, 3, v14")

    def epi_v():
        a(f"v_cvt_pk_bf16_f32 v112, v{D1}, v{D1+1}")
        a(f"v_cvt_pk_bf16_f32 v113, v{D1+2}, v{D1+3}")
        a(f"buffer_store_dwordx2 v[112:113], v14, s[{WS}:{WS+3}], s54 offen offset:1024")

    main_loop("v", epi_v)
    finish()
    a.label("K1_rg")
    a.c("router / gate: operand row 1 = gate_w, every other row = w_r")
    a("v_cmp_eq_u32 vcc, 1, v3")
    a("v_lshlrev_b32 v26, 4, v2")
    a(f"v_add_u32 v26, {LE}, v26")
    a("v_add_u32 v27, 1024, v26")
    a("v_cndmask_b32 v26, v26, v27, vcc")
    a("s_lshl_b32 s50, s42, 6")
    a("s_lshl_b32 s51, s44, 4")
    a("s_add_u32 s50, s50, s51")
    a("s_sub_u32 s51, 2047, s50")
    a("v_sub_u32 v30, s51, v0")
    a("v_lshlrev_b32 v31, 2, v0")
    a("s_lshl_b32 s51, s50, 2")
    a(f"s_add_u32 s51, s51, {WS_G}")
    a("s_lshr_b32 s50, s50, 2")
    a(f"s_add_u32 s50, s50, {WS_CAND - 60}")

    def epi_r():
        a.c("lanes 0..15: D1[0] = router score, D1[1] = gate logit of token rb*64+16v+lane")
        a(f"v_cvt_pk_bf16_f32 v112, v{D1+1}, v{D1+1}")
        a("v_and_b32 v113, 0xffff0000, v112")
        a(f"v_mul_f32 v113, {fbits(-math.log2(math.e)):#x}, v113")
        a("v_exp_f32 v113, v113")
        a(f"v_ashrrev_i32 v115, 31, v{D1}")
        a("v_add_f32 v113, 1.0, v113")
        a("v_rcp_f32 v113, v113")
        a("v_or_b32 v115, 0x80000000, v115")
        a(f"v_xor_b32 v114, v{D1}, v115")
        a("v_and_b32 v114, 0xfffff800, v114")
        a("v_or_b32 v114, v114, v30")
        a("v_cvt_pk_bf16_f32 v113, v113, v113")
        a("v_and_b32 v113, 0xffff0000, v113")
        for sh in (1, 2, 4, 8):
            a(f"v_max_u32_dpp v114, v114, v114 row_shr:{sh} row_mask:0xf bank_mask:0xf")
            a("s_nop 1")
        a("s_mov_b64 exec, 0xffff")
        a(f"buffer_store_dword v113, v31, s[{WS}:{WS+3}], s51 offen")
        a("s_mov_b64 exec, 0x8000")
        a(f"buffer_store_dword v114, v31, s[{WS}:{WS+3}], s50 offen")
        a("s_mov_b64 exec, -1")

    main_loop("r", epi_r)
    finish()


PREC = 2560
WREC = 8 * PREC
L_Q = 0
L_PART = 8192
L_AFR = L_PART + 4 * WREC
L_FLG = L_AFR + 8192
L_MAX = L_FLG + 256
L_MOEW = L_MAX + 1024
MREC = 13 * 1024
L_HP = L_MOEW + 4 * MREC
L_HB = L_HP + 256
L_Y = L_HB + 128
K2_LDS = L_Y + 2048
NMOE_WAVES = 112 * 4
LOG2E = math.log2(math.e)


def gen_k2(a, opt):
    LOOP = 0
    NUP = opt.get("nup", 6)
    X, WS, OUT, DBG, MW, WD = 8, 12, 16, 20, 24, 28
    sW, sBROW, sIDX, sSLOW, sMOE, sV, sSL, sKEY, sROT, sQB, sKV, sBAD = 40, 41, 42, 44, 45, 46, 47, 48, 49, 43, 61, 62
    vL16, vPIDX, Z = 1, 5, 6
    Q, O, S0, S1, K, V = 8, 16, 32, 48, 64, 128
    vQA = vL16
    a.label("attn_kernel")
    a("s_cmp_ge_u32 s2, 256")
    a("s_cbranch_scc1 K2_exit")
    probe(a, "k2start")
    stamp_init(a)
    a(f"s_load_dwordx2 s[{WS}:{WS+1}], s[0:1], {KA['ws']}")
    a(f"s_load_dwordx2 s[{X}:{X+1}], s[0:1], {KA['x']}")
    a(f"s_load_dwordx2 s[{OUT}:{OUT+1}], s[0:1], {KA['out']}")
    a("v_lshrrev_b32 v12, 6, v0")
    a("v_and_b32 v0, 63, v0")
    a(f"v_readfirstlane_b32 s{sW}, v12")
    a(f"s_mov_b32 s{WS+2}, {0x400000 if (STAMP[0] or PROBE[0]) else WS_END}")
    a(f"s_mov_b32 s{WS+3}, 0x20000")
    a(f"v_lshlrev_b32 v{vL16}, 4, v0")
    a("s_and_b32 s50, s2, 7")
    a("s_lshr_b32 s51, s2, 3")
    a(f"s_lshl_b32 s{sBROW}, s50, 5")
    a(f"s_add_u32 s{sBROW}, s{sBROW}, s51")
    a(f"s_and_b32 s{sROT}, s51, {opt.get('rotm', 7)}")
    a(f"s_and_b32 s{sV}, s{sW}, 3")
    a(f"s_lshl_b32 s{sQB}, s{sBROW}, 13")
    a(f"s_mov_b32 s{sSLOW}, 0")
    a(f"s_cmp_ge_u32 s{sW}, 4")
    a("s_cbranch_scc1 K2_service")

    def late_srds():
        for r, n in ((X, 2097152), (OUT, 2097152)):
            a(f"s_mov_b32 s{r+2}, {n}")
            a(f"s_mov_b32 s{r+3}, 0x20000")

    LOC = 1
    a(f"s_lshl2_add_u32 s{sKV}, s50, s{sV}")
    a(f"s_lshl_b32 s{sKV}, s{sKV}, 12")
    a(f"s_lshl_b32 s52, s{sROT}, 10")
    a(f"s_add_u32 s52, s52, s{sQB}")
    a(f"s_add_u32 s53, s{sKV}, {WS_KV}")

    def csetup():
        a(f"s_mul_i32 s54, s{sV}, {WREC}")
        a("s_mov_b32 m0, s54")
        a("v_mov_b32 v3, 0")
        a(f"v_mov_b32 v{vPIDX}, 0xdddd")
        if opt.get("lowp", 0) or opt.get("mprio", 1):
            a("s_setprio 1")
        a("v_and_b32 v14, 11, v0")
        a("v_cmp_eq_u32 vcc, 0, v14")
        a("v_mov_b32 v13, 0x3f803f80")
        a(f"v_mov_b64 {vr(Z,2)}, 0")
        a("v_cndmask_b32 v14, 0, v13, vcc")
        a("v_cndmask_b32 v15, 0, v13, vcc")
        a(f"v_mfma_f32_32x32x8_bf16 {vr(O,16)}, {vr(Z,2)}, {vr(Z,2)}, 0")
        for j in range(16):
            for i in range(2):
                a(f"v_mov_b64 {vr(V+8*j+4+2*i,2)}, v[14:15]")

    if opt.get("early", 1):
        csetup()
    a("s_waitcnt lgkmcnt(0)")
    stamp(a, 1)
    a(f"buffer_load_dwordx4 {vr(Q,4)}, v{vL16}, s[{WS}:{WS+3}], s52 offen")

    def kvload(j):
        L = []
        so = 53 if j < 2 else 32 + j // 2
        L += [f"buffer_load_dwordx4 {vr(K+4*j,4)}, v{vL16}, s[{WS}:{WS+3}], s{so} offen offset:{(j&1)*2048}",
              f"buffer_load_dwordx4 {vr(V+8*j,4)}, v{vL16}, s[{WS}:{WS+3}], s{so} offen offset:{(j&1)*2048+1024}"]
        return L

    def pair_off(m):
        a("s_add_u32 s55, s55, 1")
        a(f"s_lshl_b32 s56, s55, 14")
        a(f"s_add_u32 s56, s56, s{sKV}")
        a("s_and_b32 s56, s56, 0x1ffff")
        a(f"s_add_u32 s{32+m}, s56, {WS_KV}")
        a("s_cmp_eq_u32 s55, 7")
        a("s_cselect_b32 s55, 0, s55")

    for j in range(NUP):
        if j == 2:
            a("s_mul_i32 s55, s51, 37")
            a("s_lshr_b32 s55, s55, 8")
            a("s_mul_i32 s55, s55, 7")
            a("s_sub_u32 s55, s51, s55")
        if j >= 2 and j % 2 == 0:
            pair_off(j // 2)
        for x in kvload(j):
            a(x)
    for m in range((NUP + 1) // 2, 8):
        pair_off(m)
    late_srds()
    if not opt.get("early", 1):
        csetup()
    stamp(a, 2)
    a(f"s_waitcnt vmcnt({2*NUP - 1})")
    stamp(a, 3)
    probe(a, "k2go")
    a(f"v_mfma_f32_32x32x16_bf16 {vr(S0,16)}, {vr(K,4)}, {vr(Q,4)}, 0")
    a("s_nop 11")

    def pv(j, half, buf):
        return f"v_smfmac_f32_32x32x32_bf16 {vr(O,16)}, {vr(V+8*j+4*half,4)}, {vr(buf+8*half,8)}, v{vPIDX}"

    def publish(t):
        if opt.get("nopub"):
            return []
        return [f"ds_write_addtid_b32 v{O+r} offset:{L_PART + t*PREC + r*256}" for r in range(9)]

    def flag(t):
        if opt.get("noflag"):
            return "s_nop 0"
        return f"ds_write_addtid_b32 v{vPIDX} offset:{L_PART + t*PREC + 2304}"

    def coltile(t, first=False, last=False, rel=False):
        tp = 0 if rel else t - 1
        for j in range(16):
            cur, oth = (S0, S1) if j % 2 == 0 else (S1, S0)
            e = [f"v_exp_f32 v{cur+i}, v{cur+i}" for i in range(16)]
            qk = [f"v_mfma_f32_32x32x16_bf16 {vr(oth,16)}, {vr(K+4*((j+1)&15),4)}, {vr(Q,4)}, 0"]
            if last and j == 15:
                qk = []
            pv1 = [pv((j - 1) & 15, 1, oth)]
            pv0 = [pv(j, 0, cur)]
            pre, post, late = [], [], []
            if first:
                if j == 0:
                    pv1 = []
                issued = min(16, NUP + j)
                need = 2 * (j + 1) + 1 if j < 15 else 32
                pre = [f"s_waitcnt vmcnt({2*issued - need})"]
                post = [f"v_permlane16_swap_b32 v{V+8*j+i}, v{V+8*j+4+i}" for i in range(4)]
                if NUP + j < 16:
                    late = kvload(NUP + j)
                if not opt.get("skew"):
                    if NUP + j == 16:
                        late = ["s_barrier"]
                elif NUP + j in (16, 17):
                    k = NUP + j - 16
                    late = [f"s_bitcmp{k}_b32 s{sW}, 1", f"s_cbranch_scc0 K2_nb{k}", "s_barrier", f"K2_nb{k}:"]
            if j == 14 and not last and not opt.get("noq"):
                post = post + [f"ds_read_b128 {vr(Q,4)}, v{vQA} offset:{(1 if rel else t + 1)*1024}"]
            if j == 15 and not last:
                pre = pre + ["s_waitcnt lgkmcnt(0)"]
            zero = [f"v_mfma_f32_32x32x8_bf16 {vr(O,16)}, {vr(Z,2)}, {vr(Z,2)}, 0"]
            ILV = opt.get("ilv", 1)
            P = publish(tp)
            if not first and j == 0:
                if ILV == 0:
                    seq = e[0:2] + pv1 + e[2:5] + qk + e[5:14] + P + zero + e[14:16]
                elif ILV == 1:
                    seq = e[0:2] + pv1 + e[2:5] + qk + e[5:13] + P[0:3] + e[13:14] + P[3:6] + e[14:15] + P[6:9] + zero + e[15:16]
                elif ILV == 2:
                    seq = e[0:2] + pv1 + e[2:5] + qk + e[5:13] + P[0:2] + e[13:14] + P[2:4] + e[14:15] + P[4:6] + e[15:16] + P[6:8]
                elif ILV == 3:
                    cp = [f"v_mov_b64 v[12:13], {vr(O+4,2)}", f"v_mov_b64 v[14:15], {vr(O+6,2)}", f"v_mov_b32 v4, v{O+8}"]
                    seq = e[0:2] + pv1 + e[2:5] + qk + e[5:13] + P[0:1] + cp[0:1] + P[1:2] + cp[1:2] + e[13:14] + P[2:3] + cp[2:3] + e[14:15] + P[3:4] + zero + e[15:16]
            elif not first and j == 1:
                if ILV == 2:
                    seq = e[0:1] + P[8:9] + zero + e[1:4] + [pv(0, 0, oth)] + e[4:7] + pv1 + e[7:10] + qk + \
                        [flag(tp)] + e[10:13] + pv0 + e[13:16] + ["s_nop 3"]
                elif ILV == 3:
                    late5 = [x.replace(f"v{O+4+i} ", f"v{[12,13,14,15,4][i]} ") for i, x in enumerate(P[4:9])]
                    seq = e[0:3] + [pv(0, 0, oth)] + e[3:6] + pv1 + e[6:9] + qk + late5[0:1] + e[9:10] + late5[1:2] + e[10:11] + late5[2:3] + \
                        e[11:12] + pv0 + e[12:13] + late5[3:4] + e[13:14] + late5[4:5] + e[14:15] + [flag(tp)] + e[15:16]
                elif ILV == 1:
                    seq = e[0:3] + [pv(0, 0, oth)] + e[3:6] + pv1 + e[6:9] + qk + \
                        [flag(tp)] + e[9:12] + pv0 + e[12:16] + ["s_nop 2"]
                else:
                    seq = e[0:2] + [pv(0, 0, oth)] + e[2:5] + pv1 + e[5:8] + qk + \
                        [flag(tp)] + e[8:11] + pv0 + e[11:16] + ["s_nop 1"]
            else:
                seq = e[0:2] + pv1 + e[2:5] + pre + qk + post + e[5:10] + pv0 + e[10:13] + late + e[13:16]
            if opt.get("fine") and t == 3 and j in (0, 2, 4, 8, 14):
                stamp(a, {0: 6, 2: 7, 4: 8, 8: 9, 14: 10}[j])
            if opt.get("fine") and t == 4 and j == 0:
                stamp(a, 11)
            for x in seq:
                a(x)

    coltile(0, first=True)
    probe(a, "k2fp")
    stamp(a, 4)
    if LOOP:
        a("s_mov_b32 s55, 1")
        a(f"v_add_u32 v{vQA}, 1024, v{vQA}")
        a(".p2align 6")
        a.label("K2_cloop")
        coltile(1, rel=True)
        a(f"s_add_u32 m0, m0, {PREC}")
        a(f"v_add_u32 v{vQA}, 1024, v{vQA}")
        a("s_add_u32 s55, s55, 1")
        a("s_cmp_lt_u32 s55, 8")
        a("s_cbranch_scc1 K2_cloop")
        a(pv(15, 1, S1))
        a("s_nop 11")
        for x in publish(0) + [flag(0)]:
            a(x)
    else:
        for t in range(1, 8):
            coltile(t, last=(t == 7))
        a("s_nop 1")
        a(pv(15, 1, S1))
        a("s_nop 11")
        for x in publish(7):
            a(x)
    a.label("K2_ctail")
    a("s_waitcnt lgkmcnt(0)")
    stamp(a, 5)
    probe(a, "k2cend")
    a("s_barrier")
    a("s_barrier")
    a.label("K2_final")
    a(f"v_mov_b32 v13, {L_FLG}")
    a("s_waitcnt lgkmcnt(0)")
    a("s_barrier")
    a("ds_read_b32 v14, v13 offset:48")
    a("s_waitcnt lgkmcnt(0)")
    a("v_readfirstlane_b32 s53, v14")
    a("s_nop 0")
    a(f"s_cmp_gt_u32 s53, s{sSLOW}")
    a("s_cbranch_scc1 K2_unsafe")
    probe(a, "k2end")
    if PROBE[0]:
        a(f"s_cmp_ge_u32 s{sW}, 4")
        a("s_cbranch_scc1 K2_exit")
    probe_flush(a, WS, ("k2start", "k2go", "k2fp", "k2cend", "k2end"))
    stamp(a, 12)
    if STAMP[0] == 1:
        a("s_waitcnt vmcnt(0)")
    stamp(a, 13)
    stamp_flush(a, WS, sW, WS_STAMP + 0x20000)
    a.label("K2_exit")
    a("s_endpgm")

    vOIDX, vEPO, vAW, vONE, vFA, vF1, vRS, vFE, vRS2 = 2, 3, 4, 5, 6, 7, 8, 111, 110
    G, TT = 10, 12
    ACC, PR, RAW, AF, XR, YR = 16, 48, 64, 104, 112, 120
    BUF = [128, 192]
    LG, LXS, LD, D1, TM, MA = 16, 48, 80, 96, 100, 112
    ABL = opt.get("abl", 0)
    a.label("K2_service")
    a.c("service waves")
    late_srds()
    a(f"s_load_dwordx4 s[32:35], s[0:1], {KA['wg']}")
    a(f"s_load_dwordx2 s[{WD}:{WD+1}], s[0:1], {KA['wd']}")
    for r in (WD, MW):
        a(f"s_mov_b32 s{r+2}, 1835008")
        a(f"s_mov_b32 s{r+3}, 0x20000")
    if opt.get("moeeven", 1):
        a(f"s_mul_i32 s{sSL}, s50, 14")
        a(f"s_add_u32 s{sSL}, s{sSL}, s51")
        a("s_cmp_lt_u32 s51, 28")
        a(f"s_cselect_b32 s{sMOE}, {0 if ABL & 4 else 1}, 0")
        a(f"s_andn2_b32 s{sMOE}, s{sMOE}, s50")
    else:
        a(f"s_mul_i32 s{sSL}, s50, 14")
        a(f"s_add_u32 s{sSL}, s{sSL}, s51")
        a("s_cmp_lt_u32 s51, 14")
        a(f"s_cselect_b32 s{sMOE}, {0 if ABL & 4 else 1}, 0")

    def code_prefetch():
        a("s_getpc_b64 s[56:57]")
        a.label("K2_pc")
        a("s_sub_u32 s56, s56, K2_pc - attn_kernel")
        a("s_subb_u32 s57, s57, 0")
        a(f"s_lshl_b32 s52, s{sV}, 13")
        a("v_lshl_add_u32 v126, v0, 7, s52")
        a("v_min_u32 v126, K2_unsafe - attn_kernel, v126")
        a("global_load_dword v127, v126, s[56:57]")

    if opt.get("cpf", 0) == 1:
        code_prefetch()
    clear_flags(a)
    a("v_and_b32 v16, 2, v0")
    a("v_cmp_ne_u32 vcc, 0, v16")
    a("v_mov_b32 v16, 0x4444")
    a("v_mov_b32 v17, 0xeeee")
    a(f"v_mov_b32 v{vONE}, 1")
    a(f"v_cndmask_b32 v{vOIDX}, v16, v17, vcc")
    a("v_lshrrev_b32 v18, 4, v0")
    a("v_and_b32 v19, 15, v0")
    a("v_lshlrev_b32 v16, 4, v19")
    a(f"v_lshl_add_u32 v{vEPO}, v18, 11, v16")
    a("v_and_b32 v20, 3, v0")
    a(f"v_mul_u32_u24 v{vFA}, {WREC}, v20")
    a(f"v_add_u32 v{vFA}, {L_PART + 2304}, v{vFA}")
    a("v_lshlrev_b32 v16, 2, v20")
    a(f"v_add_u32 v{vFE}, {L_FLG}, v16")
    a(f"v_mov_b32 v{vF1}, {L_FLG}")
    a("v_bfe_u32 v16, v0, 1, 1")
    a("v_lshl_add_u32 v16, v16, 2, v18")
    a("v_bfe_u32 v21, v0, 2, 2")
    a("v_lshl_add_u32 v16, v16, 2, v21")
    a("v_and_b32 v17, 1, v0")
    a("v_lshl_add_u32 v16, v16, 1, v17")
    a("v_lshlrev_b32 v16, 2, v16")
    a(f"v_add_u32 v{vRS}, {L_PART}, v16")
    a(f"v_add_u32 v{vRS2}, {L_PART + 2*WREC}, v16")
    a("v_bfe_u32 v16, v0, 1, 4")
    a("v_lshrrev_b32 v22, 5, v0")
    a("v_lshl_add_u32 v16, v16, 1, v22")
    a("v_lshl_add_u32 v16, v16, 1, v17")
    a(f"s_lshl_b32 s52, s{sV}, 2")
    a(f"s_add_u32 s52, s52, {L_AFR + 7*1024}")
    a(f"v_lshl_add_u32 v{vAW}, v16, 4, s52")
    a(f"v_add_u32 v9, {L_AFR}, v{vL16}")
    a(f"v_lshrrev_b32 v{MA}, 1, v0")
    a(f"v_mul_u32_u24 v{MA}, 3584, v{MA}")
    a(f"v_lshl_add_u32 v{MA}, v17, 4, v{MA}")
    a(f"v_lshrrev_b32 v{MA+1}, 2, v0")
    a(f"v_lshlrev_b32 v{MA+1}, 10, v{MA+1}")
    a(f"v_lshl_add_u32 v{MA+1}, v20, 4, v{MA+1}")
    a(f"v_lshlrev_b32 v{MA+3}, 2, v0")
    a(f"s_mul_i32 s58, s{sV}, {MREC}")
    a(f"s_add_u32 s58, s58, {L_MOEW}")
    a(f"s_and_b32 s52, s{sV}, 1")
    a("s_lshl_b32 s52, s52, 9")
    a("s_add_u32 s52, s52, s58")
    a(f"v_lshl_add_u32 v{TM}, v18, 4, s52")
    a("s_mov_b32 s52, s58")
    a("v_lshlrev_b32 v20, 3, v20")
    a(f"v_lshl_add_u32 v{TM+1}, v18, 3, v21")
    a(f"v_lshl_add_u32 v{TM+1}, v{TM+1}, 5, v20")
    a(f"v_add_u32 v{TM+1}, s52, v{TM+1}")
    a(f"v_lshl_add_u32 v{TM+2}, v22, 3, v21")
    a(f"v_lshl_add_u32 v{TM+2}, v{TM+2}, 6, v20")
    a("v_and_b32 v16, 1, v18")
    a(f"v_lshl_add_u32 v{TM+2}, v16, 5, v{TM+2}")
    a(f"v_add_u32 v{TM+2}, s52, v{TM+2}")
    a(f"s_lshl_b32 s52, s{sV}, 6")
    a(f"s_add_u32 s52, s52, {L_HP}")
    a(f"v_lshl_add_u32 v{TM+3}, v18, 4, s52")
    a(f"s_lshl_b32 s52, s{sV}, 2")
    a(f"v_add_u32 v{TM+4}, s52, v{vF1}")
    a(f"v_lshlrev_b32 v{TM+5}, 2, v19")
    a(f"v_add_u32 v{TM+5}, {L_HP}, v{TM+5}")
    a(f"s_lshl_b32 s52, s{sV}, 5")
    a(f"s_add_u32 s52, s52, {L_HB}")
    a(f"v_lshl_add_u32 v{TM+6}, v19, 1, s52")
    a(f"v_lshl_add_u32 v{TM+7}, v22, 4, s52")
    a(f"v_mov_b32 v{TM+8}, 0")
    if opt.get("mtouch", 0):
        a("v_lshrrev_b32 v118, 2, v0")
        a("v_mul_u32_u24 v118, 3584, v118")
        a("v_lshl_add_u32 v118, v20, 4, v118")
        a("s_mul_i32 s36, s50, 448")
        a("s_andn2_b32 s36, s36, 127")
        a("s_lshl_b32 s39, s51, 1")
        a(f"s_and_b32 s38, s{sV}, 1")
        a("s_add_u32 s39, s39, s38")
        a("s_and_b32 s39, s39, 31")
        a(f"s_mul_i32 s37, s39, {16*3584}")
        a("s_add_u32 s36, s36, s37")
        a("v_min_u32 v117, 55, v0")
        a("v_lshlrev_b32 v117, 7, v117")
        a(f"s_mul_i32 s37, s50, {224*1024}")
        a(f"s_mul_i32 s38, s39, {56*128}")
        a("s_add_u32 s37, s37, s38")
    a("v_lshlrev_b32 v12, 3, v0")
    a(f"s_mov_b32 s52, {WS_CAND}")
    a(f"s_lshl_b32 s53, s{sV}, 1")
    a(f"s_add_u32 s54, s53, s{sROT}")
    a(f"s_lshl_b32 s53, s53, 10")
    a("s_waitcnt lgkmcnt(0)")
    stamp(a, 1)
    a(f"buffer_load_dwordx2 v[14:15], v12, s[{WS}:{WS+3}], s52 offen")
    for e in range(2):
        a(f"s_add_u32 s55, s54, {e}")
        a("s_and_b32 s55, s55, 7")
        a("s_lshl_b32 s55, s55, 10")
        a(f"s_add_u32 m0, s53, {L_Q + e*1024}")
        a(f"s_add_u32 s55, s55, s{sQB}")
        a(f"buffer_load_dwordx4 v{vL16}, s[{WS}:{WS+3}], s55 offen lds")
    a(f"s_bitcmp1_b32 s{sW}, 1")
    a(f"s_cselect_b64 s[{MW}:{MW+1}], s[34:35], s[32:33]")
    a(f"s_setprio {opt.get('sprio', 2)}")
    a("s_waitcnt vmcnt(2)")
    argmax(a, 14, sKEY, sIDX)
    a(f"s_lshr_b32 s52, s{sIDX}, 3")
    a(f"s_cmp_eq_u32 s52, s{sBROW}")
    a(f"s_cselect_b32 s{sMOE}, 0, s{sMOE}")
    a("s_cmp_eq_u32 s2, 248")
    a("s_cbranch_scc0 K2_nospare")
    a("s_lshr_b32 s53, s52, 5")
    a("s_and_b32 s52, s52, 31")
    a(f"s_mul_i32 s{sSL}, s53, 14")
    a(f"s_add_u32 s{sSL}, s{sSL}, s52")
    a(f"s_cmp_lt_u32 s52, {28 if opt.get('moeeven', 1) else 14}")
    a(f"s_cselect_b32 s{sMOE}, {0 if ABL & 4 else 1}, 0")
    if opt.get("moeeven", 1):
        a(f"s_andn2_b32 s{sMOE}, s{sMOE}, s53")
    a.label("K2_nospare")
    a("s_waitcnt vmcnt(0)")
    stamp(a, 2)
    a("s_barrier")
    stamp(a, 3)
    if opt.get("mtouch", 0):
        a("s_cmp_lt_u32 s51, 16")
        a("s_cbranch_scc1 K2_t2")
        a(f"buffer_load_dword v119, v118, s[{MW}:{MW+3}], s36 offen")
        a(f"s_cmp_ge_u32 s{sV}, 2")
        a("s_cbranch_scc1 K2_t2")
        a(f"buffer_load_dword v116, v117, s[{WD}:{WD+3}], s37 offen")
        a.label("K2_t2")
    if opt.get("cpf", 0) == 2:
        code_prefetch()

    def spin(addr, off, tag, vt, sleep):
        a("s_mov_b32 s60, 0")
        a.label(f"K2_spin_{tag}")
        a(f"ds_read_b32 v{vt}, v{addr} offset:{off}")
        a("s_waitcnt lgkmcnt(0)")
        a(f"v_cmp_eq_u32 vcc, 0, v{vt}")
        a(f"s_cbranch_vccz K2_spun_{tag}")
        a(f"s_sleep {sleep}")
        a("s_add_u32 s60, s60, 1")
        a("s_cmp_lt_u32 s60, 0x400000")
        a(f"s_cbranch_scc1 K2_spin_{tag}")
        a.label(f"K2_spun_{tag}")

    WP = opt.get("wpace", 12)

    def wo_loads(t):
        if ABL & 1:
            return
        a(f"s_add_u32 s52, s{sROT}, {t}")
        a("s_and_b32 s52, s52, 7")
        a("s_lshl_b32 s52, s52, 16")
        a("s_add_u32 s52, s52, s54")
        for h in range(4):
            a(f"s_waitcnt vmcnt({WP})")
            for i in range(4):
                a(f"buffer_load_dwordx4 {vr(BUF[t%2]+h*16+i*4,4)}, v{vL16}, s[{WS}:{WS+3}], s52 offen offset:{i*1024}")
            if h < 3:
                a("s_add_u32 s52, s52, 4096")

    a(f"s_cmp_eq_u32 s{sMOE}, 0")
    a("s_cbranch_scc1 K2_project")
    a(f"s_lshl_b32 s54, s{sV}, 14")
    a(f"s_add_u32 s54, s54, {WS_WOF}")
    if opt.get("wfirst", 1):
        wo_loads(0)
        wo_loads(1)
        a("s_waitcnt vmcnt(4)")
    a(f"s_and_b32 s55, s{sV}, 1")
    a(f"s_mul_i32 s53, s55, {256*3584}")
    a(f"s_lshl_b32 s52, s{sSL}, 5")
    a("s_add_u32 s53, s53, s52")
    a(f"s_lshl_b32 s56, s{sSL}, 1")
    MP = opt.get("mpace", 3)
    a(f"s_lshl_b32 s57, s{sIDX}, 10")
    a("s_add_u32 m0, s58, 12288")
    a("s_nop 0")
    a(f"buffer_load_dwordx4 v{vL16}, s[{X}:{X+3}], s57 offen lds")
    for i in range(8):
        a(f"s_add_u32 s57, s56, {i}")
        a("s_and_b32 s57, s57, 7")
        a("s_lshl_b32 s59, s57, 10")
        a("s_add_u32 m0, s59, s58")
        a(f"s_mul_i32 s57, s57, {32*3584}")
        a("s_add_u32 s57, s57, s53")
        if i >= MP:
            a(f"s_waitcnt vmcnt({MP - 1})")
        a(f"buffer_load_dwordx4 v{MA}, s[{MW}:{MW+3}], s57 offen lds")
    a(f"s_lshl_b32 s53, s{sSL}, 14")
    a(f"s_lshl_b32 s52, s{sV}, 8")
    a("s_add_u32 s53, s53, s52")
    a(f"s_waitcnt vmcnt({MP - 1})")
    for i in range(4):
        a(f"s_add_u32 m0, s58, {8192 + i*1024}")
        a("s_nop 0" if i == 0 else "s_add_u32 s53, s53, 64")
        a(f"buffer_load_dwordx4 v{MA+1}, s[{WD}:{WD+3}], s53 offen lds")
    stamp(a, 9)
    a("s_waitcnt vmcnt(4)")
    for i in range(8):
        a(f"ds_read_b64_tr_b16 {vr(LG+4*i,2)}, v{TM+1} offset:{i*1024}")
        a(f"ds_read_b64_tr_b16 {vr(LG+4*i+2,2)}, v{TM+1} offset:{i*1024 + 128}")
        a(f"ds_read_b128 {vr(LXS+4*i,4)}, v{TM} offset:{12288 + i*64}")
        if i in (3, 7):
            a("s_waitcnt lgkmcnt(0)")
    stamp(a, 10)
    if opt.get("mprio", 1):
        a("s_setprio 0")
    for i in range(8):
        cc = "0" if i == 0 else vr(D1, 4)
        a(f"v_mfma_f32_16x16x32_bf16 {vr(D1,4)}, {vr(LG+4*i,4)}, {vr(LXS+4*i,4)}, {cc}")
        if opt.get("gap", 0):
            a(f"s_nop {opt.get('gap', 6) - 1}")
    if opt.get("mprio", 1):
        a("s_setprio 2")
    a("s_waitcnt vmcnt(0)")
    for i in range(4):
        a(f"ds_read_b64_tr_b16 {vr(LD+4*i,2)}, v{TM+2} offset:{8192 + i*1024}")
        a(f"ds_read_b64_tr_b16 {vr(LD+4*i+2,2)}, v{TM+2} offset:{8192 + i*1024 + 256}")
    a(f"ds_write_b128 v{TM+3}, {vr(D1,4)}")
    a(f"ds_write_b32 v{TM+4}, v{vONE} offset:32")
    spin(vFE, 32, "L", TM + 9, opt.get("sll", 1))
    a(f"ds_read2_b32 {vr(D1,2)}, v{TM+5} offset0:0 offset1:32")
    a(f"ds_read2_b32 {vr(D1+2,2)}, v{TM+5} offset0:16 offset1:48")
    a("s_waitcnt lgkmcnt(0)")
    a(f"v_pk_add_f32 {vr(D1,2)}, {vr(D1,2)}, {vr(D1+2,2)}")
    a(f"v_cvt_pk_bf16_f32 v{D1}, v{D1}, v{D1+1}")
    a(f"v_lshlrev_b32 v{D1+1}, 16, v{D1}")
    a(f"v_mul_f32 v{D1+2}, {fbits(-LOG2E):#x}, v{D1+1}")
    a(f"v_exp_f32 v{D1+2}, v{D1+2}")
    a(f"v_and_b32 v{D1}, 0xffff0000, v{D1}")
    a(f"v_add_f32 v{D1+2}, 1.0, v{D1+2}")
    a(f"v_rcp_f32 v{D1+2}, v{D1+2}")
    a("s_nop 0")
    a(f"v_mul_f32 v{D1+1}, v{D1+1}, v{D1+2}")
    a(f"v_cvt_pk_bf16_f32 v{D1+1}, v{D1+1}, v{D1+1}")
    a(f"v_and_b32 v{D1+1}, 0xffff0000, v{D1+1}")
    a(f"v_mul_f32 v{D1}, v{D1}, v{D1+1}")
    a(f"v_cvt_pk_bf16_f32 v{D1}, v{D1}, v{D1}")
    a(f"ds_write_b16 v{TM+6}, v{D1}")
    a(f"ds_read_b128 {vr(D1,4)}, v{TM+7}")
    a(f"s_lshl_b32 s53, s{sV}, 9")
    a(f"s_add_u32 s53, s53, {WS_YACC}")
    a(f"s_and_b32 s52, s{sSL}, {NREP-1}")
    a("s_lshl_b32 s52, s52, 11")
    a("s_add_u32 s53, s53, s52")
    a("s_waitcnt lgkmcnt(0)")
    DD = [16, 32, 48, 64]
    if opt.get("mprio", 1):
        a("s_setprio 0")
    for i in range(4):
        a(f"v_mfma_f32_32x32x16_bf16 {vr(DD[i],16)}, {vr(D1,4)}, {vr(LD+4*i,4)}, 0")
        if i < 3 and opt.get("gap2", 0):
            a(f"s_nop {opt.get('gap2') - 1}")
    if opt.get("mprio", 1):
        a("s_setprio 2")
    a("s_nop 15")
    a(f"v_permlane32_swap_b32 v{DD[0]}, v{DD[1]}")
    a(f"v_permlane32_swap_b32 v{DD[2]}, v{DD[3]}")
    a(f"buffer_atomic_add_f32 v{DD[0]}, v{MA+3}, s[{WS}:{WS+3}], s53 offen")
    a(f"buffer_atomic_add_f32 v{DD[2]}, v{MA+3}, s[{WS}:{WS+3}], s53 offen offset:256")
    a(f"s_lshl_b32 s52, s{sSL}, 2")
    a(f"s_add_u32 s52, s52, s{sV}")
    a("s_lshl_b32 s52, s52, 7")
    a(f"s_add_u32 s52, s52, {WS_YFLG}")
    stamp(a, 11)
    a("s_waitcnt vmcnt(0)")
    a("s_mov_b64 exec, 1")
    a(f"buffer_store_dword v{vONE}, v{TM+8}, s[{WS}:{WS+3}], s52 offen sc1")
    a("s_mov_b64 exec, -1")

    if opt.get("wfirst", 1):
        a("s_branch K2_loaded")

    lo, hi = fbits(2.0 ** -32), fbits(2.0 ** 120)

    def check(l):
        a.c("softmax guard: flag any row sum outside [2^-32, 2^120] (or NaN) -> true-max rerun")
        a(f"v_subrev_u32 v{l}, {lo:#x}, v{l}")
        a(f"v_cmp_lt_u32 vcc, {hi - lo:#x}, v{l}")

    def reduce_norm(t):
        u0 = t * PREC // 256
        for hw in range(2):
            a(f"ds_read2st64_b32 {vr(RAW+32+2*hw,2)}, v{[vRS, vRS2][hw]} offset0:{u0+8} offset1:{u0+8+WREC//256}")
        for w in range(4):
            if w == 3:
                a("s_waitcnt lgkmcnt(8)")
            for i in range(4):
                o = u0 + (w & 1) * (WREC // 256) + 2 * i
                a(f"ds_read2st64_b32 {vr(RAW+8*w+2*i,2)}, v{[vRS, vRS2][w >> 1]} offset0:{o} offset1:{o+1}")
        a("s_waitcnt lgkmcnt(0)")
        a(f"v_pk_add_f32 {vr(RAW+32,2)}, {vr(RAW+32,2)}, {vr(RAW+34,2)}")
        for i in range(4):
            a(f"v_pk_add_f32 {vr(RAW+2*i,2)}, {vr(RAW+2*i,2)}, {vr(RAW+8+2*i,2)}")
        a(f"v_add_f32 v{RAW+32}, v{RAW+32}, v{RAW+33}")
        for i in range(4):
            a(f"v_pk_add_f32 {vr(RAW+16+2*i,2)}, {vr(RAW+16+2*i,2)}, {vr(RAW+24+2*i,2)}")
        a(f"v_rcp_f32 v{RAW+34}, v{RAW+32}")
        check(RAW + 32)
        for i in range(4):
            a(f"v_pk_add_f32 {vr(RAW+2*i,2)}, {vr(RAW+2*i,2)}, {vr(RAW+16+2*i,2)}")
        a(f"s_or_b64 s[{sBAD}:{sBAD+1}], s[{sBAD}:{sBAD+1}], vcc")
        for i in range(4):
            a(f"v_pk_mul_f32 {vr(RAW+2*i,2)}, {vr(RAW+2*i,2)}, {vr(RAW+34,2)} op_sel_hi:[1,0]")
        for i in range(4):
            a(f"v_cvt_pk_bf16_f32 v{AF+i}, v{RAW+2*i}, v{RAW+2*i+1}")

    def duty(t):
        a(f"s_cmp_eq_u32 s{sV}, {t & 3}")
        a(f"s_cbranch_scc0 K2_nod{t}")
        spin(vFA, t * PREC, f"P{t}", RAW, opt.get("sl1", 4))
        reduce_norm(t)
        a(f"ds_write_b128 v9, {vr(AF,4)} offset:{t*1024}")
        a(f"ds_write_b32 v{vF1}, v{vONE} offset:{4*t}")
        a.label(f"K2_nod{t}")

    a.label("K2_project")
    a.c("per column tile: reduce the four key-range partials, normalise, multiply by the wo fragments")
    stamp(a, 4)
    if ABL & 8:
        a("s_branch K2_ctail")
    a(f"s_lshl_b32 s54, s{sV}, 14")
    a(f"s_add_u32 s54, s54, {WS_WOF}")
    wo_loads(0)
    wo_loads(1)
    a.label("K2_loaded")
    if opt.get("lowp", 0):
        a(f"s_mul_i32 s52, s{sV}, {WREC}")
        a(f"s_add_u32 s52, s52, {L_PART + 2304}")
        a("v_mov_b32 v108, s52")
    a(f"v_mov_b64 {vr(TT,2)}, 0")
    a("s_nop 1")
    for i in range(2):
        a(f"v_mfma_f32_32x32x8_bf16 {vr(ACC+16*i,16)}, {vr(TT,2)}, {vr(TT,2)}, 0")
        a("s_nop 15")
    a(f"s_mov_b64 s[{sBAD}:{sBAD+1}], 0")
    for t in range(8):
        if t < 7:
            if t == 0:
                duty(0)
            spin(vF1, 4 * t, f"A{t}", RAW, opt.get("sl2", 4))
            a(f"ds_read_b128 {vr(AF,4)}, v9 offset:{t*1024}")
            LP = opt.get("lowp", 0)
            if t < LP:
                a(f"ds_read_b32 v{RAW}, v108 offset:{(t+1)*PREC}")
                a(f"s_waitcnt vmcnt(16) lgkmcnt(0)")
                a(f"v_cmp_eq_u32 vcc, 0, v{RAW}")
                a(f"s_cbranch_vccz K2_hp{t}")
                a("s_setprio 0")
                for i in range(opt.get("nv", 3)):
                    a("v_nop")
                for u in range(8):
                    a(f"v_smfmac_f32_16x16x64_bf16 {vr(ACC+4*u,4)}, {vr(AF,4)}, {vr(BUF[t%2]+u*8,8)}, v{vOIDX}")
                a("s_setprio 2")
                a(f"s_branch K2_pd{t}")
                a.label(f"K2_hp{t}")
            else:
                a(f"s_waitcnt vmcnt(16) lgkmcnt(0)")
        else:
            u0 = 7 * PREC // 256
            a.label("K2_lasttile")
            a(f"s_lshl_b32 s52, s{sV}, 9")
            a(f"v_lshlrev_b32 v{TT}, 2, v0")
            a(f"v_add_u32 v{TT}, {L_PART}, v{TT}")
            a(f"v_add_u32 v{TT+1}, {2*WREC}, v{TT}")
            a(f"v_add_u32 v{TT+2}, s52, v{TT}")
            a(f"v_add_u32 v{TT+3}, s52, v{TT+1}")
            a("s_waitcnt vmcnt(0)")
            stamp(a, 6)
            a("s_barrier")
            stamp(a, 7)
            for hw in range(2):
                a(f"ds_read2st64_b32 {vr(RAW+8+2*hw,2)}, v{TT+hw} offset0:{u0+8} offset1:{u0+8+WREC//256}")
            for w in range(4):
                o = u0 + (w & 1) * (WREC // 256)
                a(f"ds_read2st64_b32 {vr(RAW+2*w,2)}, v{TT+2+(w>>1)} offset0:{o} offset1:{o+1}")
            a("s_waitcnt lgkmcnt(4)")
            a(f"v_pk_add_f32 {vr(RAW+8,2)}, {vr(RAW+8,2)}, {vr(RAW+10,2)}")
            a(f"v_add_f32 v{RAW+8}, v{RAW+8}, v{RAW+9}")
            a(f"v_rcp_f32 v{RAW+10}, v{RAW+8}")
            a("s_waitcnt lgkmcnt(0)")
            a(f"v_pk_add_f32 {vr(RAW,2)}, {vr(RAW,2)}, {vr(RAW+2,2)}")
            a(f"v_pk_add_f32 {vr(RAW+4,2)}, {vr(RAW+4,2)}, {vr(RAW+6,2)}")
            a(f"v_pk_add_f32 {vr(RAW,2)}, {vr(RAW,2)}, {vr(RAW+4,2)}")
            a(f"v_pk_mul_f32 {vr(RAW,2)}, {vr(RAW,2)}, {vr(RAW+10,2)} op_sel_hi:[1,0]")
            a(f"v_cvt_pk_bf16_f32 v{RAW}, v{RAW}, v{RAW+1}")
            a(f"ds_write_b32 v{vAW}, v{RAW}")
            check(RAW + 8)
            a("s_waitcnt lgkmcnt(0)")
            a("s_barrier")
            a(f"ds_read_b128 {vr(AF,4)}, v9 offset:{7*1024}")
            a(f"s_or_b64 s[{sBAD}:{sBAD+1}], s[{sBAD}:{sBAD+1}], vcc")
            a("s_waitcnt lgkmcnt(0)")
        if t < 7 and opt.get("mprio", 1):
            a("s_setprio 0")
        for u in range(8):
            if not (ABL & 2):
                a(f"v_smfmac_f32_16x16x64_bf16 {vr(ACC+4*u,4)}, {vr(AF,4)}, {vr(BUF[t%2]+u*8,8)}, v{vOIDX}")
                if t < 7 and u < 7 and opt.get("gap", 0):
                    a(f"s_nop {opt.get('gap', 6) - 1}")
        if t < 7 and opt.get("mprio", 1):
            a("s_setprio 2")
        if t < opt.get("lowp", 0):
            a.label(f"K2_pd{t}")
        TR = opt.get("tres", 3)
        if t < 5:
            duty(t + 1)
        if t == TR:
            a(f"s_lshl_b32 s55, s{sBROW}, 13")
            a(f"s_lshl_b32 s53, s{sV}, 8")
            a("s_add_u32 s55, s55, s53")
            a(f"v_lshrrev_b32 v{TT+1}, 4, v0")
            a(f"v_lshlrev_b32 v{TT+1}, 3, v{TT+1}")
            a(f"s_lshl_b32 s52, s{sBROW}, 5")
            a(f"s_add_u32 s52, s52, {WS_G}")
            a(f"buffer_load_dwordx2 {vr(G,2)}, v{TT+1}, s[{WS}:{WS+3}], s52 offen")
            if opt.get("tlbo", 0):
                a(f"buffer_load_dword v109, v{TT+1}, s[{OUT}:{OUT+3}], s55 offen sc1")
            for rr in range(2):
                a(f"buffer_load_dwordx4 {vr(XR+4*rr,4)}, v{vEPO}, s[{X}:{X+3}], s55 offen offset:{rr*1024}")
        if t < 6:
            wo_loads(t + 2)
        if t == 5:
            duty(6)
        if t == TR:
            a("s_waitcnt vmcnt(16)")
            for rr in range(2):
                for h in range(4):
                    a(f"v_lshlrev_b32 v{PR+4*h+rr}, 16, v{XR+4*rr+h}")
                    a(f"v_and_b32 v{PR+4*h+2+rr}, 0xffff0000, v{XR+4*rr+h}")
            a(f"s_lshr_b32 s52, s{sIDX}, 3")
            a(f"s_cmp_eq_u32 s52, s{sBROW}")
            if not (ABL & 4):
                a("s_cbranch_scc1 K2_owner")
            a.label("K2_owned")
            a(f"v_pk_add_f32 {vr(TT,2)}, {vr(G,2)}, 1.0 op_sel_hi:[1,0] neg_lo:[1,0] neg_hi:[1,0]")
            for i in range(8):
                a(f"v_pk_mul_f32 {vr(PR+2*i,2)}, {vr(PR+2*i,2)}, {vr(TT,2)}")
    a("s_nop 0")
    for hp in range(2):
        for n in range(8):
            a(f"v_pk_fma_f32 {vr(PR+2*n,2)}, {vr(G,2)}, {vr(ACC+4*n+2*hp,2)}, {vr(PR+2*n,2)}")
    for rr in range(2):
        for h in range(4):
            a(f"v_cvt_pk_bf16_f32 v{XR+4*rr+h}, v{PR+4*h+rr}, v{PR+4*h+2+rr}")
        a(f"buffer_store_dwordx4 {vr(XR+4*rr,4)}, v{vEPO}, s[{OUT}:{OUT+3}], s55 offen offset:{rr*1024}")
    stamp(a, 8)
    a.c("softmax guard: an overflowed accumulator makes every column of its row non-finite; test one column per row")
    a(f"v_pk_add_f32 {vr(TT,2)}, {vr(ACC,2)}, {vr(ACC+2,2)}")
    a(f"v_mul_f32 v{TT}, 0, v{TT}")
    a(f"v_fmac_f32 v{TT}, 0, v{TT+1}")
    a(f"v_cmp_u_f32 vcc, v{TT}, v{TT}")
    a(f"s_or_b64 s[{sBAD}:{sBAD+1}], s[{sBAD}:{sBAD+1}], vcc")
    a("s_cbranch_scc0 K2_final")
    if not ABL:
        a(f"ds_write_b32 v{vF1}, v{vONE} offset:48")
    a("s_branch K2_final")

    a.label("K2_owner")
    a.c("this workgroup holds the routed token: wait for every expert slice, then add y*sigmoid(r) to its residual row")
    a(f"v_lshlrev_b32 v{TT}, 7, v0")
    a("s_mov_b32 s60, 0")
    a.label("K2_ypoll")
    a(f"s_mov_b32 s52, {WS_YFLG}")
    for i in range(7):
        a(f"buffer_load_dword v{RAW+i}, v{TT}, s[{WS}:{WS+3}], s52 offen sc1")
        if i < 6:
            a("s_add_u32 s52, s52, 8192")
    a("s_waitcnt vmcnt(0)")
    a(f"v_min3_u32 v{RAW}, v{RAW}, v{RAW+1}, v{RAW+2}")
    a(f"v_min3_u32 v{RAW+3}, v{RAW+3}, v{RAW+4}, v{RAW+5}")
    a(f"v_min3_u32 v{RAW}, v{RAW}, v{RAW+3}, v{RAW+6}")
    a(f"v_cmp_eq_u32 vcc, 0, v{RAW}")
    a("s_cbranch_vccz K2_yready")
    a("s_sleep 8")
    a("s_add_u32 s60, s60, 1")
    a("s_cmp_lt_u32 s60, 0x100000")
    a("s_cbranch_scc1 K2_ypoll")
    a.label("K2_yready")
    a(f"v_lshlrev_b32 v{TT}, 3, v0")
    a(f"s_lshl_b32 s52, s{sV}, 9")
    a(f"v_add_u32 v{TT+2}, s52, v{TT}")
    a(f"v_add_u32 v{TT+2}, {L_Y}, v{TT+2}")
    a(f"v_and_b32 v{TT+3}, 15, v0")
    a(f"v_lshl_add_u32 v{TT+3}, v{TT+3}, 5, s52")
    a(f"v_add_u32 v{TT+3}, {L_Y}, v{TT+3}")
    a(f"s_add_u32 s52, s52, {WS_YACC}")
    for i in range(NREP):
        a(f"buffer_load_dwordx2 {vr(RAW+2*i,2)}, v{TT}, s[{WS}:{WS+3}], s52 offen offset:{(i&1)*2048} sc1")
        if i & 1 and i < NREP - 1:
            a("s_add_u32 s52, s52, 4096")
    a(f"s_ashr_i32 s52, s{sKEY}, 31")
    a("s_not_b32 s52, s52")
    a("s_or_b32 s52, s52, 0x80000000")
    a(f"s_xor_b32 s53, s{sKEY}, s52")
    a("s_and_b32 s53, s53, 0xfffff800")
    a(f"v_cvt_pk_bf16_f32 v{TT+1}, s53, s53")
    a(f"v_and_b32 v{TT+1}, 0xffff0000, v{TT+1}")
    a(f"v_mul_f32 v{TT+1}, {fbits(-LOG2E):#x}, v{TT+1}")
    a(f"v_exp_f32 v{TT+1}, v{TT+1}")
    a(f"s_bfe_u32 s53, s{sIDX}, 0x20001")
    a(f"v_lshrrev_b32 v{YR}, 4, v0")
    a(f"v_add_f32 v{TT+1}, 1.0, v{TT+1}")
    a(f"v_rcp_f32 v{TT+1}, v{TT+1}")
    a(f"v_cmp_eq_u32 s[56:57], s53, v{YR}")
    a(f"v_cvt_pk_bf16_f32 v{TT+1}, v{TT+1}, v{TT+1}")
    a(f"v_and_b32 v{TT+1}, 0xffff0000, v{TT+1}")
    a("s_waitcnt vmcnt(0)")
    n = NREP
    while n > 1:
        n //= 2
        for i in range(n):
            a(f"v_pk_add_f32 {vr(RAW+2*i,2)}, {vr(RAW+2*i,2)}, {vr(RAW+2*(i+n),2)}")
    a(f"v_cvt_pk_bf16_f32 v{RAW}, v{RAW}, v{RAW+1}")
    a(f"v_and_b32 v{RAW+1}, 0xffff0000, v{RAW}")
    a(f"v_lshlrev_b32 v{RAW}, 16, v{RAW}")
    a(f"v_mul_f32 v{RAW}, v{RAW}, v{TT+1}")
    a(f"v_mul_f32 v{RAW+1}, v{RAW+1}, v{TT+1}")
    a(f"ds_write_b64 v{TT+2}, {vr(RAW,2)}")
    a(f"ds_read_b128 {vr(YR,4)}, v{TT+3}")
    a(f"ds_read_b128 {vr(YR+4,4)}, v{TT+3} offset:16")
    a("s_waitcnt lgkmcnt(0)")
    a("s_mov_b64 exec, s[56:57]")
    a(f"s_bitcmp1_b32 s{sIDX}, 0")
    a("s_cbranch_scc1 K2_yrow1")
    for rr in range(2):
        if rr == 1:
            a.label("K2_yrow1")
        for n in range(8):
            a(f"v_add_f32 v{PR+2*n+rr}, v{PR+2*n+rr}, v{YR+n}")
        a("s_mov_b64 exec, -1")
        if rr == 0:
            a("s_branch K2_owned")
    a("s_branch K2_owned")

    C = S1
    a.label("K2_unsafe")
    a.c("the stand-in 0 was not safe for some row: pass 1 finds the true row maxima, pass 2 redoes the softmax with them")
    a(f"s_mov_b32 s{sSLOW}, 1")
    a("s_waitcnt vmcnt(0)")
    a("s_barrier")
    clear_flags(a)
    a("v_mov_b32 v15, 0xff800000")
    for i in range(4):
        a(f"ds_write_b32 v12, v15 offset:{256 + 256*i}")
    a("s_waitcnt lgkmcnt(0)")
    a("s_barrier")
    a(f"s_cmp_lt_u32 s{sW}, 4")
    a("s_cbranch_scc1 K2_maxpass")
    a("s_barrier")
    a("s_branch K2_project")
    a.label("K2_maxpass")
    a("v_and_b32 v13, 31, v0")
    a("v_lshlrev_b32 v13, 2, v13")
    a(f"v_add_u32 v13, {L_MAX}, v13")
    a(f"v_mov_b32 v15, v{vL16}")
    a("s_mov_b32 s55, 0")
    a.label("K2_maxloop")
    a(f"ds_read_b128 {vr(Q,4)}, v15")
    a("v_mov_b32 v14, 0xff800000")
    a("s_waitcnt lgkmcnt(0)")
    for j in range(16):
        a(f"v_mfma_f32_32x32x16_bf16 {vr(S0,16)}, {vr(K+4*j,4)}, {vr(Q,4)}, 0")
        a("s_nop 15")
        for i in range(8):
            a(f"v_max3_f32 v14, v{S0+2*i}, v{S0+2*i+1}, v14")
    a("ds_max_f32 v13, v14")
    a("v_add_u32 v13, 128, v13")
    a("v_add_u32 v15, 1024, v15")
    a("s_add_u32 s55, s55, 1")
    a("s_cmp_lt_u32 s55, 8")
    a("s_cbranch_scc1 K2_maxloop")
    a("s_waitcnt lgkmcnt(0)")
    a("s_barrier")
    a("v_subrev_u32 v13, 1024, v13")
    a(f"v_mov_b32 v15, v{vL16}")
    a("v_lshl_add_u32 v3, v0, 2, s54")
    a("s_mov_b32 s55, 0")
    a.label("K2_exactloop")
    a(f"ds_read_b128 {vr(Q,4)}, v15")
    a("ds_read_b32 v14, v13")
    for i in range(8):
        a(f"v_mov_b64 {vr(O+2*i,2)}, 0")
    a("s_waitcnt lgkmcnt(0)")
    for i in range(16):
        a(f"v_sub_f32 v{C+i}, 0, v14")
    a("s_nop 1")
    for j in range(16):
        a(f"v_mfma_f32_32x32x16_bf16 {vr(S0,16)}, {vr(K+4*j,4)}, {vr(Q,4)}, {vr(C,16)}")
        a("s_nop 15")
        for i in range(16):
            a(f"v_exp_f32 v{S0+i}, v{S0+i}")
        a("s_nop 1")
        a(pv(j, 0, S0))
        a(pv(j, 1, S0))
    a("s_nop 15")
    for r in range(9):
        a(f"ds_write_b32 v3, v{O+r} offset:{L_PART + r*256}")
    a(f"ds_write_b32 v3, v{vPIDX} offset:{L_PART + 2304}")
    a("s_waitcnt lgkmcnt(0)")
    a("v_add_u32 v13, 128, v13")
    a("v_add_u32 v15, 1024, v15")
    a(f"v_add_u32 v3, {PREC}, v3")
    a("s_add_u32 s55, s55, 1")
    a("s_cmp_lt_u32 s55, 8")
    a("s_cbranch_scc1 K2_exactloop")
    a("s_branch K2_ctail")
    a.label("K2_end")


def clear_flags(a):
    a("v_and_b32 v13, 31, v0")
    a(f"v_mul_u32_u24 v13, {PREC}, v13")
    a("v_lshlrev_b32 v12, 2, v0")
    a(f"v_add_u32 v12, {L_FLG}, v12")
    a("v_mov_b32 v14, 0")
    a(f"ds_write_b32 v13, v14 offset:{L_PART + 2304}")
    a("ds_write_b32 v12, v14")


def argmax(a, v, sKEY, sIDX):
    a(f"v_max_u32 v{v}, v{v}, v{v+1}")
    a("s_nop 1")
    for d in ("row_shr:1 row_mask:0xf", "row_shr:2 row_mask:0xf", "row_shr:4 row_mask:0xf", "row_shr:8 row_mask:0xf",
              "row_bcast:15 row_mask:0xa", "row_bcast:31 row_mask:0xc"):
        a(f"v_max_u32_dpp v{v}, v{v}, v{v} {d} bank_mask:0xf")
        a("s_nop 1")
    a(f"v_readlane_b32 s{sKEY}, v{v}, 63")
    a("s_nop 3")
    a(f"s_andn2_b32 s{sIDX}, 2047, s{sKEY}")


HEADER = """; Kernarg layout for this problem (112 bytes, ptrs only, base s[0:1]):
;   offset  80: gate_w (512)   offset  88: d_out (1,2048,512) bf16   offset  96: d_debug   offset 104: d_ws
; @launch kernel=prep_kernel grid=(256,1,1) block=(512,1,1) lds={k1lds}
; @launch kernel=attn_kernel grid=(256,1,1) block=(512,1,1) lds={k2lds}
;
; prep_kernel : Q/K/V projections, router scores, mix gate, fragment-order copies of K, V^T and wo.
;   waves 4-7: routed-expert slice, reduction of the four key-range partials, normalisation, output projection
;
; is range-checked at run time (2^-32 <= sum <= 2^120, results finite); a workgroup that sees any row outside that
.amdgcn_target "amdgcn-amd-amdhsa--gfx950"
.text
"""

KD = """.amdhsa_kernel {name}
  .amdhsa_next_free_vgpr {vgpr}
  .amdhsa_next_free_sgpr {sgpr}
  .amdhsa_accum_offset {vgpr}
  .amdhsa_group_segment_fixed_size 0
  .amdhsa_kernarg_size 112
  .amdhsa_user_sgpr_count 2
  .amdhsa_user_sgpr_kernarg_segment_ptr 1
  .amdhsa_system_sgpr_workgroup_id_x 1
.end_amdhsa_kernel
"""


def unpack_pk(text):
    import re
    res, tail = [], False
    for line in text.split("\n"):
        if line.startswith("K2_lasttile:"):
            tail = True
        if line.startswith("K2_owner:"):
            tail = False
        m = re.match(r"\s+v_pk_(add|mul)_f32 v\[(\d+):\d+\], v\[(\d+):\d+\], v\[(\d+):\d+\]( op_sel_hi:\[1,0\])?$", line)
        if m and not tail:
            op, d, x, y, bc = m.group(1), int(m.group(2)), int(m.group(3)), int(m.group(4)), m.group(5)
            res.append(f"    v_{op}_f32 v{d}, v{x}, v{y}")
            res.append(f"    v_{op}_f32 v{d+1}, v{x+1}, v{y if bc else y+1}")
            continue
        m = re.match(r"\s+v_pk_add_f32 v\[(\d+):\d+\], v\[(\d+):\d+\], 1.0 op_sel_hi", line)
        if m and not tail:
            d, x = int(m.group(1)), int(m.group(2))
            res.append(f"    v_sub_f32 v{d}, 1.0, v{x}")
            res.append(f"    v_sub_f32 v{d+1}, 1.0, v{x+1}")
            continue
        res.append(line)
    return "\n".join(res)


def postprocess(text, opt):
    opt.setdefault("k1st", "")
    opt.setdefault("k2st", "sc1")
    if opt.get("nopk", 0):
        text = unpack_pk(text)
    out = []
    k1 = True
    for line in text.split("\n"):
        if line.startswith("attn_kernel:"):
            k1 = False
        if "s96" not in line:
            if k1 and "buffer_store" in line and "sc1" not in line and opt.get("k1st"):
                line += " " + opt["k1st"].replace("_", " ")
            if not k1 and "buffer_store_dwordx4" in line and opt.get("k2st"):
                line += " " + opt["k2st"].replace("_", " ")
            if not k1 and "buffer_load_dwordx4" in line and ", s52 offen offset" in line and "sc1" not in line and opt.get("wofl"):
                line += " " + opt["wofl"].replace("_", " ")
        out.append(line)
    return "\n".join(out)


def generate(opt):
    STAMP[0] = opt.get("stamp", 0)
    PROBE[0] = opt.get("probe")
    nsg = 100 if (STAMP[0] or PROBE[0]) else 64
    out = HEADER.format(k1lds=K1_LDS, k2lds=K2_LDS)
    for name, fn in (("prep_kernel", gen_k1), ("attn_kernel", gen_k2)):
        a = Asm()
        fn(a, opt)
        out += f".globl {name}\n.p2align 8\n.type {name},@function\n" + a.text()
    if STAMP[0] == 2:
        out += """.globl post_kernel
.p2align 8
.type post_kernel,@function
post_kernel:
    s_memrealtime s[8:9]
    s_load_dwordx2 s[4:5], s[0:1], 104
    s_mov_b32 s6, 0x400000
    s_mov_b32 s7, 0x20000
    s_mov_b32 s12, 0x33fff0
    v_mov_b32 v1, 0
    s_waitcnt lgkmcnt(0)
    v_mov_b32 v2, s8
    buffer_store_dword v2, v1, s[4:7], s12 offen ; s96
    s_endpgm
"""
        out = out.replace(";\n; prep_kernel :", "; @launch kernel=post_kernel grid=(1,1,1) block=(64,1,1) lds=0\n;\n; prep_kernel :")
    if PROBE[0]:
        op = "max" if opt.get("first") else "min"
        out += WAITK % ((WS_PROBE,) + (op,) * 9)
        out = out.replace(";\n; prep_kernel :", "; @launch kernel=wait_kernel grid=(1,1,1) block=(64,1,1) lds=0\n;\n; prep_kernel :")
    out += '.section .rodata,"a"\n.p2align 6\n'
    out += KD.format(name="prep_kernel", vgpr=144, sgpr=nsg)
    out += ".p2align 6\n"
    out += KD.format(name="attn_kernel", vgpr=256, sgpr=nsg)
    if STAMP[0] == 2:
        out += ".p2align 6\n" + KD.format(name="post_kernel", vgpr=8, sgpr=16)
    if PROBE[0]:
        out += ".p2align 6\n" + KD.format(name="wait_kernel", vgpr=8, sgpr=16)
    return postprocess(out, opt)


def fuse(text, opt):
    kn = NAME + "_kernel"
    head, rest = text.split(".globl prep_kernel\n")
    code, rod = rest.split('.section .rodata,"a"')
    k1, k2 = code.split(".globl attn_kernel\n.p2align 8\n.type attn_kernel,@function\n")
    head = "\n".join(l for l in head.split("\n") if "@launch" not in l)
    head = f"; @launch grid=(256,1,1) block=(512,1,1) lds={max(K1_LDS, K2_LDS)}\n" + head
    k1 = k1.replace("prep_kernel", kn)
    k1 = k1.replace("    s_cbranch_scc1 K1_exit\n", "    s_cbranch_scc1 K2_exit\n" + ("    s_memrealtime s[98:99]\n" if opt.get("fwait") else ""), 1)
    k1 = k1.replace("s_endpgm", "s_branch GRIDBAR")
    bar = """GRIDBAR:
    s_mov_b64 exec, -1
    s_setprio 0
    s_load_dwordx2 s[36:37], s[0:1], 96
    s_mov_b32 s38, 256
    s_mov_b32 s39, 0x20000
    v_mov_b32 v2, 1
    v_mov_b32 v3, 0
    s_waitcnt vmcnt(0) lgkmcnt(0)
    s_barrier
    s_cmp_lg_u32 s40, 0
    s_cbranch_scc1 GB_done
    s_mov_b64 exec, 1
    buffer_atomic_add v2, v3, s[36:39], 0 offen
    s_mov_b32 s60, 0
GB_poll:
    buffer_load_dword v4, v3, s[36:39], 0 offen sc1
    s_waitcnt vmcnt(0)
    v_readfirstlane_b32 s61, v4
    s_nop 0
    s_cmp_ge_u32 s61, 256
    s_cbranch_scc1 GB_ok
    s_sleep 4
    s_add_u32 s60, s60, 1
    s_cmp_lt_u32 s60, 0x100000
    s_cbranch_scc1 GB_poll
GB_ok:
    buffer_inv sc1
    s_waitcnt vmcnt(0)
    s_mov_b64 exec, -1
GB_done:
    s_barrier
    s_lshl_b32 s61, s40, 6
    v_add_u32 v0, s61, v0
"""
    if opt.get("fwait"):
        k2 = k2.replace("K2_exit:\n", """    s_cmp_lg_u32 s2, 0
    s_cbranch_scc1 K2_exit
    s_mov_b32 s60, 0
FW_loop:
    s_memrealtime s[96:97]
    s_waitcnt lgkmcnt(0)
    s_sub_u32 s96, s96, s98
    s_add_u32 s60, s60, 1
    s_cmp_gt_u32 s60, 100000
    s_cbranch_scc1 K2_exit
    s_cmp_lt_u32 s96, 5000
    s_cbranch_scc1 FW_loop
K2_exit:
""")
    return head + f".globl {kn}\n" + k1 + bar + k2 + '.section .rodata,"a"\n.p2align 6\n' + KD.format(name=kn, vgpr=256, sgpr=100)


if __name__ == "__main__":
    opt = {}
    path = f"cdna_kernels/{NAME}.s"
    for arg in sys.argv[1:]:
        k, v = arg.split("=")
        if k == "out":
            path = v
        else:
            opt[k] = int(v) if v.lstrip("-").isdigit() else v
    if opt.get("fuse"):
        opt["k1st"] = "sc1"
    text = generate(opt)
    if opt.get("fuse"):
        text = fuse(text, opt)
    open(path, "w").write(text)
    print("wrote", path)
```
